```python
import torch

def _softmax(x, axis=-1):
    return torch.softmax(x, dim=axis)
def _gelu(x):
    return torch.nn.functional.gelu(x, approximate="tanh")
def _silu(x):
    return torch.nn.functional.silu(x)
def _sigmoid(x):
    return torch.sigmoid(x)
def _layernorm(x, axis=-1, eps=1e-5):
    m = x.mean(dim=axis, keepdim=True)
    v = x.var(dim=axis, keepdim=True, unbiased=False)
    return (x - m) / torch.sqrt(v + eps)
def _scatter_add(tgt, idx, src, axis=0):
    return tgt.clone().index_add_(axis, idx, src)
def _segment_sum(src, seg, n):
    out = torch.zeros((n,) + src.shape[1:], dtype=src.dtype)
    return out.index_add_(0, seg, src)
def _pad(x, pw):
    flat = tuple(v for pair in reversed(pw) for v in pair)
    return torch.nn.functional.pad(x, flat)

kernel_name = 'recurrent_scan__spectral_gfnet__dense_activation_silu__prompt'

def setup_inputs():

    _w = (lambda a: (lambda t: t.to(torch.bfloat16) if t.is_floating_point() else t)(torch.as_tensor(a)))
    def _A_setup():
        B, S, D = 1, 2048, 1024
        Df = D // 2 + 1
        return {
            "x": _w((lambda *s: torch.randn(*s, dtype=torch.bfloat16) * 0.05)(B, S, D)),
            "w_r": _w((lambda *s: torch.randn(*s, dtype=torch.bfloat16) * 3.2)(S, Df) * 0.02),
            "w_i": _w((lambda *s: torch.randn(*s, dtype=torch.bfloat16) * 3.2)(S, Df) * 0.02),
        }
    _A_in = _A_setup()

    def _B_setup():
        B, S, D, F = 1, 2048, 1024, 3584
        return {
            "x": _w((lambda *s: torch.randn(*s, dtype=torch.bfloat16) * 0.05)(B, S, D)),
            "w1": _w((lambda *s: torch.randn(*s, dtype=torch.bfloat16) * 3.2)(D, F) * (D ** -0.5)),
            "w2": _w((lambda *s: torch.randn(*s, dtype=torch.bfloat16) * 0.4)(F, D) * (F ** -0.5)),
        }
    _B_in = _B_setup()

    return {
        "A_x": _A_in["x"],
        "A_w_r": _A_in["w_r"],
        "A_w_i": _A_in["w_i"],
        "B_x": _B_in["x"],
        "B_w1": _B_in["w1"],
        "B_w2": _B_in["w2"],
    }

def reference(A_x, A_w_r, A_w_i, B_x, B_w1, B_w2):
    def _A_ref(x, w_r, w_i):
        B, S, D = x.shape
        X = (lambda x, axes=(-2,-1): torch.fft.rfft2(x.float(), dim=axes))(x, axes=(-2, -1))
        W = w_r + 1j * w_i
        X = X * W
        y = (lambda x, s, axes=(-2,-1): torch.fft.irfft2(x, s=s, dim=axes).to(torch.bfloat16))(X, (S, D), axes=(-2, -1))
        return y

    def _B_ref(x, w1, w2):
        h = torch.einsum("bsd,df->bsf", x, w1)
        h = _silu(h)
        out = torch.einsum("bsf,fd->bsd", h, w2)
        return out

    x = A_x
    xn = _layernorm(x, axis=-1)
    s = _A_ref(xn, A_w_r, A_w_i)
    g = _silu(_B_ref(xn, B_w1, B_w2))
    return x + s * g
```

```python
class Asm:
    def __init__(self):
        self.L = []
    def __call__(self, s, *a):
        for line in s.split('\n'):
            line = line.strip()
            if line: self.L.append('    ' + line if not line.endswith(':') else line)
    def label(self, l): self.L.append(l + ':')
    def c(self, s): self.L.append('    ; ' + s)
    def text(self): return '\n'.join(self.L) + '\n'
    def extend(self, other): self.L += other.L

def vr(b, n=1):
    return f'v{b}' if n == 1 else f'v[{b}:{b+n-1}]'
def ar(b, n=1):
    return f'a{b}' if n == 1 else f'a[{b}:{b+n-1}]'
def sr(b, n=1):
    return f's{b}' if n == 1 else f's[{b}:{b+n-1}]'

class Regs:
    def __init__(self, start, limit, kind='v'):
        self.p = start; self.limit = limit; self.kind = kind; self.names = {}
    def alloc(self, n=1, align=1, name=None):
        self.p = (self.p + align - 1)//align*align
        b = self.p; self.p += n
        assert self.p <= self.limit, f'out of {self.kind} regs: {self.p} > {self.limit} ({name})'
        if name: self.names[name] = b
        return b

def srd(a, base, ptr, nbytes):
    a(f's_mov_b32 s{base}, s{ptr}')
    a(f's_and_b32 s{base+1}, s{ptr+1}, 0xffff')
    a(f's_mov_b32 s{base+2}, {hex(nbytes)}')
    a(f's_mov_b32 s{base+3}, 0x20000')

def srd_off(a, base, ptr, off, nbytes):
    a(f's_add_u32 s{base}, s{ptr}, {hex(off)}')
    a(f's_addc_u32 s{base+1}, s{ptr+1}, 0')
    a(f's_and_b32 s{base+1}, s{base+1}, 0xffff')
    a(f's_mov_b32 s{base+2}, {hex(nbytes)}')
    a(f's_mov_b32 s{base+3}, 0x20000')

def kernel_head(name):
    return f'''.text
.globl {name}
.p2align 8
.type {name},@function
{name}:
'''
def kernel_desc(name, vgpr, sgpr, accum, wgy=False):
    v = vgpr
    return f'''.section .rodata,"a"
.p2align 6
.amdhsa_kernel {name}
  .amdhsa_next_free_vgpr {v}
  .amdhsa_next_free_sgpr {sgpr}
  .amdhsa_accum_offset {accum}
  .amdhsa_group_segment_fixed_size 0
  .amdhsa_kernarg_size 72
  .amdhsa_user_sgpr_count 2
  .amdhsa_user_sgpr_kernarg_segment_ptr 1
  .amdhsa_system_sgpr_workgroup_id_x 1
  .amdhsa_float_denorm_mode_32 3
.end_amdhsa_kernel
'''
```

```python
from asm import *

WS_XN = 0x0000000
WS_H  = 0x0400000
WS_Z  = 0x1200000
WS_WP = 0x1680000
WS_Y  = 0x1B00000
WS_S  = 0x2000000
WS_DBG= 0x3000000
ZP = 8448
ZBYTES = 513*ZP
TILE_BYTES = 72*528 + 8*66 + 64
MF = 'v_mfma_f32_32x32x16_bf16'

def allreduce(a, v, t):
    for r in (8, 4, 2, 1):
        a(f'v_add_f32_dpp v{v}, v{v}, v{v} row_ror:{r} row_mask:0xf bank_mask:0xf')
    a(f'v_mov_b32 v{t}, v{v}'); a(f'v_permlane16_swap_b32 v{v}, v{t}'); a(f'v_add_f32 v{v}, v{v}, v{t}')
    a(f'v_mov_b32 v{t}, v{v}'); a(f'v_permlane32_swap_b32 v{v}, v{t}'); a(f'v_add_f32 v{v}, v{v}, v{t}')

def allreduce2(a, v0, t0, v1, t1):
    for r in (8, 4, 2, 1):
        a(f'v_add_f32_dpp v{v0}, v{v0}, v{v0} row_ror:{r} row_mask:0xf bank_mask:0xf')
        a(f'v_add_f32_dpp v{v1}, v{v1}, v{v1} row_ror:{r} row_mask:0xf bank_mask:0xf')
    for op in ('v_permlane16_swap_b32', 'v_permlane32_swap_b32'):
        a(f'v_mov_b32 v{t0}, v{v0}'); a(f'v_mov_b32 v{t1}, v{v1}')
        a(f'{op} v{v0}, v{t0}'); a(f'{op} v{v1}, v{t1}')
        a(f'v_add_f32 v{v0}, v{v0}, v{t0}'); a(f'v_add_f32 v{v1}, v{v1}, v{t1}')

def f32(x):
    import struct
    return hex(struct.unpack('<I', struct.pack('<f', x))[0])

def emit_cs(a, dc, ds, fE, eadd, fF, phase_reg, t):
    if eadd: a(f'v_add_f32 v{t}, {f32(float(eadd))}, v{fE}'); src = t
    else: src = fE
    if phase_reg is None: a(f'v_mul_f32 v{t}, v{src}, v{fF}')
    else: a(f'v_fma_f32 v{t}, v{src}, v{fF}, {phase_reg}')
    a(f'v_fract_f32 v{t}, v{t}')
    if ds is not None: a(f'v_sin_f32 v{ds}, v{t}')
    if dc is not None: a(f'v_cos_f32 v{dc}, v{t}')

def emit_img(a, dst, fE, e0, fF, phase, t):
    for jj in range(4):
        emit_cs(a, t+1, t+2, fE, e0+jj, fF, phase, t)
        a('s_nop 0')
        a(f'v_cvt_pk_bf16_f32 v{dst+jj}, v{t+1}, v{t+2}')

def cmul_pack(a, dst, re, im, cs, sn, t, n=16):
    for r in range(0, n, 2):
        u = t + 4*((r >> 1) & 1)
        a(f'v_pk_mul_f32 v[{u}:{u+1}], v[{re+r}:{re+r+1}], v[{cs+r}:{cs+r+1}]')
        a(f'v_pk_mul_f32 v[{u+2}:{u+3}], v[{im+r}:{im+r+1}], v[{cs+r}:{cs+r+1}]')
        a(f'v_pk_fma_f32 v[{u}:{u+1}], v[{im+r}:{im+r+1}], v[{sn+r}:{sn+r+1}], v[{u}:{u+1}]')
        a(f'v_pk_fma_f32 v[{u+2}:{u+3}], v[{re+r}:{re+r+1}], v[{sn+r}:{sn+r+1}], v[{u+2}:{u+3}] neg_lo:[1,0,0] neg_hi:[1,0,0]')
        a(f'v_cvt_pk_bf16_f32 v{dst+r}, v{u}, v{u+2}')
        a(f'v_cvt_pk_bf16_f32 v{dst+r+1}, v{u+1}, v{u+3}')

def tile_store_phase(a, vlane, s_w, srd_out, s_pos0, t, tile0, tag):
    vA, vG = t, t+1
    d = t+4
    a(f'v_lshrrev_b32 v{t+2}, 2, v{vlane}'); a(f'v_and_b32 v{t+3}, 3, v{vlane}')
    a(f'v_mul_u32_u24 v{vA}, 72, v{t+2}')
    a(f'v_lshrrev_b32 v{vG}, 3, v{t+2}'); a(f'v_lshl_add_u32 v{vA}, v{vG}, 3, v{vA}')
    a(f'v_lshl_add_u32 v{vA}, v{t+3}, 4, v{vA}')
    a(f's_mul_i32 s40, {s_w}, 1168'); a(f's_add_u32 s40, s40, {tile0}')
    a(f'v_add_u32 v{vA}, s40, v{vA}')
    a(f's_lshl_b32 s40, {s_w}, 4'); a(f'v_add_u32 v{vG}, s40, v{t+2}')
    a(f's_mov_b32 s41, {ZP}'); a(f'v_mul_lo_u32 v{vG}, v{vG}, s41'); a(f'v_lshl_add_u32 v{vG}, v{t+3}, 4, v{vG}')
    for it in range(4):
        a(f'ds_read_b64 v[{d+4*it}:{d+4*it+1}], v{vA} offset:{9344*it}')
        a(f'ds_read_b64 v[{d+4*it+2}:{d+4*it+3}], v{vA} offset:{9344*it+8}')
    a(f's_cmp_lg_u32 {s_w}, 0'); a(f's_cbranch_scc1 L_no5_{tag}')
    a(f'ds_read_b64 v[{d+16}:{d+17}], v{vA} offset:{9344*4}')
    a(f'ds_read_b64 v[{d+18}:{d+19}], v{vA} offset:{9344*4+8}')
    a(f's_add_u32 s41, s{s_pos0}, {4*128*ZP}')
    a('s_waitcnt lgkmcnt(0)')
    a(f'buffer_store_dwordx4 v[{d+16}:{d+19}], v{vG}, s[{srd_out}:{srd_out+3}], s41 offen')
    a.label(f'L_no5_{tag}')
    for it in range(4):
        a(f's_add_u32 s41, s{s_pos0}, {it*128*ZP}')
        a(f's_waitcnt lgkmcnt({2*(3-it)})')
        a(f'buffer_store_dwordx4 v[{d+4*it}:{d+4*it+3}], v{vG}, s[{srd_out}:{srd_out+3}], s41 offen')

def gen_row_fwd(a, tag, wg='s2'):
    ROWB = (TILE_BYTES + 255)//256*256
    a('s_load_dwordx2 s[16:17], s[0:1], 0')
    a('s_load_dwordx2 s[18:19], s[0:1], 64')
    a('v_lshrrev_b32 v1, 6, v0'); a('v_and_b32 v0, 63, v0'); a('v_readfirstlane_b32 s20, v1')
    a(f's_and_b32 s21, {wg}, 7'); a(f's_lshr_b32 s22, {wg}, 3')
    a('s_lshr_b32 s23, s22, 1')
    a('s_and_b32 s24, s22, 1'); a('s_lshl_b32 s25, s21, 1'); a('s_add_u32 s24, s24, s25')
    a('s_lshl_b32 s25, s23, 2'); a('s_and_b32 s26, s20, 3'); a('s_add_u32 s25, s25, s26'); a('s_lshl_b32 s25, s25, 6')
    a('s_lshl_b32 s26, s24, 2'); a('s_add_u32 s25, s25, s26'); a('s_lshr_b32 s26, s20, 2'); a('s_add_u32 s25, s25, s26')
    a('s_lshl_b32 s26, s25, 11'); a('s_add_u32 s27, s26, 4096')
    a('s_lshr_b32 s28, s24, 3'); a('s_lshl_b32 s28, s28, 2'); a('s_lshr_b32 s29, s23, 1'); a('s_add_u32 s28, s28, s29'); a('s_lshl_b32 s28, s28, 6')
    a('s_and_b32 s29, s23, 1'); a('s_lshl_b32 s29, s29, 5'); a('s_add_u32 s28, s28, s29')
    a('s_and_b32 s29, s24, 7'); a('s_lshl_b32 s29, s29, 2'); a('s_add_u32 s28, s28, s29'); a('s_lshl_b32 s28, s28, 4')
    a('v_lshlrev_b32 v1, 5, v0')
    a('s_waitcnt lgkmcnt(0)')
    srd(a, 4, 16, 2048*2048)
    R = Regs(8, 256)
    X = [R.alloc(8, 4), R.alloc(8, 4)]
    a(f'buffer_load_dwordx4 v[{X[0]}:{X[0]+3}], v1, s[4:7], s26 offen')
    a(f'buffer_load_dwordx4 v[{X[0]+4}:{X[0]+7}], v1, s[4:7], s26 offen offset:16')
    a(f'buffer_load_dwordx4 v[{X[1]}:{X[1]+3}], v1, s[4:7], s27 offen')
    a(f'buffer_load_dwordx4 v[{X[1]+4}:{X[1]+7}], v1, s[4:7], s27 offen offset:16')
    srd_off(a, 8, 18, WS_XN, 2048*2048)
    srd_off(a, 12, 18, WS_Z, ZBYTES)
    B1 = R.alloc(16, 4); CS = R.alloc(16, 2); SN = R.alloc(16, 2); A2 = R.alloc(16, 4)
    T = R.alloc(8, 4)
    fC32, fC1k, fH, fD, fPh = 2, 3, 4, 5, 6
    a('v_and_b32 v7, 31, v0'); a('v_cvt_f32_u32 v7, v7')
    a(f'v_mul_f32 v{fC32}, {f32(1/32)}, v7'); a(f'v_mul_f32 v{fC1k}, {f32(1/1024)}, v7')
    a(f'v_lshrrev_b32 v{fH}, 5, v0'); a(f'v_cvt_f32_u32 v{fH}, v{fH}')
    a(f'v_mul_f32 v7, {f32(8.0)}, v{fH}')
    for q in range(2):
        for jj in range(4):
            for e in range(2):
                aa = 16*q + 2*jj + e
                a(f'v_add_f32 v{T}, {f32(float(aa))}, v7')
                a(f'v_mul_f32 v{T}, v{T}, v{fC32}'); a(f'v_fract_f32 v{T}, v{T}')
                a(f'v_cos_f32 v{T+1+e}, v{T}'); a(f'v_sin_f32 v{T+3+e}, v{T}')
            a('s_nop 0')
            a(f'v_cvt_pk_bf16_f32 v{B1+4*q+jj}, v{T+1}, v{T+2}')
            a(f'v_cvt_pk_bf16_f32 v{B1+8+4*q+jj}, -v{T+3}, -v{T+4}')
    a(f'v_mul_f32 v7, {f32(4.0)}, v{fH}')
    for r in range(16):
        emit_cs(a, CS+r, SN+r, 7, (r & 3) + 8*(r >> 2), fC1k, None, T)
    a(f'v_and_b32 v{fD}, 31, v0'); a(f'v_lshrrev_b32 v{fD}, 1, v{fD}'); a(f'v_cvt_f32_u32 v{fD}, v{fD}'); a(f'v_mul_f32 v{fD}, {f32(1/32)}, v{fD}')
    a(f'v_and_b32 v{fPh}, 1, v0'); a(f'v_cvt_f32_u32 v{fPh}, v{fPh}'); a(f'v_mul_f32 v{fPh}, {f32(0.25)}, v{fPh}')
    for q in range(4): emit_img(a, A2+4*q, 7, 8*q, fD, f'v{fPh}', T)
    vRB = 2
    vTR, vTW = 3, 4
    a(f's_lshl_b32 s30, s20, 12'); a(f's_add_u32 s30, s30, {ROWB}')
    a(f'v_add_u32 v{vRB}, s30, v1')
    a(f'v_lshrrev_b32 v5, 5, v0'); a(f'v_lshlrev_b32 v5, 3, v5'); a(f'v_lshrrev_b32 v6, 2, v0'); a(f'v_and_b32 v6, 3, v6'); a('v_add_u32 v5, v5, v6')
    a('v_lshlrev_b32 v5, 6, v5'); a('v_lshrrev_b32 v6, 4, v0'); a('v_and_b32 v6, 1, v6'); a('v_lshl_add_u32 v5, v6, 5, v5')
    a('v_and_b32 v6, 3, v0'); a('v_lshl_add_u32 v5, v6, 3, v5'); a(f'v_add_u32 v{vTR}, s30, v5')
    a('v_and_b32 v5, 31, v0'); a('v_lshrrev_b32 v6, 5, v0'); a('v_lshl_add_u32 v5, v6, 6, v5')
    a('v_lshrrev_b32 v6, 3, v5'); a('v_mul_u32_u24 v5, 72, v5'); a('v_lshl_add_u32 v5, v6, 3, v5')
    a('s_lshl_b32 s31, s20, 2'); a(f'v_add_u32 v{vTW}, s31, v5')
    XF = [R.alloc(16, 2), R.alloc(16, 2)]
    S = [R.alloc(4, 2), R.alloc(4, 2)]
    a('s_waitcnt vmcnt(0)')
    for z in range(2):
        for j in range(8):
            a(f'v_lshlrev_b32 v{XF[z]+2*j}, 16, v{X[z]+j}')
            a(f'v_and_b32 v{XF[z]+2*j+1}, 0xffff0000, v{X[z]+j}')
    for z in range(2):
        a(f'v_pk_add_f32 v[{S[z]}:{S[z]+1}], v[{XF[z]}:{XF[z]+1}], v[{XF[z]+2}:{XF[z]+3}]')
    for j in range(2, 8):
        for z in range(2):
            a(f'v_pk_add_f32 v[{S[z]}:{S[z]+1}], v[{S[z]}:{S[z]+1}], v[{XF[z]+2*j}:{XF[z]+2*j+1}]')
    for z in range(2): a(f'v_add_f32 v{S[z]}, v{S[z]}, v{S[z]+1}')
    allreduce2(a, S[0], S[0]+2, S[1], S[1]+2)
    M = [R.alloc(2, 2), R.alloc(2, 2)]
    for z in range(2):
        a(f'v_mul_f32 v{M[z]}, {f32(-1/1024)}, v{S[z]}'); a(f'v_mov_b32 v{M[z]+1}, v{M[z]}')
    for z in range(2):
        for j in range(8):
            a(f'v_pk_add_f32 v[{T+2*z}:{T+2*z+1}], v[{XF[z]+2*j}:{XF[z]+2*j+1}], v[{M[z]}:{M[z]+1}]')
            if j == 0: a(f'v_pk_mul_f32 v[{S[z]}:{S[z]+1}], v[{T+2*z}:{T+2*z+1}], v[{T+2*z}:{T+2*z+1}]')
            else: a(f'v_pk_fma_f32 v[{S[z]}:{S[z]+1}], v[{T+2*z}:{T+2*z+1}], v[{T+2*z}:{T+2*z+1}], v[{S[z]}:{S[z]+1}]')
    for z in range(2): a(f'v_add_f32 v{S[z]}, v{S[z]}, v{S[z]+1}')
    allreduce2(a, S[0], S[0]+2, S[1], S[1]+2)
    for z in range(2):
        s = S[z]
        a(f'v_mul_f32 v{s}, {f32(1/1024)}, v{s}')
        a(f'v_cvt_pk_bf16_f32 v{s}, v{s}, v{s}'); a(f'v_lshlrev_b32 v{s}, 16, v{s}')
        a(f'v_add_f32 v{s}, {f32(1e-5)}, v{s}')
        a(f'v_cvt_pk_bf16_f32 v{s}, v{s}, v{s}'); a(f'v_lshlrev_b32 v{s}, 16, v{s}')
        a(f'v_sqrt_f32 v{s}, v{s}'); a('s_nop 0')
        a(f'v_cvt_pk_bf16_f32 v{s}, v{s}, v{s}'); a(f'v_lshlrev_b32 v{s}, 16, v{s}')
        a(f'v_rcp_f32 v{s}, v{s}'); a('s_nop 0'); a(f'v_mov_b32 v{s+1}, v{s}')
        m = M[z]
        a(f'v_cvt_pk_bf16_f32 v{m}, v{m}, v{m}'); a(f'v_lshlrev_b32 v{m}, 16, v{m}'); a(f'v_mov_b32 v{m+1}, v{m}')
    for z in range(2):
        for j in range(8):
            u = T + 2*((j & 1) + 2*z)
            a(f'v_pk_add_f32 v[{u}:{u+1}], v[{XF[z]+2*j}:{XF[z]+2*j+1}], v[{M[z]}:{M[z]+1}]')
            a(f'v_pk_mul_f32 v[{u}:{u+1}], v[{u}:{u+1}], v[{S[z]}:{S[z]+1}]')
            a(f'v_cvt_pk_bf16_f32 v{X[z]+j}, v{u}, v{u+1}')
    for z in range(2):
        so = 's26' if z == 0 else 's27'
        a(f'ds_write_b128 v{vRB}, v[{X[z]}:{X[z]+3}] offset:{2048*z}')
        a(f'ds_write_b128 v{vRB}, v[{X[z]+4}:{X[z]+7}] offset:{2048*z+16}')
        a(f'buffer_store_dwordx4 v[{X[z]}:{X[z]+3}], v1, s[8:11], {so} offen')
        a(f'buffer_store_dwordx4 v[{X[z]+4}:{X[z]+7}], v1, s[8:11], {so} offen offset:16')
    AD = [R.alloc(8, 4), R.alloc(8, 4)]
    D1 = [[R.alloc(16, 4), R.alloc(16, 4)], [R.alloc(16, 4), R.alloc(16, 4)]]
    a('s_waitcnt lgkmcnt(0)')
    for z in range(2):
        for q in range(2):
            for jj in range(2):
                a(f'ds_read_b64_tr_b16 v[{AD[z]+4*q+2*jj}:{AD[z]+4*q+2*jj+1}], v{vTR} offset:{2048*z + 1024*q + 256*jj}')
    for z in range(2):
        a(f's_waitcnt lgkmcnt({4*(1-z)})')
        for sg in range(2):
            d = D1[z][sg]
            a(f'{MF} v[{d}:{d+15}], v[{AD[z]}:{AD[z]+3}], v[{B1+8*sg}:{B1+8*sg+3}], 0')
            a(f'{MF} v[{d}:{d+15}], v[{AD[z]+4}:{AD[z]+7}], v[{B1+8*sg+4}:{B1+8*sg+7}], v[{d}:{d+15}]')
    P = XF
    ALT = S
    for z in range(2):
        d = D1[z][0]
        a(f'v_pk_add_f32 v[{ALT[z]}:{ALT[z]+1}], v[{d}:{d+1}], v[{d+2}:{d+3}]')
        for j in range(2, 8): a(f'v_pk_add_f32 v[{ALT[z]}:{ALT[z]+1}], v[{ALT[z]}:{ALT[z]+1}], v[{d+2*j}:{d+2*j+1}]')
        a(f'v_sub_f32 v{ALT[z]}, v{ALT[z]}, v{ALT[z]+1}')
        a(f'v_mov_b32 v{ALT[z]+1}, v{ALT[z]}'); a(f'v_permlane32_swap_b32 v{ALT[z]}, v{ALT[z]+1}'); a(f'v_add_f32 v{ALT[z]}, v{ALT[z]}, v{ALT[z]+1}')
        a(f'v_mov_b32 v{ALT[z]+1}, 0'); a(f'v_cvt_pk_bf16_f32 v{ALT[z]}, v{ALT[z]}, v{ALT[z]+1}')
        cmul_pack(a, P[z], D1[z][0], D1[z][1], CS, SN, T)
        d2 = D1[z][0]
        for q in range(4):
            a(f'{MF} v[{d2}:{d2+15}], v[{A2+4*q}:{A2+4*q+3}], v[{P[z]+4*q}:{P[z]+4*q+3}], ' + ('0' if q == 0 else f'v[{d2}:{d2+15}]'))
    for z in range(2):
        d2 = D1[z][0]; o = D1[z][1]
        for u in range(8):
            a(f'v_cvt_pk_bf16_f32 v{o+u}, v{d2+2*u}, v{d2+2*u+1}')
            du = 32*(u & 1) + 128*(u >> 1)
            a(f'ds_write_b32 v{vTW}, v{o+u} offset:{73*du + 32*z}')
    a('s_mov_b64 exec, 1')
    a(f'v_mov_b32 v5, s31')
    for z in range(2): a(f'ds_write_b32 v5, v{ALT[z]} offset:{72*512 + 8*64 + 32*z}')
    a('s_mov_b64 exec, -1')
    a('s_waitcnt lgkmcnt(0)'); a('s_barrier')
    tile_store_phase(a, 0, 's20', 12, 28, D1[0][0], 0, tag)
    a('s_endpgm')
    return R.p, ROWB + 8*4096

def gen_wprep(a, tag, wg='s2', prefetch_w1=True):
    a('s_load_dwordx4 s[16:19], s[0:1], 8')
    a('s_load_dwordx2 s[32:33], s[0:1], 32')
    a('s_load_dwordx2 s[34:35], s[0:1], 64')
    a('v_lshrrev_b32 v1, 6, v0'); a('v_mov_b32 v2, v0'); a('v_and_b32 v0, 63, v0'); a('v_readfirstlane_b32 s20, v1')
    a(f's_and_b32 s21, {wg}, 7'); a(f's_lshr_b32 s22, {wg}, 3'); a('s_and_b32 s22, s22, 15')
    a('s_and_b32 s24, s21, 3'); a('s_lshl_b32 s24, s24, 1'); a('s_and_b32 s25, s22, 1'); a('s_add_u32 s24, s24, s25')
    a('s_lshr_b32 s23, s21, 2'); a('s_lshl_b32 s23, s23, 3'); a('s_lshr_b32 s25, s22, 1'); a('s_add_u32 s23, s23, s25')
    a('s_lshl_b32 s25, s23, 2'); a('s_and_b32 s26, s20, 3'); a('s_add_u32 s25, s25, s26'); a('s_lshl_b32 s25, s25, 5')
    a('s_lshl_b32 s26, s24, 2'); a('s_add_u32 s25, s25, s26'); a('s_lshr_b32 s26, s20, 2'); a('s_add_u32 s25, s25, s26')
    a('s_mul_i32 s26, s25, 1026'); a('s_add_u32 s27, s26, 2052')
    a('s_lshr_b32 s28, s23, 1'); a('s_lshl_b32 s28, s28, 6'); a('s_and_b32 s29, s23, 1'); a('s_lshl_b32 s29, s29, 5'); a('s_add_u32 s28, s28, s29')
    a('s_lshl_b32 s29, s24, 2'); a('s_add_u32 s28, s28, s29'); a('s_lshl_b32 s28, s28, 4')
    a('v_lshlrev_b32 v1, 4, v0'); a('v_mov_b32 v3, 1024')
    a('s_waitcnt lgkmcnt(0)')
    srd(a, 4, 16, 2048*1026); srd(a, 8, 18, 2048*1026)
    R = Regs(8, 256)
    WR = [R.alloc(4, 4), R.alloc(4, 4)]; WI = [R.alloc(4, 4), R.alloc(4, 4)]; NY = [R.alloc(2), R.alloc(2)]
    for z, so in enumerate(('s26', 's27')):
        a(f'buffer_load_dwordx4 v[{WR[z]}:{WR[z]+3}], v1, s[4:7], {so} offen')
        a(f'buffer_load_dwordx4 v[{WI[z]}:{WI[z]+3}], v1, s[8:11], {so} offen')
        a(f'buffer_load_ushort v{NY[z]}, v3, s[4:7], {so} offen')
        a(f'buffer_load_ushort v{NY[z]+1}, v3, s[8:11], {so} offen')
    srd_off(a, 12, 34, WS_WP, ZBYTES)
    npf = 0
    if prefetch_w1:
        srd(a, 36, 32, 1024*7168)
        PF = R.alloc(28, 4)
        a(f's_and_b32 s40, {wg}, 127'); a('s_mul_i32 s40, s40, 57344'); a('v_lshlrev_b32 v2, 4, v2')
        for i in range(7):
            a(f'buffer_load_dwordx4 v[{PF+4*i}:{PF+4*i+3}], v2, s[36:39], s40 offen')
            a('s_add_u32 s40, s40, 8192')
        npf = 7
    O = R.alloc(16, 4)
    a('v_mul_u32_u24 v4, 584, v0'); a('s_lshl_b32 s31, s20, 2'); a('v_add_u32 v4, s31, v4')
    a('s_mov_b32 s29, 0x05040100'); a('s_mov_b32 s30, 0x07060302')
    a(f's_waitcnt vmcnt({npf})')
    for z in range(2):
        for j in range(4):
            a(f'v_perm_b32 v{O+8*z+2*j}, v{WI[z]+j}, v{WR[z]+j}, s29')
            a(f'v_perm_b32 v{O+8*z+2*j+1}, v{WI[z]+j}, v{WR[z]+j}, s30')
        for e in range(8):
            a(f'ds_write_b32 v4, v{O+8*z+e} offset:{72*e + 32*z}')
    for z in range(2): a(f'v_lshl_or_b32 v{NY[z]}, v{NY[z]+1}, 16, v{NY[z]}')
    a('s_mov_b64 exec, 1')
    a('v_mov_b32 v5, s31')
    for z in range(2): a(f'ds_write_b32 v5, v{NY[z]} offset:{72*512 + 8*64 + 32*z}')
    a('s_mov_b64 exec, -1')
    a('s_waitcnt lgkmcnt(0)'); a('s_barrier')
    t = R.alloc(24, 4)
    tile_store_phase(a, 0, 's20', 12, 28, t, 0, tag)
    a('s_endpgm')
    return R.p, TILE_BYTES


COL_F32 = 0
COL_F64 = 8192
COL_TWB = 40960
COL_TWF = 0
COL_TWI = 16384
COL_LDS = COL_TWB + 32768

def gen_col(a, tag, s_idx, nwg=32, extra_prefetch=None):
    NWV = 8*nwg
    a('s_load_dwordx2 s[18:19], s[0:1], 64')
    a('v_lshrrev_b32 v1, 6, v0'); a('v_and_b32 v0, 63, v0'); a('v_readfirstlane_b32 s20, v1')
    a(f's_lshl_b32 s21, {s_idx}, 3'); a('s_add_u32 s21, s21, s20')
    a('v_lshlrev_b32 v1, 4, v0')
    a('s_waitcnt lgkmcnt(0)')
    srd_off(a, 4, 18, WS_Z, ZBYTES); srd_off(a, 8, 18, WS_WP, ZBYTES); srd_off(a, 12, 18, WS_Y, ZBYTES)
    R = Regs(8, 256)
    ZA = R.alloc(32, 4); WC = R.alloc(32, 4)
    def load_col(dst, srd_, s_col):
        a(f's_mul_i32 s40, {s_col}, {ZP}')
        for g in range(8):
            if g == 4: a('s_add_u32 s40, s40, 4096')
            a(f'buffer_load_dwordx4 v[{dst+4*g}:{dst+4*g+3}], v1, s[{srd_}:{srd_+3}], s40 offen offset:{1024*(g & 3)}')
    load_col(ZA, 4, 's21'); load_col(WC, 8, 's21')
    T = R.alloc(16, 4)
    F32 = R.alloc(32, 4)
    fF, fH4, fPh = 2, 3, 4
    a('v_and_b32 v5, 31, v0'); a('v_cvt_f32_u32 v5, v5')
    a(f'v_lshrrev_b32 v{fH4}, 5, v0'); a(f'v_cvt_f32_u32 v{fH4}, v{fH4}'); a(f'v_mul_f32 v{fH4}, {f32(4.0)}, v{fH4}')
    a('s_and_b32 s22, s20, 1'); a('s_lshr_b32 s23, s20, 1'); a('s_and_b32 s23, s23, 1'); a('s_lshr_b32 s24, s20, 2')
    a('s_lshl_b32 s25, s23, 5'); a('v_cvt_f32_u32 v6, s25'); a('v_add_f32 v6, v6, v5'); a(f'v_mul_f32 v{fF}, {f32(1/64)}, v6')
    a('v_cvt_f32_u32 v6, s22'); a(f'v_mul_f32 v{fPh}, {f32(0.25)}, v6')
    a('s_lshl_b32 s25, s24, 5'); a('v_cvt_f32_u32 v6, s25'); a(f'v_add_f32 v6, v6, v{fH4}')
    a('s_lshl_b32 s25, s22, 1'); a('s_add_u32 s25, s25, s23'); a('s_lshl_b32 s25, s25, 3'); a('s_lshl_b32 s26, s24, 2'); a('s_add_u32 s25, s25, s26'); a('s_lshl_b32 s25, s25, 10')
    a('v_add_u32 v7, s25, v1')
    for q in range(4):
        emit_img(a, T+4+4*(q & 1), 6, 8*q, fF, f'v{fPh}', T)
        a(f'ds_write_b128 v7, v[{T+4+4*(q & 1)}:{T+7+4*(q & 1)}] offset:{COL_F64 + 1024*q}')
    a(f'v_mul_f32 v{fF}, {f32(1/32)}, v5')
    a('s_lshr_b32 s25, s20, 1'); a('s_lshl_b32 s26, s25, 3'); a('v_cvt_f32_u32 v6, s26'); a(f'v_add_f32 v6, v6, v{fH4}')
    a('s_lshl_b32 s26, s22, 2'); a('s_add_u32 s26, s26, s25'); a('s_lshl_b32 s26, s26, 10'); a('v_add_u32 v7, s26, v1')
    emit_img(a, T+4, 6, 0, fF, f'v{fPh}', T)
    a(f'ds_write_b128 v7, v[{T+4}:{T+7}] offset:{COL_F32}')
    a('s_and_b32 s25, s20, 3'); a('s_lshl_b32 s26, s25, 3'); a('v_cvt_f32_u32 v6, s26'); a(f'v_add_f32 v6, v6, v{fH4}')
    a('s_lshr_b32 s27, s20, 2'); a('s_lshl_b32 s28, s27, 5'); a('v_cvt_f32_u32 v7, s28')
    a('s_lshl_b32 s28, s27, 3'); a('s_lshl_b32 s29, s25, 1'); a('s_add_u32 s28, s28, s29'); a('s_lshl_b32 s28, s28, 10'); a(f's_add_u32 s28, s28, {COL_TWB}'); a('v_add_u32 v2, s28, v1')
    a(f'v_add_f32 v4, v6, v7'); a(f'v_mul_f32 v{T+15}, {f32(1/2048)}, v5')
    for pr in range(2):
        for e in range(2):
            emit_cs(a, T+4+e, T+6+e, 4, 2*pr+e, T+15, None, T)
        a('s_nop 0')
        a(f'ds_write_b128 v2, v[{T+4}:{T+7}] offset:{COL_TWF + 1024*pr}')
        a('s_nop 1')
    a(f'v_add_f32 v4, v5, v7'); a(f'v_mul_f32 v{T+15}, {f32(1/2048)}, v4')
    for pr in range(2):
        for e in range(2):
            emit_cs(a, T+8+e, T+10+e, 6, 2*pr+e, T+15, None, T)
        a('s_nop 0')
        for e in range(4): a(f'v_mul_f32 v{T+8+e}, {f32(2.0**-20)}, v{T+8+e}')
        a(f'ds_write_b128 v2, v[{T+8}:{T+11}] offset:{COL_TWI + 1024*pr}')
        a('s_nop 1')
    a(f'v_add_u32 v2, {COL_TWB}, v1')
    a('s_waitcnt lgkmcnt(0)'); a('s_barrier')
    for i in range(8): a(f'ds_read_b128 v[{F32+4*i}:{F32+4*i+3}], v1 offset:{COL_F32 + 1024*i}')
    D = [[R.alloc(16, 4), R.alloc(16, 4)], [R.alloc(16, 4), R.alloc(16, 4)]]
    P = R.alloc(32, 4)
    FB = R.alloc(16, 4)
    TWS = R.alloc(8, 4)
    def twiddle(dst, base):
        seq = [(blk, pr) for blk in range(2) for pr in range(8)]
        a(f'ds_read_b128 v[{TWS}:{TWS+3}], v2 offset:{base}')
        for n, (blk, pr) in enumerate(seq):
            cur = TWS + 4*(n & 1)
            if n+1 < len(seq):
                nx = TWS + 4*((n+1) & 1)
                a(f'ds_read_b128 v[{nx}:{nx+3}], v2 offset:{base + 1024*(n+1)}')
                a('s_waitcnt lgkmcnt(1)')
            else: a('s_waitcnt lgkmcnt(0)')
            r = 2*pr; re = D[0][blk]+r; im = D[1][blk]+r; u = T + 4*(n & 1)
            a(f'v_pk_mul_f32 v[{u}:{u+1}], v[{re}:{re+1}], v[{cur}:{cur+1}]')
            a(f'v_pk_mul_f32 v[{u+2}:{u+3}], v[{im}:{im+1}], v[{cur}:{cur+1}]')
            a(f'v_pk_fma_f32 v[{u}:{u+1}], v[{im}:{im+1}], v[{cur+2}:{cur+3}], v[{u}:{u+1}]')
            a(f'v_pk_fma_f32 v[{u+2}:{u+3}], v[{re}:{re+1}], v[{cur+2}:{cur+3}], v[{u+2}:{u+3}] neg_lo:[1,0,0] neg_hi:[1,0,0]')
            a(f'v_cvt_pk_bf16_f32 v{dst+16*blk+r}, v{u}, v{u+2}')
            a(f'v_cvt_pk_bf16_f32 v{dst+16*blk+r+1}, v{u+1}, v{u+3}')
    def f64_stage(data, data_is_A):
        seq = [(sg, blk, q) for blk in range(2) for sg in range(2) for q in range(8)]
        def img(n): sg, blk, q = seq[n]; return COL_F64 + ((sg*2 + blk)*8 + q)*1024
        for n in range(3): a(f'ds_read_b128 v[{FB+4*n}:{FB+4*n+3}], v1 offset:{img(n)}')
        for n, (sg, blk, q) in enumerate(seq):
            if n+3 < len(seq):
                sl = FB + 4*((n+3) & 3)
                a(f'ds_read_b128 v[{sl}:{sl+3}], v1 offset:{img(n+3)}')
            a(f's_waitcnt lgkmcnt({min(3, len(seq)-1-n)})')
            f = FB + 4*(n & 3); d = D[sg][blk]; x = data + 4*q
            c = '0' if q == 0 else f'v[{d}:{d+15}]'
            if data_is_A: a(f'{MF} v[{d}:{d+15}], v[{x}:{x+3}], v[{f}:{f+3}], {c}')
            else: a(f'{MF} v[{d}:{d+15}], v[{f}:{f+3}], v[{x}:{x+3}], {c}')
    a.label(f'L_col_{tag}')
    a('s_waitcnt vmcnt(8) lgkmcnt(0)')
    for blk in range(2):
        for sg in range(2):
            d = D[sg][blk]
            for q in range(4):
                x = ZA + 16*blk + 4*q; f = F32 + 16*sg + 4*q
                a(f'{MF} v[{d}:{d+15}], v[{x}:{x+3}], v[{f}:{f+3}], ' + ('0' if q == 0 else f'v[{d}:{d+15}]'))
    a(f's_add_u32 s22, s21, {NWV}')
    a(f's_cmp_lt_u32 s22, 513'); a(f's_cselect_b32 s23, s22, s21')
    twiddle(P, COL_TWF)
    load_col(ZA, 4, 's23')
    f64_stage(P, False)
    a('s_waitcnt vmcnt(8)')
    for blk in range(2):
        for r in range(0, 16, 2):
            w = WC + 16*blk + r; u = T + 8*((r >> 1) & 1); xr = D[0][blk]+r; xi = D[1][blk]+r
            a(f'v_lshlrev_b32 v{u}, 16, v{w}'); a(f'v_lshlrev_b32 v{u+1}, 16, v{w+1}')
            a(f'v_and_b32 v{u+2}, 0xffff0000, v{w}'); a(f'v_and_b32 v{u+3}, 0xffff0000, v{w+1}')
            a(f'v_pk_mul_f32 v[{u+4}:{u+5}], v[{xr}:{xr+1}], v[{u}:{u+1}]')
            a(f'v_pk_mul_f32 v[{u+6}:{u+7}], v[{xr}:{xr+1}], v[{u+2}:{u+3}]')
            a(f'v_pk_fma_f32 v[{u+4}:{u+5}], v[{xi}:{xi+1}], v[{u+2}:{u+3}], v[{u+4}:{u+5}] neg_lo:[1,0,0] neg_hi:[1,0,0]')
            a(f'v_pk_fma_f32 v[{u+6}:{u+7}], v[{xi}:{xi+1}], v[{u}:{u+1}], v[{u+6}:{u+7}]')
            a(f'v_cvt_pk_bf16_f32 v{P+16*blk+r}, v{u+4}, -v{u+6}')
            a(f'v_cvt_pk_bf16_f32 v{P+16*blk+r+1}, v{u+5}, -v{u+7}')
    load_col(WC, 8, 's23')
    f64_stage(P, True)
    twiddle(P, COL_TWI)
    for blk in range(2):
        for sg in range(2):
            d = D[sg][blk]
            for q in range(4):
                x = P + 16*blk + 4*q; f = F32 + 16*sg + 4*q
                a(f'{MF} v[{d}:{d+15}], v[{f}:{f+3}], v[{x}:{x+3}], ' + ('0' if q == 0 else f'v[{d}:{d+15}]'))
    a('s_and_b32 s40, s21, 511'); a('s_cmp_lg_u32 s40, 0'); a(f's_cbranch_scc1 L_nosp_{tag}')
    a('s_mov_b32 s40, 0.5'); a('s_mov_b32 s41, 0.5')
    for sg in range(2):
        for blk in range(2):
            for r in range(0, 16, 2):
                d = D[sg][blk]+r
                a(f'v_pk_mul_f32 v[{d}:{d+1}], v[{d}:{d+1}], s[40:41]')
    a.label(f'L_nosp_{tag}')
    a(f's_mul_i32 s40, s21, {ZP}')
    for blk in range(2):
        for q in range(4):
            o = P + 16*blk + 4*q
            for i in range(4):
                a(f'v_cvt_pk_bf16_f32 v{o+i}, v{D[0][blk]+4*q+i}, v{D[1][blk]+4*q+i}')
            g = 4*blk + q
            if g == 4: a('s_add_u32 s40, s40, 4096')
            a(f'buffer_store_dwordx4 v[{o}:{o+3}], v1, s[12:15], s40 offen offset:{1024*(g & 3)}')
    a(f's_add_u32 s21, s21, {NWV}')
    a('s_cmp_lt_u32 s21, 513'); a(f's_cbranch_scc1 L_col_{tag}')
    a('s_endpgm')
    return R.p, COL_LDS

def gen_row_inv(a, tag, wg='s2'):
    a('s_load_dwordx2 s[18:19], s[0:1], 64')
    a('v_lshrrev_b32 v1, 6, v0'); a('v_and_b32 v0, 63, v0'); a('v_readfirstlane_b32 s20, v1')
    a(f's_and_b32 s21, {wg}, 7'); a(f's_lshr_b32 s22, {wg}, 3')
    a('s_lshr_b32 s23, s22, 1')
    a('s_and_b32 s24, s22, 1'); a('s_lshl_b32 s25, s21, 1'); a('s_add_u32 s24, s24, s25')
    a('s_lshl_b32 s25, s23, 2'); a('s_and_b32 s26, s20, 3'); a('s_add_u32 s25, s25, s26'); a('s_lshl_b32 s25, s25, 6')
    a('s_lshl_b32 s26, s24, 2'); a('s_add_u32 s25, s25, s26'); a('s_lshr_b32 s26, s20, 2'); a('s_add_u32 s25, s25, s26')
    a('s_lshl_b32 s26, s25, 11'); a('s_add_u32 s27, s26, 4096')
    a('s_lshr_b32 s28, s24, 3'); a('s_lshl_b32 s28, s28, 2'); a('s_lshr_b32 s29, s23, 1'); a('s_add_u32 s28, s28, s29'); a('s_lshl_b32 s28, s28, 6')
    a('s_and_b32 s29, s23, 1'); a('s_lshl_b32 s29, s29, 5'); a('s_add_u32 s28, s28, s29')
    a('s_and_b32 s29, s24, 7'); a('s_lshl_b32 s29, s29, 2'); a('s_add_u32 s28, s28, s29'); a('s_lshl_b32 s28, s28, 4')
    a('s_waitcnt lgkmcnt(0)')
    srd_off(a, 4, 18, WS_Y, ZBYTES); srd_off(a, 8, 18, WS_S, 2048*2048)
    R = Regs(8, 256)
    L = R.alloc(20, 4)
    a('v_lshrrev_b32 v2, 2, v0'); a('v_and_b32 v3, 3, v0')
    a('v_mul_u32_u24 v4, 72, v2'); a('v_lshrrev_b32 v5, 3, v2'); a('v_lshl_add_u32 v4, v5, 3, v4'); a('v_lshl_add_u32 v4, v3, 4, v4')
    a('s_mul_i32 s40, s20, 1168'); a('v_add_u32 v4, s40, v4')
    a('s_lshl_b32 s40, s20, 4'); a('v_add_u32 v5, s40, v2'); a(f's_mov_b32 s41, {ZP}'); a('v_mul_lo_u32 v5, v5, s41'); a('v_lshl_add_u32 v5, v3, 4, v5')
    for it in range(5):
        a(f's_add_u32 s41, s28, {it*128*ZP}')
        a(f'buffer_load_dwordx4 v[{L+4*it}:{L+4*it+3}], v5, s[4:7], s41 offen')
    G = R.alloc(16, 4); CS = R.alloc(16, 2); SN = R.alloc(16, 2); H = R.alloc(16, 4); T = R.alloc(8, 4)
    fC32, fC1k, fH4, fPh, vSg = 2, 3, 6, 7, 1
    a(f'v_and_b32 v{T}, 31, v0')
    a(f'v_lshrrev_b32 v{T+1}, 2, v{T}'); a(f'v_and_b32 v{T+1}, 1, v{T+1}'); a(f'v_lshlrev_b32 v{T+1}, 4, v{T+1}')
    a(f'v_lshrrev_b32 v{T+2}, 3, v{T}'); a(f'v_lshl_add_u32 v{T+1}, v{T+2}, 2, v{T+1}')
    a(f'v_and_b32 v{T+2}, 3, v{T}'); a(f'v_add_u32 v{T+1}, v{T+1}, v{T+2}'); a(f'v_cvt_f32_u32 v{T+1}, v{T+1}')
    a(f'v_mul_f32 v{fC32}, {f32(1/32)}, v{T+1}'); a(f'v_mul_f32 v{fC1k}, {f32(1/1024)}, v{T+1}')
    a(f'v_lshrrev_b32 v{fH4}, 5, v0'); a(f'v_cvt_f32_u32 v{fH4}, v{fH4}'); a(f'v_mul_f32 v{fH4}, {f32(4.0)}, v{fH4}')
    for sg in range(2):
        a(f'v_mov_b32 v{fPh}, {f32(0.25*sg)}')
        for q in range(2): emit_img(a, G+8*sg+4*q, fH4, 8*q, fC32, f'v{fPh}', T)
    for r in range(16): emit_cs(a, CS+r, SN+r, fH4, (r & 3) + 8*(r >> 2), fC1k, None, T)
    a(f'v_and_b32 v{T}, 31, v0'); a(f'v_cvt_f32_u32 v{T}, v{T}'); a(f'v_mul_f32 v{fC32}, {f32(1/32)}, v{T}')
    for q in range(4): emit_img(a, H+4*q, fH4, 8*q, fC32, None, T)
    a(f'v_and_b32 v{T}, 1, v0'); a(f'v_cvt_f32_u32 v{T}, v{T}'); a(f'v_fma_f32 v{vSg}, v{T}, -2.0, 1.0')
    a('v_cmp_gt_u32 vcc, 32, v0'); a(f'v_cndmask_b32 v{vSg}, 0, v{vSg}, vcc')
    for it in range(4):
        a(f's_waitcnt vmcnt({4-it})')
        a(f'ds_write_b64 v4, v[{L+4*it}:{L+4*it+1}] offset:{9344*it}')
        a(f'ds_write_b64 v4, v[{L+4*it+2}:{L+4*it+3}] offset:{9344*it+8}')
    a('s_waitcnt vmcnt(0)')
    a('s_cmp_lg_u32 s20, 0'); a(f's_cbranch_scc1 L_no5_{tag}')
    a(f'ds_write_b64 v4, v[{L+16}:{L+17}] offset:{9344*4}')
    a(f'ds_write_b64 v4, v[{L+18}:{L+19}] offset:{9344*4+8}')
    a.label(f'L_no5_{tag}')
    a('s_waitcnt lgkmcnt(0)'); a('s_barrier')
    a('v_and_b32 v2, 31, v0'); a('v_lshrrev_b32 v3, 5, v0'); a('v_lshl_add_u32 v2, v3, 7, v2')
    a('v_lshrrev_b32 v3, 3, v2'); a('v_mul_u32_u24 v2, 72, v2'); a('v_lshl_add_u32 v2, v3, 3, v2')
    a('s_lshl_b32 s31, s20, 2'); a('v_add_u32 v2, s31, v2'); a('v_mov_b32 v3, s31')
    V = [R.alloc(8, 4), R.alloc(8, 4)]; NQ = [R.alloc(), R.alloc()]
    D1 = [[R.alloc(16, 4), R.alloc(16, 4)], [R.alloc(16, 4), R.alloc(16, 4)]]
    P = [R.alloc(16, 4), R.alloc(16, 4)]
    for z in range(2):
        for q in range(2):
            for jj in range(4):
                a(f'ds_read_b32 v{V[z]+4*q+jj}, v2 offset:{2336*(8*q+jj) + 32*z}')
        a(f'ds_read_b32 v{NQ[z]}, v3 offset:{72*512 + 8*64 + 32*z}')
    a('v_lshlrev_b32 v4, 6, v0'); a('v_and_b32 v4, 0x7ff, v4'); a('v_lshrrev_b32 v5, 5, v0'); a('v_lshl_add_u32 v4, v5, 5, v4')
    for z in range(2):
        a(f's_waitcnt lgkmcnt({9*(1-z)})')
        for sg in range(2):
            d = D1[z][sg]
            a(f'{MF} v[{d}:{d+15}], v[{V[z]}:{V[z]+3}], v[{G+8*sg}:{G+8*sg+3}], 0')
            a(f'{MF} v[{d}:{d+15}], v[{V[z]+4}:{V[z]+7}], v[{G+8*sg+4}:{G+8*sg+7}], v[{d}:{d+15}]')
        a(f'v_lshlrev_b32 v{NQ[z]}, 16, v{NQ[z]}')
    for z in range(2):
        a(f'v_fmac_f32 v{D1[z][0]}, v{NQ[z]}, v{vSg}')
        cmul_pack(a, P[z], D1[z][0], D1[z][1], CS, SN, T)
        d2 = D1[z][0]
        for q in range(4):
            a(f'{MF} v[{d2}:{d2+15}], v[{P[z]+4*q}:{P[z]+4*q+3}], v[{H+4*q}:{H+4*q+3}], ' + ('0' if q == 0 else f'v[{d2}:{d2+15}]'))
    for z in range(2):
        d2 = D1[z][0]; o = D1[z][1]
        for u in range(8): a(f'v_cvt_pk_bf16_f32 v{o+u}, v{d2+2*u}, v{d2+2*u+1}')
        so = 's26' if z == 0 else 's27'
        a(f'buffer_store_dwordx4 v[{o}:{o+3}], v4, s[8:11], {so} offen')
        a(f'buffer_store_dwordx4 v[{o+4}:{o+7}], v4, s[8:11], {so} offen offset:16')
    a('s_endpgm')
    return R.p, TILE_BYTES
```

```python
from asm import *

class G16:
    def __init__(s, **kw):
        s.BM=128; s.BN=256; s.WM=1; s.WN=4; s.K=1024; s.S=3; s.NSUB=1; s.pitchA=2048; s.pitchW=7168
        s.NL=4; s.dbufA=False; s.prio=0; s.lds0=0
        s.noload=False; s.nomfma=False
        s.__dict__.update(kw)
        s.TM = s.BM//s.WM//16; s.TN = s.BN//s.WN//16
        s.NC = s.WM*s.WN
        s.RB = s.BN*2
        s.A_BYTES = s.BM*128; s.W_BYTES = 64*s.RB
        s.SUB = s.A_BYTES + s.W_BYTES
        s.STAGE = s.SUB*s.NSUB
        s.nA = s.A_BYTES//1024; s.nW = s.W_BYTES//1024
        assert s.nA % s.NL == 0 and s.nW % s.NL == 0, (s.nA, s.nW, s.NL)
        s.PA = s.nA//s.NL; s.PW = s.nW//s.NL; s.P = (s.PA+s.PW)*s.NSUB
        s.NST = s.K//(64*s.NSUB)
        assert s.NST*64*s.NSUB == s.K
        s.LDS = s.S*s.STAGE
        s.NSTEP = 2*s.NSUB

S_STG, S_NEG = 43, 44
def emit_consts(a, cfg):
    a(f's_mov_b32 s{S_STG}, {cfg.STAGE}')
    a(f's_mov_b32 s{S_NEG}, {hex((-(cfg.S-1)*cfg.STAGE) & 0xffffffff)}')

def w_mask_code(a, cfg, vk, dst, t):
    if cfg.RB >= 256:
        a(f'v_and_b32 v{dst}, 3, v{vk}')
        a(f'v_lshrrev_b32 v{t}, 1, v{vk}'); a(f'v_and_b32 v{t}, 4, v{t}')
        a(f'v_or_b32 v{dst}, v{dst}, v{t}')
        a(f'v_lshlrev_b32 v{dst}, 1, v{dst}')
    else:
        a(f'v_and_b32 v{dst}, 2, v{vk}')
        a(f'v_lshrrev_b32 v{t}, 1, v{vk}'); a(f'v_and_b32 v{t}, 4, v{t}')
        a(f'v_or_b32 v{dst}, v{dst}, v{t}')

def emit_loader_setup(a, cfg, R, vlane, s_lw, s_m0row_bytes, s_n0_bytes, tmp):
    t0, t1, t2, t3 = tmp
    vA = [R.alloc(name=f'vA{i}') for i in range(cfg.PA)]
    vW = [R.alloc(name=f'vW{i}') for i in range(cfg.PW)]
    for i in range(cfg.PA):
        a(f's_mul_i32 s40, {s_lw}, {8*cfg.PA}')
        a(f's_add_u32 s40, s40, {8*i}')
        a(f'v_lshrrev_b32 v{t0}, 3, v{vlane}')
        a(f'v_add_u32 v{t0}, s40, v{t0}')
        a(f'v_lshrrev_b32 v{t1}, 1, v{t0}')
        a(f'v_xor_b32 v{t1}, v{t1}, v{vlane}')
        a(f'v_and_b32 v{t1}, 7, v{t1}')
        a(f'v_lshlrev_b32 v{t1}, 4, v{t1}')
        a(f's_mov_b32 s41, {cfg.pitchA}')
        a(f'v_mul_lo_u32 v{t0}, v{t0}, s41')
        a(f'v_add3_u32 v{vA[i]}, v{t0}, v{t1}, {s_m0row_bytes}')
    cpr = cfg.RB//16; rpp = 64//cpr if cpr <= 64 else None
    sh = cpr.bit_length()-1
    for i in range(cfg.PW):
        a(f's_mul_i32 s40, {s_lw}, {rpp*cfg.PW}')
        a(f's_add_u32 s40, s40, {rpp*i}')
        a(f'v_lshrrev_b32 v{t0}, {sh}, v{vlane}')
        a(f'v_add_u32 v{t0}, s40, v{t0}')
        w_mask_code(a, cfg, t0, t1, t3)
        a(f'v_and_b32 v{t2}, {cpr-1}, v{vlane}')
        a(f'v_xor_b32 v{t1}, v{t1}, v{t2}')
        a(f'v_lshlrev_b32 v{t1}, 4, v{t1}')
        a(f's_mov_b32 s41, {cfg.pitchW}')
        a(f'v_mul_lo_u32 v{t0}, v{t0}, s41')
        a(f'v_add3_u32 v{vW[i]}, v{t0}, v{t1}, {s_n0_bytes}')
    return vA, vW

def stage_load_list(cfg, vA, vW, srdA, srdW, s_kA, s_kW, s_lds, s_tmp):
    out = []
    for sub in range(cfg.NSUB):
        sa, sw = s_kA, s_kW
        pre = []
        if sub:
            pre = [f's_add_u32 s{s_tmp}, s{s_kA}, {128*sub}', f's_add_u32 s{s_tmp+1}, s{s_kW}, {64*cfg.pitchW*sub}']
            sa, sw = s_tmp, s_tmp+1
        for i in range(cfg.PA):
            out.append(pre + [f's_add_u32 m0, s{s_lds}, {sub*cfg.SUB + i*1024}', 's_nop 0',
                        f'buffer_load_dwordx4 v{vA[i]}, s[{srdA}:{srdA+3}], s{sa} offen lds']); pre = []
        for i in range(cfg.PW):
            out.append([f's_add_u32 m0, s{s_lds+1}, {sub*cfg.SUB + i*1024}', 's_nop 0',
                        f'buffer_load_dwordx4 v{vW[i]}, s[{srdW}:{srdW+3}], s{sw} offen lds'])
    return out

def emit_loader_loop(a, cfg, vA, vW, srdA, srdW, s_kA, s_kW, s_lds, s_it, s_stage, s_tmp, tag):
    def adv():
        a(f's_add_u32 s{s_kA}, s{s_kA}, {128*cfg.NSUB}')
        a(f's_add_u32 s{s_kW}, s{s_kW}, {64*cfg.pitchW*cfg.NSUB}')
        a(f's_add_u32 s{s_stage}, s{s_stage}, 1')
        a(f's_cmp_eq_u32 s{s_stage}, {cfg.S}')
        a(f's_cselect_b32 s42, s{S_NEG}, s{S_STG}')
        a(f's_cselect_b32 s{s_stage}, 0, s{s_stage}')
        a(f's_add_u32 s{s_lds}, s{s_lds}, s42'); a(f's_add_u32 s{s_lds+1}, s{s_lds+1}, s42')
    def loads(force=False):
        if cfg.noload and not force: return
        for g in stage_load_list(cfg, vA, vW, srdA, srdW, s_kA, s_kW, s_lds, s_tmp):
            for x in g: a(x)
    a(f's_mov_b32 s{s_stage}, 0')
    for i in range(cfg.S-1 + (1 if cfg.noload else 0)):
        loads(True); adv()
    if cfg.noload: a('s_waitcnt vmcnt(0)')
    n_main = cfg.NST - (cfg.S-1)
    a(f's_mov_b32 s{s_it}, 0')
    a(f'L_load_{tag}:')
    a(f's_waitcnt vmcnt({min(63,(cfg.S-2)*cfg.P)})')
    a('s_barrier')
    loads(); adv()
    a(f's_add_u32 s{s_it}, s{s_it}, 1')
    a(f's_cmp_lt_u32 s{s_it}, {n_main}')
    a(f's_cbranch_scc1 L_load_{tag}')
    for i in range(cfg.S-1):
        a(f's_waitcnt vmcnt({min(63,(cfg.S-2-i)*cfg.P)})')
        a('s_barrier')

def emit_consumer_addr(a, cfg, R, vlane, s_wm, s_wn, tmp):
    t0, t1, t2, t3 = tmp
    vRA = [R.alloc(name=f'vRA{ks}') for ks in range(2)]
    vRW = [R.alloc(name=f'vRW{t}') for t in range(cfg.TN)]
    a(f'v_and_b32 v{t0}, 15, v{vlane}')
    a(f's_mul_i32 s40, {s_wm}, {cfg.TM*16}')
    a(f'v_add_u32 v{t0}, s40, v{t0}')
    a(f'v_lshrrev_b32 v{t1}, 1, v{t0}')
    a(f'v_and_b32 v{t1}, 7, v{t1}')
    a(f'v_lshrrev_b32 v{t2}, 4, v{vlane}')
    a(f'v_xor_b32 v{t1}, v{t1}, v{t2}')
    a(f'v_lshlrev_b32 v{t0}, 7, v{t0}')
    if cfg.lds0: a(f'v_add_u32 v{t0}, {cfg.lds0}, v{t0}')
    for ks in range(2):
        a(f'v_xor_b32 v{t2}, {4*ks}, v{t1}')
        a(f'v_lshl_add_u32 v{vRA[ks]}, v{t2}, 4, v{t0}')
    a(f'v_lshrrev_b32 v{t0}, 2, v{vlane}'); a(f'v_and_b32 v{t0}, 3, v{t0}')
    a(f'v_lshrrev_b32 v{t2}, 4, v{vlane}'); a(f'v_lshl_add_u32 v{t0}, v{t2}, 3, v{t0}')
    w_mask_code(a, cfg, t0, t1, t3)
    a(f's_mov_b32 s41, {cfg.RB}'); a(f'v_mul_lo_u32 v{t0}, v{t0}, s41')
    a(f'v_and_b32 v{t2}, 1, v{vlane}'); a(f'v_lshl_add_u32 v{t0}, v{t2}, 3, v{t0}')
    a(f'v_add_u32 v{t0}, {cfg.A_BYTES + cfg.lds0}, v{t0}')
    a(f'v_lshrrev_b32 v{t2}, 1, v{vlane}'); a(f'v_and_b32 v{t2}, 1, v{t2}')
    for t in range(cfg.TN):
        a(f's_mul_i32 s40, {s_wn}, {2*cfg.TN}'); a(f's_add_u32 s40, s40, {2*t}')
        a(f'v_add_u32 v{t3}, s40, v{t2}')
        a(f'v_xor_b32 v{t3}, v{t3}, v{t1}')
        a(f'v_lshl_add_u32 v{vRW[t]}, v{t3}, 4, v{t0}')
    return vRA, vRW

class LgkmTracker:
    def __init__(s, a): s.a = a; s.p = []
    def issue(s, line, tag): s.a(line); s.p.append(tag)
    def need(s, tags):
        idx = -1
        for t in tags:
            if t in s.p: idx = max(idx, len(s.p)-1 - s.p[::-1].index(t))
        if idx < 0: return
        n = len(s.p)-idx-1
        n = min(n, 15)
        s.a(f's_waitcnt lgkmcnt({n})')
        s.p = s.p[len(s.p)-n:] if n else []
    def all(s):
        if s.p: s.a('s_waitcnt lgkmcnt(0)')
        s.p = []

def consumer_regs(cfg, R):
    F = {}
    F['W'] = [R.alloc(4*cfg.TN, 4), R.alloc(4*cfg.TN, 4)]
    if cfg.dbufA: F['A'] = [R.alloc(4*cfg.TM, 4), R.alloc(4*cfg.TM, 4)]
    else:
        x = R.alloc(4*cfg.TM, 4); F['A'] = [x, x]
    F['acc'] = R.alloc(4*cfg.TM*cfg.TN, 4)
    return F

def step_reads(cfg, F, vRA, vRW, step, par):
    sub, ks = step//2, step & 1
    out = []
    so = sub*cfg.SUB
    for t in range(cfg.TN):
        for j in range(2):
            r = F['W'][par] + 4*t + 2*j
            off = so + (32*ks + 4*j)*cfg.RB
            out.append((f'ds_read_b64_tr_b16 v[{r}:{r+1}], v{vRW[t]} offset:{off}', ('W', par, t, j), -1))
    for mt in range(cfg.TM):
        r = F['A'][par] + 4*mt
        e = -1 if cfg.dbufA else (mt+1)*cfg.TN - 1
        out.append((f'ds_read_b128 v[{r}:{r+3}], v{vRA[ks]} offset:{so + mt*2048}', ('A', par if cfg.dbufA else 0, mt), e))
    return out

def emit_step(a, cfg, T, F, par, reads, barrier_at=None, pre_barrier=None, extra=None, maxper=1):
    acc = F['acc']; pend = list(reads); idx = 0
    extra = list(extra or [])
    for mt in range(cfg.TM):
        for t in range(cfg.TN):
            if barrier_at is not None and idx == barrier_at:
                for x in extra: a(x)
                extra = []
                T.all()
                if pre_barrier:
                    for x in pre_barrier: a(x)
                a('s_barrier')
            T.need([('W', par, t, 0), ('W', par, t, 1), ('A', par if cfg.dbufA else 0, mt)])
            c = acc + 4*(mt*cfg.TN + t); w = F['W'][par] + 4*t; x = F['A'][par] + 4*mt
            if not cfg.nomfma:
                a(f'v_mfma_f32_16x16x32_bf16 v[{c}:{c+3}], v[{w}:{w+3}], v[{x}:{x+3}], v[{c}:{c+3}]')
            n = 0
            if barrier_at is None or idx >= barrier_at:
                k = 0
                while k < len(pend) and n < maxper:
                    if pend[k][2] <= idx:
                        T.issue(pend[k][0], pend[k][1]); pend.pop(k); n += 1
                    else: k += 1
            if n == 0 and extra: a(extra.pop(0))
            idx += 1
    for p in pend: T.issue(p[0], p[1])
    for x in extra: a(x)

def emit_consumer_loop(a, cfg, F, vRA, vRW, s_it, s_stage, s_delta, tag):
    NM = cfg.TM*cfg.TN
    T = LgkmTracker(a)
    a('s_barrier')
    if getattr(cfg,'stampfirst',False): a('s_memtime s[58:59]'); a('s_memrealtime s[52:53]'); a('s_waitcnt lgkmcnt(0)')
    first = step_reads(cfg, F, vRA, vRW, 0, 0)
    for ln, tg, e in first: T.issue(ln, tg)
    entry = list(T.p)
    T.all()
    a(f's_mov_b32 s{s_it}, 0'); a(f's_mov_b32 s{s_stage}, 0')
    a(f'L_cons_{tag}:')
    adv = [f'v_add_u32 v{r}, s{s_delta}, v{r}' for r in list(vRA)+list(vRW)]
    def body(last):
        for step in range(cfg.NSTEP):
            par = step & 1
            if step < cfg.NSTEP-1:
                extra = []
                if step == 0 and not last:
                    extra = [f's_add_u32 s{s_stage}, s{s_stage}, 1', f's_cmp_eq_u32 s{s_stage}, {cfg.S}',
                             f's_cselect_b32 s{s_delta}, s{S_NEG}, s{S_STG}', f's_cselect_b32 s{s_stage}, 0, s{s_stage}']
                    for x in extra: a(x)
                emit_step(a, cfg, T, F, par, step_reads(cfg, F, vRA, vRW, step+1, par ^ 1))
            elif last:
                emit_step(a, cfg, T, F, par, [])
            else:
                bat = NM//2 if not cfg.dbufA else max(1, NM//4)
                emit_step(a, cfg, T, F, par, step_reads(cfg, F, vRA, vRW, 0, par ^ 1), barrier_at=bat, extra=adv, maxper=2)
    T.p = []
    start_state = None
    class Dry:
        def __call__(self, s): pass
    a_real = T.a
    T.a = Dry(); a_save = a
    def run(emit, last):
        nonlocal a
        a = emit; T.a = emit
        body(last)
    dry = Dry()
    T.p = []
    run(dry, False)
    st = list(T.p)
    run(dry, False)
    assert st == T.p, (st, T.p)
    T.p = list(st)
    run(a_save, False)
    a = a_save
    a(f's_add_u32 s{s_it}, s{s_it}, 1')
    a(f's_cmp_lt_u32 s{s_it}, {cfg.NST-1}')
    a(f's_cbranch_scc1 L_cons_{tag}')
    T.p = list(st)
    run(a_save, True)
```

```python
import re
TRANS = ('v_exp_f32','v_log_f32','v_rcp_f32','v_rsq_f32','v_sqrt_f32','v_sin_f32','v_cos_f32','v_rcp_iflag_f32',
         'v_exp_f16','v_log_f16','v_rcp_f16','v_rsq_f16','v_sqrt_f16','v_sin_f16','v_cos_f16')
regre = re.compile(r'^(-|\|)?(neg\()?([vas])(\d+|\[(\d+):(\d+)\])')
def regs_of(tok):
    tok = tok.strip()
    t = tok.lstrip('-|')
    if t.startswith('vcc'):
        return {('s','vcc')}
    if t.startswith('exec'): return {('s','exec')}
    if t.startswith('m0'): return {('s','m0')}
    m = re.match(r'^([vas])\[(\d+):(\d+)\]', t)
    if m:
        k = m.group(1);
        return {(k if k=='s' else 'v' if k=='v' else 'a', i) for i in range(int(m.group(2)), int(m.group(3))+1)}
    m = re.match(r'^([vas])(\d+)\b', t)
    if m: return {(m.group(1), int(m.group(2)))}
    return set()

class I:
    pass

def parse(line):
    s = line.strip()
    if not s or s.startswith(';') or s.startswith('.') or s.endswith(':'): return None
    s = s.split(';')[0].strip()
    sp = s.split(None, 1)
    op = sp[0]; rest = sp[1] if len(sp) > 1 else ''
    ops = [x.strip() for x in rest.split(',')] if rest else []
    mods = ''
    if ops:
        last = ops[-1].split(None, 1)
        if len(last) > 1: ops[-1] = last[0]; mods = last[1]
    full = rest
    i = I(); i.op = op; i.text = s; i.ops = ops; i.mods = mods
    i.ws = 1
    i.w = set(); i.r = set(); i.kind = 'other'; i.A = set(); i.B = set(); i.C = set()
    base = re.sub(r'_(e32|e64|dpp|sdwa|e64_dpp)$', '', op)
    i.base = base
    R = [regs_of(o) for o in ops]
    if op == 's_nop':
        i.kind = 'nop'; i.ws = int(ops[0], 0) + 1
    elif op.startswith('v_mfma') or op.startswith('v_smfmac'):
        i.kind = 'mfma'; i.w = R[0]; i.A = R[1]; i.B = R[2]; i.C = R[3] if len(R) > 3 else set(); i.r = i.A | i.B | i.C
        i.passes = 8 if '32x32x16' in op or '32x32x8' in op else 4 if ('16x16x32' in op or '16x16x16' in op) else 16
    elif op.startswith('v_'):
        i.kind = 'valu'
        i.trans = base in TRANS
        i.dpp = ('row_' in full or 'quad_perm' in full or 'wave_' in full or op.endswith('_dpp') or 'row_newbcast' in full or 'row_bcast' in full)
        i.permlane = base.startswith('v_permlane')
        i.lane = base.startswith('v_readlane') or base.startswith('v_readfirstlane') or base.startswith('v_writelane')
        i.moved = ('dst_sel:WORD_1' in full or 'dst_sel:BYTE' in full or re.search(r'op_sel:\[[01],[01],(1\]|[01],1\])', full) is not None and not base.startswith('v_pk'))
        if base.startswith('v_permlane32_swap') or base.startswith('v_permlane16_swap'):
            i.w = R[0] | R[1]; i.r = R[0] | R[1]
        elif base.startswith('v_cmp'):
            i.w = R[0]; i.r = set().union(*R[1:]) if len(R) > 1 else set()
        elif re.match(r'v_(add|sub|subrev|addc|subb|subbrev)_co', base) or base.startswith('v_div_scale') or base.startswith('v_mad_u64') :
            i.w = R[0] | R[1]; i.r = set().union(*R[2:])
        else:
            i.w = R[0]; i.r = set().union(*R[1:]) if len(R) > 1 else set()
            if base.startswith('v_fmac') or base.startswith('v_mac') or base.startswith('v_dot2c') or base.startswith('v_pk_fmac') or base.startswith('v_writelane') or i.dpp or 'dst_unused:UNUSED_PRESERVE' in full or base.startswith('v_cvt_scalef') or 'op_sel' in full and not base.startswith('v_pk'):
                i.r |= R[0]
    elif op.startswith('ds_'):
        i.kind = 'ds'
        if op.startswith('ds_read') or op.startswith('ds_bpermute') or op.startswith('ds_permute') or op.startswith('ds_swizzle'):
            i.w = R[0]; i.r = set().union(*R[1:]) if len(R) > 1 else set()
        else:
            i.r = set().union(*R) if R else set()
            if '_rtn' in op: i.w = R[0]
    elif op.startswith('buffer_') or op.startswith('global_') or op.startswith('flat_'):
        i.kind = 'vmem'
        islds = re.search(r'\blds\b', full) is not None
        i.lds = islds
        allr = set().union(*R) if R else set()
        if ('load' in op) and not islds:
            i.w = R[0]; i.r = set().union(*R[1:]) if len(R) > 1 else set()
            if 'd16' in op: i.r |= R[0]
        elif 'atomic' in op and ('glc' in full or 'sc0' in full):
            i.w = R[0]; i.r = allr
        else:
            i.r = allr
        i.wide_store = ('store' in op) and (op.endswith('x3') or op.endswith('x4'))
        if i.wide_store:
            i.sdata = R[0] if op.startswith('buffer_') else R[1]
    elif op.startswith('s_'):
        i.kind = 'salu'
        if op.startswith('s_cmp') or op in ('s_waitcnt','s_barrier','s_endpgm','s_branch','s_setprio','s_sleep') or op.startswith('s_cbranch') or op.startswith('s_bitcmp'):
            i.r = set().union(*R) if R else set()
        else:
            i.w = R[0] if R else set(); i.r = set().union(*R[1:]) if len(R) > 1 else set()
            if 'saveexec' in op: i.w = i.w | {('s','exec')}
    return i

def isv(S): return {x for x in S if x[0] in 'va'}
def iss(S): return {x for x in S if x[0] == 's'}

def need(p, c):
    n = 0
    if p.kind == 'valu':
        pv = isv(p.w); ps = iss(p.w)
        if c.kind == 'mfma' and pv & c.r: n = max(n, 2)
        if c.kind == 'valu':
            if c.lane and (pv & c.r) and not c.base.startswith('v_writelane'): n = max(n, 1)
            if c.dpp and pv & c.r: n = max(n, 2)
            if c.permlane and pv & c.r: n = max(n, 2)
            if p.trans and not c.trans and pv & c.r: n = max(n, 1)
            if p.moved and pv & (c.r | c.w): n = max(n, 1)
            if ps & c.r:
                n = max(n, 4 if c.lane else 2)
        if c.kind == 'vmem' and ps & c.r: n = max(n, 5)
    elif p.kind == 'mfma':
        P = p.passes
        big = {2:5, 4:8, 8:12, 16:20}[P]
        if c.kind == 'mfma':
            if p.w & (c.A | c.B): n = max(n, big)
            if p.w & c.C:
                if c.C == p.w and c.passes == P: pass
                else: n = max(n, {2:4,4:6,8:10,16:18}[P])
            elif p.w & c.w: n = max(n, {2:4,4:6,8:10,16:18}[P])
        elif c.kind == 'valu':
            if p.w & (c.r | c.w): n = max(n, big)
            if p.C & c.w: n = max(n, {2:1,4:3,8:7,16:15}[P])
        elif c.kind in ('ds','vmem'):
            if p.w & (c.r | c.w): n = max(n, big)
    elif p.kind == 'vmem':
        if getattr(p,'wide_store',False):
            if c.kind == 'valu' and p.sdata & c.w: n = max(n, 2)
            elif c.kind != 'valu' and p.sdata & c.w: n = max(n, 1)
    elif p.kind == 'salu':
        if ('s','m0') in p.w and c.kind == 'vmem' and getattr(c,'lds',False): n = max(n, 1)
        if ('s','m0') in p.w and c.kind == 'ds' and 'addtid' in c.op: n = max(n, 1)
    return n

WIN = 22
def deficit(hist, c):
    d = 0; gap = 0
    for p in reversed(hist):
        if gap >= WIN: break
        n = need(p, c)
        if n > gap: d = max(d, n - gap)
        gap += p.ws
    return d

def nop_lines(n):
    out = []
    while n > 0:
        k = min(n, 8); out.append(f'    s_nop {k-1}'); n -= k
    return out

def fix(text, verbose=False):
    lines = text.split('\n')
    out = []; hist = []; ins = 0
    for ln in lines:
        s = ln.strip()
        if s.startswith('.amdhsa_kernel') or s.startswith('.section'): hist = []
        i = parse(ln)
        if i is None:
            out.append(ln); continue
        d = deficit(hist, i)
        if d:
            nl = nop_lines(d); out += nl; ins += d
            for x in nl: hist.append(parse(x))
            if verbose: print('hazard: +%d before %s' % (d, i.text))
        out.append(ln); hist.append(i)
        if i.op in ('s_endpgm', 's_branch'):
            hist = hist if i.op == 's_branch' else []
            if i.op == 's_branch': hist = []
        hist = hist[-40:]
    labels = {}
    for k, ln in enumerate(out):
        s = ln.strip()
        if s.endswith(':') and not s.startswith(';'): labels[s[:-1]] = k
    res = []
    parsed = [parse(l) for l in out]
    for k, ln in enumerate(out):
        i = parsed[k]
        if i is not None and (i.op.startswith('s_cbranch') or i.op == 's_branch') and i.ops and i.ops[0] in labels:
            h = []; j = k-1
            while j >= 0 and len(h) < 30:
                if parsed[j] is not None:
                    if parsed[j].op in ('s_endpgm','s_branch'): break
                    h.insert(0, parsed[j])
                j -= 1
            h2 = h + [i]
            t = labels[i.ops[0]] + 1; cnt = 0; dmax = 0; gapextra = 0
            hh = list(h2)
            while t < len(out) and cnt < WIN:
                c = parsed[t]
                if c is not None:
                    d = 0; gap = cnt
                    for p in reversed(h2):
                        if gap >= WIN: break
                        n = need(p, c)
                        if n > gap: d = max(d, n-gap)
                        gap += p.ws
                    dmax = max(dmax, d)
                    cnt += c.ws
                    if c.op in ('s_endpgm','s_branch'): break
                t += 1
            if dmax:
                res += nop_lines(dmax); ins += dmax
                if verbose: print('hazard(edge): +%d before %s' % (dmax, i.text))
        res.append(ln)
    return '\n'.join(res), ins

if __name__ == '__main__':
    import sys
    t, n = fix(open(sys.argv[1]).read(), True)
    print('inserted', n)
```

```python
from asm import *
from gemm16 import *
from fft import WS_XN, WS_H, WS_S, WS_DBG
M=2048; F=3584; Dm=1024

def silu4(a, c, t, pk=True):
    a(f'v_pk_mul_f32 v[{t}:{t+1}], v[{c}:{c+1}], s[46:47]')
    a(f'v_pk_mul_f32 v[{t+2}:{t+3}], v[{c+2}:{c+3}], s[46:47]')
    for j in range(4): a(f'v_exp_f32 v{t+j}, v{t+j}')
    a(f'v_pk_add_f32 v[{t}:{t+1}], v[{t}:{t+1}], s[48:49]')
    a(f'v_pk_add_f32 v[{t+2}:{t+3}], v[{t+2}:{t+3}], s[48:49]')
    for j in range(4): a(f'v_rcp_f32 v{t+j}, v{t+j}')
    a(f'v_pk_mul_f32 v[{t}:{t+1}], v[{c}:{c+1}], v[{t}:{t+1}]')
    a(f'v_pk_mul_f32 v[{t+2}:{t+3}], v[{c+2}:{c+3}], v[{t+2}:{t+3}]')

def silu_consts(a):
    a('s_mov_b32 s46, 0xbfb8aa3b'); a('s_mov_b32 s47, 0xbfb8aa3b'); a('s_mov_b32 s48, 1.0'); a('s_mov_b32 s49, 1.0')

def stamp_begin(a):
    a('s_memrealtime s[52:53]'); a('s_memtime s[58:59]')
def stamp_mid(a):
    a('s_memrealtime s[54:55]'); a('s_memtime s[60:61]')
def stamp_out(a, endlabel, ws_pair=18, slot=0):
    a('s_waitcnt vmcnt(0)')
    a('s_memrealtime s[56:57]')
    a('s_waitcnt lgkmcnt(0)')
    a('s_cmp_lg_u32 s20, 0'); a(f's_cbranch_scc1 {endlabel}')
    srd_off(a, 12, ws_pair, WS_DBG + slot*0x4000, 0x4000)
    a('v_mov_b32 v10, s52'); a('v_mov_b32 v11, s53'); a('v_mov_b32 v12, s54'); a('v_mov_b32 v13, s55')
    a('s_lshl_b32 s40, s2, 5')
    a('s_sub_u32 s60, s60, s58'); a('v_mov_b32 v18, s60'); a('v_mov_b32 v19, 0'); a('v_mov_b32 v17, s57'); a('v_mov_b32 v16, s56'); a('v_mov_b32 v20, s40')
    a('v_cmp_eq_u32 vcc, 0, v0'); a('s_and_saveexec_b64 s[62:63], vcc')
    a('buffer_store_dwordx4 v[10:13], v20, s[12:15], 0 offen')
    a('buffer_store_dwordx4 v[16:19], v20, s[12:15], 0 offen offset:16')

def loader_part(a, cfg, tag, tmp):
    a(f's_sub_u32 s35, s20, {cfg.NC}')
    Rl = Regs(5, 256)
    vA, vW = emit_loader_setup(a, cfg, Rl, 0, 's35', 's26', 's27', tmp)
    a('s_mov_b32 s28, 0'); a('s_mov_b32 s29, 0')
    a(f's_mul_i32 s30, s35, {cfg.PA*1024}')
    a(f's_mul_i32 s31, s35, {cfg.PW*1024}'); a(f's_add_u32 s31, s31, {cfg.A_BYTES}')
    emit_loader_loop(a, cfg, vA, vW, 4, 8, 28, 29, 30, 32, 33, 38, tag)
    a('s_endpgm')

def gen_g1(a, tag, cfg, stamp=False):
    a('s_load_dwordx2 s[16:17], s[0:1], 32')
    a('s_load_dwordx2 s[18:19], s[0:1], 64')
    if stamp: stamp_begin(a)
    a('v_lshrrev_b32 v1, 6, v0'); a('v_and_b32 v0, 63, v0'); a('v_readfirstlane_b32 s20, v1')
    a('s_and_b32 s21, s2, 7'); a('s_lshr_b32 s22, s2, 3')
    a('s_and_b32 s23, s21, 3'); a('s_lshl_b32 s23, s23, 2'); a('s_and_b32 s24, s22, 3'); a('s_add_u32 s23, s23, s24')
    a('s_lshr_b32 s24, s21, 2'); a('s_mul_i32 s24, s24, 7'); a('s_lshr_b32 s25, s22, 2'); a('s_add_u32 s24, s24, s25')
    a(f's_mul_i32 s26, s23, {cfg.BM*cfg.pitchA}')
    a(f's_mul_i32 s27, s24, {cfg.BN*2}')
    a('s_waitcnt lgkmcnt(0)')
    srd_off(a, 4, 18, WS_XN, M*Dm*2)
    srd(a, 8, 16, Dm*F*2)
    emit_consts(a, cfg)
    tmp = [1,2,3,4]
    a(f's_cmp_ge_u32 s20, {cfg.NC}')
    a(f's_cbranch_scc1 L_loader_{tag}')
    srd_off(a, 12, 18, WS_H, M*F*2)
    a(f's_and_b32 s37, s20, {cfg.WN-1}')
    a(f's_lshr_b32 s36, s20, {cfg.WN.bit_length()-1}')
    Rc = Regs(5, 256)
    vRA, vRW = emit_consumer_addr(a, cfg, Rc, 0, 's36', 's37', tmp)
    Fr = consumer_regs(cfg, Rc)
    acc = Fr['acc']
    for i in range(4*cfg.TM*cfg.TN): a(f'v_mov_b32 v{acc+i}, 0')
    emit_consumer_loop(a, cfg, Fr, vRA, vRW, 32, 33, 34, tag)
    if stamp: stamp_mid(a)
    vO = tmp[0]
    silu_consts(a)
    a(f'v_and_b32 v{tmp[1]}, 15, v0')
    a(f's_mul_i32 s40, s23, {cfg.BM}'); a(f's_mul_i32 s41, s36, {cfg.TM*16}'); a('s_add_u32 s40, s40, s41')
    a(f'v_add_u32 v{tmp[1]}, s40, v{tmp[1]}')
    a(f's_mov_b32 s41, {F*2}')
    a(f'v_mul_lo_u32 v{vO}, v{tmp[1]}, s41')
    a(f'v_lshrrev_b32 v{tmp[1]}, 4, v0'); a(f'v_and_b32 v{tmp[2]}, 1, v{tmp[1]}'); a(f'v_lshl_add_u32 v{vO}, v{tmp[2]}, 5, v{vO}')
    a(f'v_lshrrev_b32 v{tmp[1]}, 5, v0'); a(f'v_lshl_add_u32 v{vO}, v{tmp[1]}, 4, v{vO}')
    a(f's_mul_i32 s40, s37, {cfg.TN*32}'); a('s_add_u32 s40, s40, s27')
    a(f'v_add_u32 v{vO}, s40, v{vO}')
    st = Fr['W'][0]; k = 0; ndst = 3; tb = st + 4*ndst
    for mt in range(cfg.TM):
        for tp in range(cfg.TN//2):
            d = st + (k % ndst)*4; tt = tb + (k % 2)*8; k += 1
            c0 = acc + 4*(mt*cfg.TN + 2*tp); c1 = c0 + 4
            silu4(a, c0, tt); silu4(a, c1, tt+4)
            for j in range(4): a(f'v_cvt_pk_bf16_f32 v{d+j}, v{tt+2*j}, v{tt+2*j+1}')
            a(f'v_permlane16_swap_b32 v{d}, v{d+2}')
            a(f'v_permlane16_swap_b32 v{d+1}, v{d+3}')
            a(f's_mov_b32 s40, {mt*16*F*2}')
            a(f'buffer_store_dwordx4 v[{d}:{d+3}], v{vO}, s[12:15], s40 offen offset:{tp*64}')
    if stamp: stamp_out(a, f'L_g1end_{tag}', 18, 0)
    a.label(f'L_g1end_{tag}')
    a('s_endpgm')
    a.label(f'L_loader_{tag}')
    loader_part(a, cfg, tag, tmp)
    return Rc.p, cfg.LDS

def gen_g2(a, tag, cfg, stamp=False):
    a('s_load_dwordx4 s[16:19], s[0:1], 40')
    a('s_load_dwordx2 s[64:65], s[0:1], 64')
    a('s_load_dwordx2 s[66:67], s[0:1], 0')
    if stamp: stamp_begin(a)
    a('v_lshrrev_b32 v1, 6, v0'); a('v_and_b32 v0, 63, v0'); a('v_readfirstlane_b32 s20, v1')
    a('s_and_b32 s21, s2, 7'); a('s_lshr_b32 s22, s2, 3')
    a('s_and_b32 s23, s21, 3'); a('s_lshl_b32 s23, s23, 2'); a('s_and_b32 s24, s22, 3'); a('s_add_u32 s23, s23, s24')
    a('s_lshr_b32 s24, s21, 2'); a('s_lshl_b32 s24, s24, 3'); a('s_lshr_b32 s25, s22, 2'); a('s_add_u32 s24, s24, s25')
    a(f's_mul_i32 s26, s23, {cfg.BM*cfg.pitchA}')
    a(f's_mul_i32 s27, s24, {cfg.BN*2}')
    a('s_waitcnt lgkmcnt(0)')
    srd_off(a, 4, 64, WS_H, M*F*2)
    srd(a, 8, 16, F*Dm*2)
    emit_consts(a, cfg)
    tmp = [1,2,3,4]
    a(f's_cmp_ge_u32 s20, {cfg.NC}')
    a(f's_cbranch_scc1 L_loader_{tag}')
    srd(a, 12, 18, M*Dm*2)
    srd(a, 68, 66, M*Dm*2)
    srd_off(a, 72, 64, WS_S, M*Dm*2)
    a(f's_and_b32 s37, s20, {cfg.WN-1}')
    a(f's_lshr_b32 s36, s20, {cfg.WN.bit_length()-1}')
    Rc = Regs(5, 256)
    vO = Rc.alloc()
    a(f'v_and_b32 v{tmp[1]}, 15, v0')
    a(f's_mul_i32 s40, s23, {cfg.BM}'); a(f's_mul_i32 s41, s36, {cfg.TM*16}'); a('s_add_u32 s40, s40, s41')
    a(f'v_add_u32 v{tmp[1]}, s40, v{tmp[1]}')
    a(f'v_lshlrev_b32 v{vO}, 11, v{tmp[1]}')
    a(f'v_lshrrev_b32 v{tmp[1]}, 4, v0'); a(f'v_and_b32 v{tmp[2]}, 1, v{tmp[1]}'); a(f'v_lshl_add_u32 v{vO}, v{tmp[2]}, 5, v{vO}')
    a(f'v_lshrrev_b32 v{tmp[1]}, 5, v0'); a(f'v_lshl_add_u32 v{vO}, v{tmp[1]}, 4, v{vO}')
    a(f's_mul_i32 s40, s37, {cfg.TN*32}'); a('s_add_u32 s40, s40, s27')
    a(f'v_add_u32 v{vO}, s40, v{vO}')
    NP = cfg.TM*(cfg.TN//2)
    XR = Rc.alloc(4*NP, 4); SR = Rc.alloc(4*NP, 4)
    k = 0
    for mt in range(cfg.TM):
        for tp in range(cfg.TN//2):
            a(f's_mov_b32 s40, {mt*16*2048}')
            a(f'buffer_load_dwordx4 v[{XR+4*k}:{XR+4*k+3}], v{vO}, s[68:71], s40 offen offset:{tp*64}')
            a(f'buffer_load_dwordx4 v[{SR+4*k}:{SR+4*k+3}], v{vO}, s[72:75], s40 offen offset:{tp*64}')
            k += 1
    vRA, vRW = emit_consumer_addr(a, cfg, Rc, 0, 's36', 's37', tmp)
    Fr = consumer_regs(cfg, Rc)
    acc = Fr['acc']
    for i in range(4*cfg.TM*cfg.TN): a(f'v_mov_b32 v{acc+i}, 0')
    emit_consumer_loop(a, cfg, Fr, vRA, vRW, 32, 33, 34, tag)
    if stamp: stamp_mid(a)
    silu_consts(a)
    T = Rc.alloc(16, 4)
    a('s_waitcnt vmcnt(0)')
    k = 0
    for mt in range(cfg.TM):
        for tp in range(cfg.TN//2):
            x = XR + 4*k; s = SR + 4*k; k += 1
            a(f'v_permlane16_swap_b32 v{x}, v{x+2}'); a(f'v_permlane16_swap_b32 v{x+1}, v{x+3}')
            a(f'v_permlane16_swap_b32 v{s}, v{s+2}'); a(f'v_permlane16_swap_b32 v{s+1}, v{s+3}')
            for tt in range(2):
                c = acc + 4*(mt*cfg.TN + 2*tp + tt); g = T + 4*tt; u = T + 8
                silu4(a, c, g)
                for j in range(2):
                    a(f'v_lshlrev_b32 v{u+2*j}, 16, v{s+2*tt+j}'); a(f'v_and_b32 v{u+2*j+1}, 0xffff0000, v{s+2*tt+j}')
                    a(f'v_lshlrev_b32 v{u+4+2*j}, 16, v{x+2*tt+j}'); a(f'v_and_b32 v{u+4+2*j+1}, 0xffff0000, v{x+2*tt+j}')
                for j in range(2):
                    a(f'v_pk_fma_f32 v[{g+2*j}:{g+2*j+1}], v[{u+2*j}:{u+2*j+1}], v[{g+2*j}:{g+2*j+1}], v[{u+4+2*j}:{u+4+2*j+1}]')
                for j in range(2):
                    a(f'v_cvt_pk_bf16_f32 v{x+2*tt+j}, v{g+2*j}, v{g+2*j+1}')
            a(f'v_permlane16_swap_b32 v{x}, v{x+2}'); a(f'v_permlane16_swap_b32 v{x+1}, v{x+3}')
            a(f's_mov_b32 s40, {mt*16*2048}')
            a(f'buffer_store_dwordx4 v[{x}:{x+3}], v{vO}, s[12:15], s40 offen offset:{tp*64}')
    if stamp: stamp_out(a, f'L_g2end_{tag}', 64, 1)
    a.label(f'L_g2end_{tag}')
    a('s_endpgm')
    a.label(f'L_loader_{tag}')
    loader_part(a, cfg, tag, tmp)
    return Rc.p, cfg.LDS
```

```python
import sys
from asm import *
from fft import *
from roles_gemm import *
import hazard, fft
KN = 'recurrent_scan__spectral_gfnet__dense_activation_silu__prompt'
def wrap(name, body, nv, grid, block, lds):
    nv = (nv+7)//8*8
    assert (block//64+3)//4*nv <= 512, (name, block, nv)
    assert lds <= 163840
    return (f'; @launch kernel={name} grid=({grid},1,1) block=({block},1,1) lds={lds}', kernel_head(name)+body, kernel_desc(name, nv, 102, nv))
def build(stamp=False):
    ks = []
    fft.STAMP = stamp
    a = Asm(); name = 'prep_kernel'
    a('s_cmp_ge_u32 s2, 256'); a(f's_cbranch_scc1 L_end_{name}')
    a('s_cmp_ge_u32 s2, 128'); a(f's_cbranch_scc1 L_wp_{name}')
    nv1, l1 = gen_row_fwd(a, 'rf')
    a.label(f'L_wp_{name}')
    nv2, l2 = gen_wprep(a, 'wp')
    a.label(f'L_end_{name}'); a('s_endpgm')
    ks.append(wrap(name, a.text(), max(nv1,nv2), 256, 512, max(l1,l2,82944)))
    a = Asm(); name = 'g1col_kernel'
    a('s_cmp_ge_u32 s2, 256'); a(f's_cbranch_scc1 L_end_{name}')
    a('s_cmp_ge_u32 s2, 224'); a(f's_cbranch_scc1 L_col_role')
    nv1, l1 = gen_g1(a, 'g1', G16(S=3), stamp)
    a.label('L_col_role')
    a('s_sub_u32 s3, s2, 224')
    nv2, l2 = gen_col(a, 'c', 's3', 32)
    a.label(f'L_end_{name}'); a('s_endpgm')
    ks.append(wrap(name, a.text(), max(nv1,nv2), 256, 512, max(l1,l2)))
    a = Asm(); name = 'rinv_kernel'
    a('s_cmp_ge_u32 s2, 128'); a(f's_cbranch_scc1 L_end_{name}')
    nv, l = gen_row_inv(a, 'ri')
    a.label(f'L_end_{name}'); a('s_endpgm')
    ks.append(wrap(name, a.text(), nv, 128, 512, max(l,82944)))
    a = Asm(); name = KN + '_kernel'
    a('s_cmp_ge_u32 s2, 256'); a(f's_cbranch_scc1 L_end_g2k')
    cfg2 = G16(BM=128, BN=64, WM=2, WN=2, K=3584, S=3, NSUB=2, pitchA=7168, pitchW=2048, dbufA=True)
    nv, l = gen_g2(a, 'g2', cfg2, stamp)
    a.label(f'L_end_g2k'); a('s_endpgm')
    ks.append(wrap(name, a.text(), nv, 256, 512, l))
    hdr = open('cdna_kernels/' + KN + '.s.ref').read().split('; Override launch geometry')[0]
    txt = hdr + '\n'.join(k[0] for k in ks) + '\n.amdgcn_target "amdgcn-amd-amdhsa--gfx950"\n' + ''.join(k[1] for k in ks) + ''.join(k[2] for k in ks)
    txt, n = hazard.fix(txt, False)
    print('nops', n, 'bytes', len(txt))
    return txt
if __name__ == '__main__':
    open('full.s','w').write(build(False))
    open('full_st.s','w').write(build(True))
```

```python
from asm import *

WS_XN = 0x0000000
WS_H  = 0x0400000
WS_Z  = 0x1200000
WS_WP = 0x1680000
WS_Y  = 0x1B00000
WS_S  = 0x2000000
WS_DBG= 0x3000000
ZP = 8448
ZBYTES = 513*ZP
TILE_BYTES = 72*528 + 8*66 + 64
MF = 'v_mfma_f32_32x32x16_bf16'

STAMP = False
def st_begin(a):
    if STAMP: a('s_memrealtime s[90:91]')
def st_end(a, slot, tag, ws=18, wave='s20'):
    if not STAMP: return
    a('s_waitcnt vmcnt(0) lgkmcnt(0)')
    a('s_memrealtime s[92:93]'); a('s_waitcnt lgkmcnt(0)')
    a(f's_cmp_lg_u32 {wave}, 0'); a(f's_cbranch_scc1 L_stx_{tag}')
    srd_off(a, 12, ws, WS_DBG + slot*0x4000, 0x4000)
    a('v_mov_b32 v10, s90'); a('v_mov_b32 v11, s91'); a('v_mov_b32 v12, s92'); a('v_mov_b32 v13, s93')
    a('v_mov_b32 v14, s92'); a('v_mov_b32 v15, s93'); a('v_mov_b32 v16, 0'); a('v_mov_b32 v17, 0')
    a('s_lshl_b32 s40, s2, 5'); a('v_mov_b32 v20, s40')
    a('v_cmp_eq_u32 vcc, 0, v0'); a('s_and_saveexec_b64 s[62:63], vcc')
    a('buffer_store_dwordx4 v[10:13], v20, s[12:15], 0 offen')
    a('buffer_store_dwordx4 v[14:17], v20, s[12:15], 0 offen offset:16')
    a.label(f'L_stx_{tag}')

def allreduce(a, v, t):
    for r in (8, 4, 2, 1):
        a(f'v_add_f32_dpp v{v}, v{v}, v{v} row_ror:{r} row_mask:0xf bank_mask:0xf')
    a(f'v_mov_b32 v{t}, v{v}'); a(f'v_permlane16_swap_b32 v{v}, v{t}'); a(f'v_add_f32 v{v}, v{v}, v{t}')
    a(f'v_mov_b32 v{t}, v{v}'); a(f'v_permlane32_swap_b32 v{v}, v{t}'); a(f'v_add_f32 v{v}, v{v}, v{t}')

def allreduce2(a, v0, t0, v1, t1):
    for r in (8, 4, 2, 1):
        a(f'v_add_f32_dpp v{v0}, v{v0}, v{v0} row_ror:{r} row_mask:0xf bank_mask:0xf')
        a(f'v_add_f32_dpp v{v1}, v{v1}, v{v1} row_ror:{r} row_mask:0xf bank_mask:0xf')
    for op in ('v_permlane16_swap_b32', 'v_permlane32_swap_b32'):
        a(f'v_mov_b32 v{t0}, v{v0}'); a(f'v_mov_b32 v{t1}, v{v1}')
        a(f'{op} v{v0}, v{t0}'); a(f'{op} v{v1}, v{t1}')
        a(f'v_add_f32 v{v0}, v{v0}, v{t0}'); a(f'v_add_f32 v{v1}, v{v1}, v{t1}')

def f32(x):
    import struct
    return hex(struct.unpack('<I', struct.pack('<f', x))[0])

def emit_cs(a, dc, ds, fE, eadd, fF, phase_reg, t):
    if eadd: a(f'v_add_f32 v{t}, {f32(float(eadd))}, v{fE}'); src = t
    else: src = fE
    if phase_reg is None: a(f'v_mul_f32 v{t}, v{src}, v{fF}')
    else: a(f'v_fma_f32 v{t}, v{src}, v{fF}, {phase_reg}')
    a(f'v_fract_f32 v{t}, v{t}')
    if ds is not None: a(f'v_sin_f32 v{ds}, v{t}')
    if dc is not None: a(f'v_cos_f32 v{dc}, v{t}')

def emit_img(a, dst, fE, e0, fF, phase, t):
    for jj in range(4):
        emit_cs(a, t+1, t+2, fE, e0+jj, fF, phase, t)
        a('s_nop 0')
        a(f'v_cvt_pk_bf16_f32 v{dst+jj}, v{t+1}, v{t+2}')

def cmul_pack(a, dst, re, im, cs, sn, t, n=16):
    for r in range(0, n, 2):
        u = t + 4*((r >> 1) & 1)
        a(f'v_pk_mul_f32 v[{u}:{u+1}], v[{re+r}:{re+r+1}], v[{cs+r}:{cs+r+1}]')
        a(f'v_pk_mul_f32 v[{u+2}:{u+3}], v[{im+r}:{im+r+1}], v[{cs+r}:{cs+r+1}]')
        a(f'v_pk_fma_f32 v[{u}:{u+1}], v[{im+r}:{im+r+1}], v[{sn+r}:{sn+r+1}], v[{u}:{u+1}]')
        a(f'v_pk_fma_f32 v[{u+2}:{u+3}], v[{re+r}:{re+r+1}], v[{sn+r}:{sn+r+1}], v[{u+2}:{u+3}] neg_lo:[1,0,0] neg_hi:[1,0,0]')
        a(f'v_cvt_pk_bf16_f32 v{dst+r}, v{u}, v{u+2}')
        a(f'v_cvt_pk_bf16_f32 v{dst+r+1}, v{u+1}, v{u+3}')

def tile_store_phase(a, vlane, s_w, srd_out, s_pos0, t, tile0, tag):
    vA, vG = t, t+1
    d = t+4
    a(f'v_lshrrev_b32 v{t+2}, 2, v{vlane}'); a(f'v_and_b32 v{t+3}, 3, v{vlane}')
    a(f'v_mul_u32_u24 v{vA}, 72, v{t+2}')
    a(f'v_lshrrev_b32 v{vG}, 3, v{t+2}'); a(f'v_lshl_add_u32 v{vA}, v{vG}, 3, v{vA}')
    a(f'v_lshl_add_u32 v{vA}, v{t+3}, 4, v{vA}')
    a(f's_mul_i32 s40, {s_w}, 1168'); a(f's_add_u32 s40, s40, {tile0}')
    a(f'v_add_u32 v{vA}, s40, v{vA}')
    a(f's_lshl_b32 s40, {s_w}, 4'); a(f'v_add_u32 v{vG}, s40, v{t+2}')
    a(f's_mov_b32 s41, {ZP}'); a(f'v_mul_lo_u32 v{vG}, v{vG}, s41'); a(f'v_lshl_add_u32 v{vG}, v{t+3}, 4, v{vG}')
    for it in range(4):
        a(f'ds_read_b64 v[{d+4*it}:{d+4*it+1}], v{vA} offset:{9344*it}')
        a(f'ds_read_b64 v[{d+4*it+2}:{d+4*it+3}], v{vA} offset:{9344*it+8}')
    a(f's_cmp_lg_u32 {s_w}, 0'); a(f's_cbranch_scc1 L_no5_{tag}')
    a(f'ds_read_b64 v[{d+16}:{d+17}], v{vA} offset:{9344*4}')
    a(f'ds_read_b64 v[{d+18}:{d+19}], v{vA} offset:{9344*4+8}')
    a(f's_add_u32 s41, s{s_pos0}, {4*128*ZP}')
    a('s_waitcnt lgkmcnt(0)')
    a(f'buffer_store_dwordx4 v[{d+16}:{d+19}], v{vG}, s[{srd_out}:{srd_out+3}], s41 offen')
    a.label(f'L_no5_{tag}')
    for it in range(4):
        a(f's_add_u32 s41, s{s_pos0}, {it*128*ZP}')
        a(f's_waitcnt lgkmcnt({2*(3-it)})')
        a(f'buffer_store_dwordx4 v[{d+4*it}:{d+4*it+3}], v{vG}, s[{srd_out}:{srd_out+3}], s41 offen')

def gen_row_fwd(a, tag, wg='s2'):
    ROWB = (TILE_BYTES + 255)//256*256
    st_begin(a)
    a('s_load_dwordx2 s[16:17], s[0:1], 0')
    a('s_load_dwordx2 s[18:19], s[0:1], 64')
    a('v_lshrrev_b32 v1, 6, v0'); a('v_and_b32 v0, 63, v0'); a('v_readfirstlane_b32 s20, v1')
    a(f's_and_b32 s21, {wg}, 7'); a(f's_lshr_b32 s22, {wg}, 3')
    a('s_lshr_b32 s23, s22, 1')
    a('s_and_b32 s24, s22, 1'); a('s_lshl_b32 s25, s21, 1'); a('s_add_u32 s24, s24, s25')
    a('s_lshl_b32 s25, s23, 2'); a('s_and_b32 s26, s20, 3'); a('s_add_u32 s25, s25, s26'); a('s_lshl_b32 s25, s25, 6')
    a('s_lshl_b32 s26, s24, 2'); a('s_add_u32 s25, s25, s26'); a('s_lshr_b32 s26, s20, 2'); a('s_add_u32 s25, s25, s26')
    a('s_lshl_b32 s26, s25, 11'); a('s_add_u32 s27, s26, 4096')
    a('s_lshr_b32 s28, s24, 3'); a('s_lshl_b32 s28, s28, 2'); a('s_lshr_b32 s29, s23, 1'); a('s_add_u32 s28, s28, s29'); a('s_lshl_b32 s28, s28, 6')
    a('s_and_b32 s29, s23, 1'); a('s_lshl_b32 s29, s29, 5'); a('s_add_u32 s28, s28, s29')
    a('s_and_b32 s29, s24, 7'); a('s_lshl_b32 s29, s29, 2'); a('s_add_u32 s28, s28, s29'); a('s_lshl_b32 s28, s28, 4')
    a('v_lshlrev_b32 v1, 5, v0')
    a('s_waitcnt lgkmcnt(0)')
    srd(a, 4, 16, 2048*2048)
    R = Regs(8, 256)
    X = [R.alloc(8, 4), R.alloc(8, 4)]
    a(f'buffer_load_dwordx4 v[{X[0]}:{X[0]+3}], v1, s[4:7], s26 offen')
    a(f'buffer_load_dwordx4 v[{X[0]+4}:{X[0]+7}], v1, s[4:7], s26 offen offset:16')
    a(f'buffer_load_dwordx4 v[{X[1]}:{X[1]+3}], v1, s[4:7], s27 offen')
    a(f'buffer_load_dwordx4 v[{X[1]+4}:{X[1]+7}], v1, s[4:7], s27 offen offset:16')
    srd_off(a, 8, 18, WS_XN, 2048*2048)
    srd_off(a, 12, 18, WS_Z, ZBYTES)
    B1 = R.alloc(16, 4); CS = R.alloc(16, 2); SN = R.alloc(16, 2); A2 = R.alloc(16, 4)
    T = R.alloc(8, 4)
    fC32, fC1k, fH, fD, fPh = 2, 3, 4, 5, 6
    a('v_and_b32 v7, 31, v0'); a('v_cvt_f32_u32 v7, v7')
    a(f'v_mul_f32 v{fC32}, {f32(1/32)}, v7'); a(f'v_mul_f32 v{fC1k}, {f32(1/1024)}, v7')
    a(f'v_lshrrev_b32 v{fH}, 5, v0'); a(f'v_cvt_f32_u32 v{fH}, v{fH}')
    a(f'v_mul_f32 v7, {f32(8.0)}, v{fH}')
    for q in range(2):
        for jj in range(4):
            for e in range(2):
                aa = 16*q + 2*jj + e
                a(f'v_add_f32 v{T}, {f32(float(aa))}, v7')
                a(f'v_mul_f32 v{T}, v{T}, v{fC32}'); a(f'v_fract_f32 v{T}, v{T}')
                a(f'v_cos_f32 v{T+1+e}, v{T}'); a(f'v_sin_f32 v{T+3+e}, v{T}')
            a('s_nop 0')
            a(f'v_cvt_pk_bf16_f32 v{B1+4*q+jj}, v{T+1}, v{T+2}')
            a(f'v_cvt_pk_bf16_f32 v{B1+8+4*q+jj}, -v{T+3}, -v{T+4}')
    a(f'v_mul_f32 v7, {f32(4.0)}, v{fH}')
    for r in range(16):
        emit_cs(a, CS+r, SN+r, 7, (r & 3) + 8*(r >> 2), fC1k, None, T)
    a(f'v_and_b32 v{fD}, 31, v0'); a(f'v_lshrrev_b32 v{fD}, 1, v{fD}'); a(f'v_cvt_f32_u32 v{fD}, v{fD}'); a(f'v_mul_f32 v{fD}, {f32(1/32)}, v{fD}')
    a(f'v_and_b32 v{fPh}, 1, v0'); a(f'v_cvt_f32_u32 v{fPh}, v{fPh}'); a(f'v_mul_f32 v{fPh}, {f32(0.25)}, v{fPh}')
    for q in range(4): emit_img(a, A2+4*q, 7, 8*q, fD, f'v{fPh}', T)
    vRB = 2
    vTR, vTW = 3, 4
    a(f's_lshl_b32 s30, s20, 12'); a(f's_add_u32 s30, s30, {ROWB}')
    a(f'v_add_u32 v{vRB}, s30, v1')
    a(f'v_lshrrev_b32 v5, 5, v0'); a(f'v_lshlrev_b32 v5, 3, v5'); a(f'v_lshrrev_b32 v6, 2, v0'); a(f'v_and_b32 v6, 3, v6'); a('v_add_u32 v5, v5, v6')
    a('v_lshlrev_b32 v5, 6, v5'); a('v_lshrrev_b32 v6, 4, v0'); a('v_and_b32 v6, 1, v6'); a('v_lshl_add_u32 v5, v6, 5, v5')
    a('v_and_b32 v6, 3, v0'); a('v_lshl_add_u32 v5, v6, 3, v5'); a(f'v_add_u32 v{vTR}, s30, v5')
    a('v_and_b32 v5, 31, v0'); a('v_lshrrev_b32 v6, 5, v0'); a('v_lshl_add_u32 v5, v6, 6, v5')
    a('v_lshrrev_b32 v6, 3, v5'); a('v_mul_u32_u24 v5, 72, v5'); a('v_lshl_add_u32 v5, v6, 3, v5')
    a('s_lshl_b32 s31, s20, 2'); a(f'v_add_u32 v{vTW}, s31, v5')
    XF = [R.alloc(16, 2), R.alloc(16, 2)]
    S = [R.alloc(4, 2), R.alloc(4, 2)]
    a('s_waitcnt vmcnt(0)')
    for z in range(2):
        for j in range(8):
            a(f'v_lshlrev_b32 v{XF[z]+2*j}, 16, v{X[z]+j}')
            a(f'v_and_b32 v{XF[z]+2*j+1}, 0xffff0000, v{X[z]+j}')
    for z in range(2):
        a(f'v_pk_add_f32 v[{S[z]}:{S[z]+1}], v[{XF[z]}:{XF[z]+1}], v[{XF[z]+2}:{XF[z]+3}]')
    for j in range(2, 8):
        for z in range(2):
            a(f'v_pk_add_f32 v[{S[z]}:{S[z]+1}], v[{S[z]}:{S[z]+1}], v[{XF[z]+2*j}:{XF[z]+2*j+1}]')
    for z in range(2): a(f'v_add_f32 v{S[z]}, v{S[z]}, v{S[z]+1}')
    allreduce2(a, S[0], S[0]+2, S[1], S[1]+2)
    M = [R.alloc(2, 2), R.alloc(2, 2)]
    for z in range(2):
        a(f'v_mul_f32 v{M[z]}, {f32(-1/1024)}, v{S[z]}'); a(f'v_mov_b32 v{M[z]+1}, v{M[z]}')
    for z in range(2):
        for j in range(8):
            a(f'v_pk_add_f32 v[{T+2*z}:{T+2*z+1}], v[{XF[z]+2*j}:{XF[z]+2*j+1}], v[{M[z]}:{M[z]+1}]')
            if j == 0: a(f'v_pk_mul_f32 v[{S[z]}:{S[z]+1}], v[{T+2*z}:{T+2*z+1}], v[{T+2*z}:{T+2*z+1}]')
            else: a(f'v_pk_fma_f32 v[{S[z]}:{S[z]+1}], v[{T+2*z}:{T+2*z+1}], v[{T+2*z}:{T+2*z+1}], v[{S[z]}:{S[z]+1}]')
    for z in range(2): a(f'v_add_f32 v{S[z]}, v{S[z]}, v{S[z]+1}')
    allreduce2(a, S[0], S[0]+2, S[1], S[1]+2)
    for z in range(2):
        s = S[z]
        a(f'v_mul_f32 v{s}, {f32(1/1024)}, v{s}')
        a(f'v_cvt_pk_bf16_f32 v{s}, v{s}, v{s}'); a(f'v_lshlrev_b32 v{s}, 16, v{s}')
        a(f'v_add_f32 v{s}, {f32(1e-5)}, v{s}')
        a(f'v_cvt_pk_bf16_f32 v{s}, v{s}, v{s}'); a(f'v_lshlrev_b32 v{s}, 16, v{s}')
        a(f'v_sqrt_f32 v{s}, v{s}'); a('s_nop 0')
        a(f'v_cvt_pk_bf16_f32 v{s}, v{s}, v{s}'); a(f'v_lshlrev_b32 v{s}, 16, v{s}')
        a(f'v_rcp_f32 v{s}, v{s}'); a('s_nop 0'); a(f'v_mov_b32 v{s+1}, v{s}')
        m = M[z]
        a(f'v_cvt_pk_bf16_f32 v{m}, v{m}, v{m}'); a(f'v_lshlrev_b32 v{m}, 16, v{m}'); a(f'v_mov_b32 v{m+1}, v{m}')
    for z in range(2):
        for j in range(8):
            u = T + 2*((j & 1) + 2*z)
            a(f'v_pk_add_f32 v[{u}:{u+1}], v[{XF[z]+2*j}:{XF[z]+2*j+1}], v[{M[z]}:{M[z]+1}]')
            a(f'v_pk_mul_f32 v[{u}:{u+1}], v[{u}:{u+1}], v[{S[z]}:{S[z]+1}]')
            a(f'v_cvt_pk_bf16_f32 v{X[z]+j}, v{u}, v{u+1}')
    for z in range(2):
        so = 's26' if z == 0 else 's27'
        a(f'ds_write_b128 v{vRB}, v[{X[z]}:{X[z]+3}] offset:{2048*z}')
        a(f'ds_write_b128 v{vRB}, v[{X[z]+4}:{X[z]+7}] offset:{2048*z+16}')
        a(f'buffer_store_dwordx4 v[{X[z]}:{X[z]+3}], v1, s[8:11], {so} offen')
        a(f'buffer_store_dwordx4 v[{X[z]+4}:{X[z]+7}], v1, s[8:11], {so} offen offset:16')
    AD = [R.alloc(8, 4), R.alloc(8, 4)]
    D1 = [[R.alloc(16, 4), R.alloc(16, 4)], [R.alloc(16, 4), R.alloc(16, 4)]]
    a('s_waitcnt lgkmcnt(0)')
    for z in range(2):
        for q in range(2):
            for jj in range(2):
                a(f'ds_read_b64_tr_b16 v[{AD[z]+4*q+2*jj}:{AD[z]+4*q+2*jj+1}], v{vTR} offset:{2048*z + 1024*q + 256*jj}')
    for z in range(2):
        a(f's_waitcnt lgkmcnt({4*(1-z)})')
        for sg in range(2):
            d = D1[z][sg]
            a(f'{MF} v[{d}:{d+15}], v[{AD[z]}:{AD[z]+3}], v[{B1+8*sg}:{B1+8*sg+3}], 0')
            a(f'{MF} v[{d}:{d+15}], v[{AD[z]+4}:{AD[z]+7}], v[{B1+8*sg+4}:{B1+8*sg+7}], v[{d}:{d+15}]')
    P = XF
    ALT = S
    for z in range(2):
        d = D1[z][0]
        a(f'v_pk_add_f32 v[{ALT[z]}:{ALT[z]+1}], v[{d}:{d+1}], v[{d+2}:{d+3}]')
        for j in range(2, 8): a(f'v_pk_add_f32 v[{ALT[z]}:{ALT[z]+1}], v[{ALT[z]}:{ALT[z]+1}], v[{d+2*j}:{d+2*j+1}]')
        a(f'v_sub_f32 v{ALT[z]}, v{ALT[z]}, v{ALT[z]+1}')
        a(f'v_mov_b32 v{ALT[z]+1}, v{ALT[z]}'); a(f'v_permlane32_swap_b32 v{ALT[z]}, v{ALT[z]+1}'); a(f'v_add_f32 v{ALT[z]}, v{ALT[z]}, v{ALT[z]+1}')
        a(f'v_mov_b32 v{ALT[z]+1}, 0'); a(f'v_cvt_pk_bf16_f32 v{ALT[z]}, v{ALT[z]}, v{ALT[z]+1}')
        cmul_pack(a, P[z], D1[z][0], D1[z][1], CS, SN, T)
        d2 = D1[z][0]
        for q in range(4):
            a(f'{MF} v[{d2}:{d2+15}], v[{A2+4*q}:{A2+4*q+3}], v[{P[z]+4*q}:{P[z]+4*q+3}], ' + ('0' if q == 0 else f'v[{d2}:{d2+15}]'))
    for z in range(2):
        d2 = D1[z][0]; o = D1[z][1]
        for u in range(8):
            a(f'v_cvt_pk_bf16_f32 v{o+u}, v{d2+2*u}, v{d2+2*u+1}')
            du = 32*(u & 1) + 128*(u >> 1)
            a(f'ds_write_b32 v{vTW}, v{o+u} offset:{73*du + 32*z}')
    a('s_mov_b64 exec, 1')
    a(f'v_mov_b32 v5, s31')
    for z in range(2): a(f'ds_write_b32 v5, v{ALT[z]} offset:{72*512 + 8*64 + 32*z}')
    a('s_mov_b64 exec, -1')
    a('s_waitcnt lgkmcnt(0)'); a('s_barrier')
    tile_store_phase(a, 0, 's20', 12, 28, D1[0][0], 0, tag)
    st_end(a, 2, tag)
    a('s_endpgm')
    return R.p, ROWB + 8*4096

def gen_wprep(a, tag, wg='s2', prefetch_w1=True):
    st_begin(a)
    a('s_load_dwordx4 s[16:19], s[0:1], 8')
    a('s_load_dwordx2 s[32:33], s[0:1], 32')
    a('s_load_dwordx2 s[34:35], s[0:1], 64')
    a('v_lshrrev_b32 v1, 6, v0'); a('v_mov_b32 v2, v0'); a('v_and_b32 v0, 63, v0'); a('v_readfirstlane_b32 s20, v1')
    a(f's_and_b32 s21, {wg}, 7'); a(f's_lshr_b32 s22, {wg}, 3'); a('s_and_b32 s22, s22, 15')
    a('s_and_b32 s24, s21, 3'); a('s_lshl_b32 s24, s24, 1'); a('s_and_b32 s25, s22, 1'); a('s_add_u32 s24, s24, s25')
    a('s_lshr_b32 s23, s21, 2'); a('s_lshl_b32 s23, s23, 3'); a('s_lshr_b32 s25, s22, 1'); a('s_add_u32 s23, s23, s25')
    a('s_lshl_b32 s25, s23, 2'); a('s_and_b32 s26, s20, 3'); a('s_add_u32 s25, s25, s26'); a('s_lshl_b32 s25, s25, 5')
    a('s_lshl_b32 s26, s24, 2'); a('s_add_u32 s25, s25, s26'); a('s_lshr_b32 s26, s20, 2'); a('s_add_u32 s25, s25, s26')
    a('s_mul_i32 s26, s25, 1026'); a('s_add_u32 s27, s26, 2052')
    a('s_lshr_b32 s28, s23, 1'); a('s_lshl_b32 s28, s28, 6'); a('s_and_b32 s29, s23, 1'); a('s_lshl_b32 s29, s29, 5'); a('s_add_u32 s28, s28, s29')
    a('s_lshl_b32 s29, s24, 2'); a('s_add_u32 s28, s28, s29'); a('s_lshl_b32 s28, s28, 4')
    a('v_lshlrev_b32 v1, 4, v0'); a('v_mov_b32 v3, 1024')
    a('s_waitcnt lgkmcnt(0)')
    srd(a, 4, 16, 2048*1026); srd(a, 8, 18, 2048*1026)
    R = Regs(8, 256)
    WR = [R.alloc(4, 4), R.alloc(4, 4)]; WI = [R.alloc(4, 4), R.alloc(4, 4)]; NY = [R.alloc(2), R.alloc(2)]
    for z, so in enumerate(('s26', 's27')):
        a(f'buffer_load_dwordx4 v[{WR[z]}:{WR[z]+3}], v1, s[4:7], {so} offen')
        a(f'buffer_load_dwordx4 v[{WI[z]}:{WI[z]+3}], v1, s[8:11], {so} offen')
        a(f'buffer_load_ushort v{NY[z]}, v3, s[4:7], {so} offen')
        a(f'buffer_load_ushort v{NY[z]+1}, v3, s[8:11], {so} offen')
    srd_off(a, 12, 34, WS_WP, ZBYTES)
    npf = 0
    if prefetch_w1:
        srd(a, 36, 32, 1024*7168)
        PF = R.alloc(28, 4)
        a(f's_and_b32 s40, {wg}, 127'); a('s_mul_i32 s40, s40, 57344'); a('v_lshlrev_b32 v2, 4, v2')
        for i in range(7):
            a(f'buffer_load_dwordx4 v[{PF+4*i}:{PF+4*i+3}], v2, s[36:39], s40 offen')
            a('s_add_u32 s40, s40, 8192')
        npf = 7
    O = R.alloc(16, 4)
    a('v_mul_u32_u24 v4, 584, v0'); a('s_lshl_b32 s31, s20, 2'); a('v_add_u32 v4, s31, v4')
    a('s_mov_b32 s29, 0x05040100'); a('s_mov_b32 s30, 0x07060302')
    a(f's_waitcnt vmcnt({npf})')
    for z in range(2):
        for j in range(4):
            a(f'v_perm_b32 v{O+8*z+2*j}, v{WI[z]+j}, v{WR[z]+j}, s29')
            a(f'v_perm_b32 v{O+8*z+2*j+1}, v{WI[z]+j}, v{WR[z]+j}, s30')
        for e in range(8):
            a(f'ds_write_b32 v4, v{O+8*z+e} offset:{72*e + 32*z}')
    for z in range(2): a(f'v_lshl_or_b32 v{NY[z]}, v{NY[z]+1}, 16, v{NY[z]}')
    a('s_mov_b64 exec, 1')
    a('v_mov_b32 v5, s31')
    for z in range(2): a(f'ds_write_b32 v5, v{NY[z]} offset:{72*512 + 8*64 + 32*z}')
    a('s_mov_b64 exec, -1')
    a('s_waitcnt lgkmcnt(0)'); a('s_barrier')
    t = R.alloc(24, 4)
    tile_store_phase(a, 0, 's20', 12, 28, t, 0, tag)
    st_end(a, 2, tag, ws=34)
    a('s_endpgm')
    return R.p, TILE_BYTES


COL_F32 = 0
COL_F64 = 8192
COL_TWB = 40960
COL_TWF = 0
COL_TWI = 16384
COL_LDS = COL_TWB + 32768

def gen_col(a, tag, s_idx, nwg=32, extra_prefetch=None):
    NWV = 8*nwg
    st_begin(a)
    a('s_load_dwordx2 s[18:19], s[0:1], 64')
    a('v_lshrrev_b32 v1, 6, v0'); a('v_and_b32 v0, 63, v0'); a('v_readfirstlane_b32 s20, v1')
    a(f's_lshl_b32 s21, {s_idx}, 3'); a('s_add_u32 s21, s21, s20')
    a('v_lshlrev_b32 v1, 4, v0')
    a('s_waitcnt lgkmcnt(0)')
    srd_off(a, 4, 18, WS_Z, ZBYTES); srd_off(a, 8, 18, WS_WP, ZBYTES); srd_off(a, 12, 18, WS_Y, ZBYTES)
    R = Regs(8, 256)
    ZA = R.alloc(32, 4); WC = R.alloc(32, 4)
    def load_col(dst, srd_, s_col):
        a(f's_mul_i32 s40, {s_col}, {ZP}')
        for g in range(8):
            if g == 4: a('s_add_u32 s40, s40, 4096')
            a(f'buffer_load_dwordx4 v[{dst+4*g}:{dst+4*g+3}], v1, s[{srd_}:{srd_+3}], s40 offen offset:{1024*(g & 3)}')
    load_col(ZA, 4, 's21'); load_col(WC, 8, 's21')
    F32 = R.alloc(32, 4)
    T = R.alloc(16, 4); TWS = R.alloc(8, 4); FB0 = R.alloc(16, 4)
    fF, fH4, fPh = 2, 3, 4
    a('v_and_b32 v5, 31, v0'); a('v_cvt_f32_u32 v5, v5')
    a(f'v_lshrrev_b32 v{fH4}, 5, v0'); a(f'v_cvt_f32_u32 v{fH4}, v{fH4}'); a(f'v_mul_f32 v{fH4}, {f32(4.0)}, v{fH4}')
    a('s_and_b32 s22, s20, 1'); a('s_lshr_b32 s23, s20, 1'); a('s_and_b32 s23, s23, 1'); a('s_lshr_b32 s24, s20, 2')
    a('s_lshl_b32 s25, s23, 5'); a('v_cvt_f32_u32 v6, s25'); a('v_add_f32 v6, v6, v5'); a(f'v_mul_f32 v{fF}, {f32(1/64)}, v6')
    a('v_cvt_f32_u32 v6, s22'); a(f'v_mul_f32 v{fPh}, {f32(0.25)}, v6')
    a('s_lshl_b32 s25, s24, 5'); a('v_cvt_f32_u32 v6, s25'); a(f'v_add_f32 v6, v6, v{fH4}')
    a('s_lshl_b32 s25, s22, 1'); a('s_add_u32 s25, s25, s23'); a('s_lshl_b32 s25, s25, 3'); a('s_lshl_b32 s26, s24, 2'); a('s_add_u32 s25, s25, s26'); a('s_lshl_b32 s25, s25, 10')
    a('v_add_u32 v7, s25, v1')
    for q in range(4):
        emit_img(a, T+4+4*(q & 1), 6, 8*q, fF, f'v{fPh}', T)
        a(f'ds_write_b128 v7, v[{T+4+4*(q & 1)}:{T+7+4*(q & 1)}] offset:{COL_F64 + 1024*q}')
    a(f'v_mul_f32 v{fF}, {f32(1/32)}, v5')
    a('s_lshr_b32 s25, s20, 1'); a('s_lshl_b32 s26, s25, 3'); a('v_cvt_f32_u32 v6, s26'); a(f'v_add_f32 v6, v6, v{fH4}')
    a('s_lshl_b32 s26, s22, 2'); a('s_add_u32 s26, s26, s25'); a('s_lshl_b32 s26, s26, 10'); a('v_add_u32 v7, s26, v1')
    emit_img(a, T+4, 6, 0, fF, f'v{fPh}', T)
    a(f'ds_write_b128 v7, v[{T+4}:{T+7}] offset:{COL_F32}')
    a('s_and_b32 s25, s20, 3'); a('s_lshl_b32 s26, s25, 3'); a('v_cvt_f32_u32 v6, s26'); a(f'v_add_f32 v6, v6, v{fH4}')
    a('s_lshr_b32 s27, s20, 2'); a('s_lshl_b32 s28, s27, 5'); a('v_cvt_f32_u32 v7, s28')
    a('s_lshl_b32 s28, s27, 3'); a('s_lshl_b32 s29, s25, 1'); a('s_add_u32 s28, s28, s29'); a('s_lshl_b32 s28, s28, 10'); a(f's_add_u32 s28, s28, {COL_TWB}'); a('v_add_u32 v2, s28, v1')
    a(f'v_add_f32 v4, v6, v7'); a(f'v_mul_f32 v{T+15}, {f32(1/2048)}, v5')
    for pr in range(2):
        for e in range(2):
            emit_cs(a, T+4+e, T+6+e, 4, 2*pr+e, T+15, None, T)
        a('s_nop 0')
        a(f'ds_write_b128 v2, v[{T+4}:{T+7}] offset:{COL_TWF + 1024*pr}')
        a('s_nop 1')
    a(f'v_add_f32 v4, v5, v7'); a(f'v_mul_f32 v{T+15}, {f32(1/2048)}, v4')
    for pr in range(2):
        for e in range(2):
            emit_cs(a, T+8+e, T+10+e, 6, 2*pr+e, T+15, None, T)
        a('s_nop 0')
        for e in range(4): a(f'v_mul_f32 v{T+8+e}, {f32(2.0**-20)}, v{T+8+e}')
        a(f'ds_write_b128 v2, v[{T+8}:{T+11}] offset:{COL_TWI + 1024*pr}')
        a('s_nop 1')
    a(f'v_add_u32 v2, {COL_TWB}, v1')
    a('s_waitcnt lgkmcnt(0)'); a('s_barrier')
    for i in range(8): a(f'ds_read_b128 v[{F32+4*i}:{F32+4*i+3}], v1 offset:{COL_F32 + 1024*i}')
    D = [[R.alloc(16, 4), R.alloc(16, 4)], [R.alloc(16, 4), R.alloc(16, 4)]]
    P = R.alloc(32, 4)
    NTW = 4
    def twiddle(dst, base):
        seq = [(blk, pr) for blk in range(2) for pr in range(8)]
        slot = lambda n: T + 8 + 4*(n % NTW)
        for n in range(NTW-1): a(f'ds_read_b128 v[{slot(n)}:{slot(n)+3}], v2 offset:{base + 1024*n}')
        for n, (blk, pr) in enumerate(seq):
            cur = slot(n)
            if n+NTW-1 < len(seq):
                nx = slot(n+NTW-1)
                a(f'ds_read_b128 v[{nx}:{nx+3}], v2 offset:{base + 1024*(n+NTW-1)}')
            a(f's_waitcnt lgkmcnt({min(NTW-1, len(seq)-1-n)})')
            r = 2*pr; re = D[0][blk]+r; im = D[1][blk]+r; u = T + 4*(n & 1)
            a(f'v_pk_mul_f32 v[{u}:{u+1}], v[{re}:{re+1}], v[{cur}:{cur+1}]')
            a(f'v_pk_mul_f32 v[{u+2}:{u+3}], v[{im}:{im+1}], v[{cur}:{cur+1}]')
            a(f'v_pk_fma_f32 v[{u}:{u+1}], v[{im}:{im+1}], v[{cur+2}:{cur+3}], v[{u}:{u+1}]')
            a(f'v_pk_fma_f32 v[{u+2}:{u+3}], v[{re}:{re+1}], v[{cur+2}:{cur+3}], v[{u+2}:{u+3}] neg_lo:[1,0,0] neg_hi:[1,0,0]')
            a(f'v_cvt_pk_bf16_f32 v{dst+16*blk+r}, v{u}, v{u+2}')
            a(f'v_cvt_pk_bf16_f32 v{dst+16*blk+r+1}, v{u+1}, v{u+3}')
    NFB = 8
    def f64_stage(data, data_is_A):
        seq = [(sg, blk, q) for blk in range(2) for sg in range(2) for q in range(8)]
        def img(n): sg, blk, q = seq[n]; return COL_F64 + ((sg*2 + blk)*8 + q)*1024
        slot = lambda n: T + 4*(n % NFB)
        for n in range(NFB-1): a(f'ds_read_b128 v[{slot(n)}:{slot(n)+3}], v1 offset:{img(n)}')
        for n, (sg, blk, q) in enumerate(seq):
            if n+NFB-1 < len(seq):
                sl = slot(n+NFB-1)
                a(f'ds_read_b128 v[{sl}:{sl+3}], v1 offset:{img(n+NFB-1)}')
            a(f's_waitcnt lgkmcnt({min(NFB-1, len(seq)-1-n)})')
            f = slot(n); d = D[sg][blk]; x = data + 4*q
            c = '0' if q == 0 else f'v[{d}:{d+15}]'
            if data_is_A: a(f'{MF} v[{d}:{d+15}], v[{x}:{x+3}], v[{f}:{f+3}], {c}')
            else: a(f'{MF} v[{d}:{d+15}], v[{f}:{f+3}], v[{x}:{x+3}], {c}')
    a.label(f'L_col_{tag}')
    a('s_waitcnt vmcnt(8) lgkmcnt(0)')
    for blk in range(2):
        for sg in range(2):
            d = D[sg][blk]
            for q in range(4):
                x = ZA + 16*blk + 4*q; f = F32 + 16*sg + 4*q
                a(f'{MF} v[{d}:{d+15}], v[{x}:{x+3}], v[{f}:{f+3}], ' + ('0' if q == 0 else f'v[{d}:{d+15}]'))
    a(f's_add_u32 s22, s21, {NWV}')
    a(f's_cmp_lt_u32 s22, 513'); a(f's_cselect_b32 s23, s22, s21')
    twiddle(P, COL_TWF)
    load_col(ZA, 4, 's23')
    f64_stage(P, False)
    a('s_waitcnt vmcnt(8)')
    for blk in range(2):
        for r in range(0, 16, 2):
            w = WC + 16*blk + r; u = T + 8*((r >> 1) & 1); xr = D[0][blk]+r; xi = D[1][blk]+r
            a(f'v_lshlrev_b32 v{u}, 16, v{w}'); a(f'v_lshlrev_b32 v{u+1}, 16, v{w+1}')
            a(f'v_and_b32 v{u+2}, 0xffff0000, v{w}'); a(f'v_and_b32 v{u+3}, 0xffff0000, v{w+1}')
            a(f'v_pk_mul_f32 v[{u+4}:{u+5}], v[{xr}:{xr+1}], v[{u}:{u+1}]')
            a(f'v_pk_mul_f32 v[{u+6}:{u+7}], v[{xr}:{xr+1}], v[{u+2}:{u+3}]')
            a(f'v_pk_fma_f32 v[{u+4}:{u+5}], v[{xi}:{xi+1}], v[{u+2}:{u+3}], v[{u+4}:{u+5}] neg_lo:[1,0,0] neg_hi:[1,0,0]')
            a(f'v_pk_fma_f32 v[{u+6}:{u+7}], v[{xi}:{xi+1}], v[{u}:{u+1}], v[{u+6}:{u+7}]')
            a(f'v_cvt_pk_bf16_f32 v{P+16*blk+r}, v{u+4}, -v{u+6}')
            a(f'v_cvt_pk_bf16_f32 v{P+16*blk+r+1}, v{u+5}, -v{u+7}')
    load_col(WC, 8, 's23')
    f64_stage(P, True)
    twiddle(P, COL_TWI)
    for blk in range(2):
        for sg in range(2):
            d = D[sg][blk]
            for q in range(4):
                x = P + 16*blk + 4*q; f = F32 + 16*sg + 4*q
                a(f'{MF} v[{d}:{d+15}], v[{f}:{f+3}], v[{x}:{x+3}], ' + ('0' if q == 0 else f'v[{d}:{d+15}]'))
    a('s_and_b32 s40, s21, 511'); a('s_cmp_lg_u32 s40, 0'); a(f's_cbranch_scc1 L_nosp_{tag}')
    a('s_mov_b32 s40, 0.5'); a('s_mov_b32 s41, 0.5')
    for sg in range(2):
        for blk in range(2):
            for r in range(0, 16, 2):
                d = D[sg][blk]+r
                a(f'v_pk_mul_f32 v[{d}:{d+1}], v[{d}:{d+1}], s[40:41]')
    a.label(f'L_nosp_{tag}')
    a(f's_mul_i32 s40, s21, {ZP}')
    for blk in range(2):
        for q in range(4):
            o = P + 16*blk + 4*q
            for i in range(4):
                a(f'v_cvt_pk_bf16_f32 v{o+i}, v{D[0][blk]+4*q+i}, v{D[1][blk]+4*q+i}')
            g = 4*blk + q
            if g == 4: a('s_add_u32 s40, s40, 4096')
            a(f'buffer_store_dwordx4 v[{o}:{o+3}], v1, s[12:15], s40 offen offset:{1024*(g & 3)}')
    a(f's_add_u32 s21, s21, {NWV}')
    a('s_cmp_lt_u32 s21, 513'); a(f's_cbranch_scc1 L_col_{tag}')
    st_end(a, 3, tag)
    a('s_endpgm')
    return R.p, COL_LDS

def gen_row_inv(a, tag, wg='s2'):
    st_begin(a)
    a('s_load_dwordx2 s[18:19], s[0:1], 64')
    a('v_lshrrev_b32 v1, 6, v0'); a('v_and_b32 v0, 63, v0'); a('v_readfirstlane_b32 s20, v1')
    a(f's_and_b32 s21, {wg}, 7'); a(f's_lshr_b32 s22, {wg}, 3')
    a('s_lshr_b32 s23, s22, 1')
    a('s_and_b32 s24, s22, 1'); a('s_lshl_b32 s25, s21, 1'); a('s_add_u32 s24, s24, s25')
    a('s_lshl_b32 s25, s23, 2'); a('s_and_b32 s26, s20, 3'); a('s_add_u32 s25, s25, s26'); a('s_lshl_b32 s25, s25, 6')
    a('s_lshl_b32 s26, s24, 2'); a('s_add_u32 s25, s25, s26'); a('s_lshr_b32 s26, s20, 2'); a('s_add_u32 s25, s25, s26')
    a('s_lshl_b32 s26, s25, 11'); a('s_add_u32 s27, s26, 4096')
    a('s_lshr_b32 s28, s24, 3'); a('s_lshl_b32 s28, s28, 2'); a('s_lshr_b32 s29, s23, 1'); a('s_add_u32 s28, s28, s29'); a('s_lshl_b32 s28, s28, 6')
    a('s_and_b32 s29, s23, 1'); a('s_lshl_b32 s29, s29, 5'); a('s_add_u32 s28, s28, s29')
    a('s_and_b32 s29, s24, 7'); a('s_lshl_b32 s29, s29, 2'); a('s_add_u32 s28, s28, s29'); a('s_lshl_b32 s28, s28, 4')
    a('s_waitcnt lgkmcnt(0)')
    srd_off(a, 4, 18, WS_Y, ZBYTES); srd_off(a, 8, 18, WS_S, 2048*2048)
    R = Regs(8, 256)
    L = R.alloc(20, 4)
    a('v_lshrrev_b32 v2, 2, v0'); a('v_and_b32 v3, 3, v0')
    a('v_mul_u32_u24 v4, 72, v2'); a('v_lshrrev_b32 v5, 3, v2'); a('v_lshl_add_u32 v4, v5, 3, v4'); a('v_lshl_add_u32 v4, v3, 4, v4')
    a('s_mul_i32 s40, s20, 1168'); a('v_add_u32 v4, s40, v4')
    a('s_lshl_b32 s40, s20, 4'); a('v_add_u32 v5, s40, v2'); a(f's_mov_b32 s41, {ZP}'); a('v_mul_lo_u32 v5, v5, s41'); a('v_lshl_add_u32 v5, v3, 4, v5')
    for it in range(5):
        a(f's_add_u32 s41, s28, {it*128*ZP}')
        a(f'buffer_load_dwordx4 v[{L+4*it}:{L+4*it+3}], v5, s[4:7], s41 offen')
    G = R.alloc(16, 4); CS = R.alloc(16, 2); SN = R.alloc(16, 2); H = R.alloc(16, 4); T = R.alloc(8, 4)
    fC32, fC1k, fH4, fPh, vSg = 2, 3, 6, 7, 1
    a(f'v_and_b32 v{T}, 31, v0')
    a(f'v_lshrrev_b32 v{T+1}, 2, v{T}'); a(f'v_and_b32 v{T+1}, 1, v{T+1}'); a(f'v_lshlrev_b32 v{T+1}, 4, v{T+1}')
    a(f'v_lshrrev_b32 v{T+2}, 3, v{T}'); a(f'v_lshl_add_u32 v{T+1}, v{T+2}, 2, v{T+1}')
    a(f'v_and_b32 v{T+2}, 3, v{T}'); a(f'v_add_u32 v{T+1}, v{T+1}, v{T+2}'); a(f'v_cvt_f32_u32 v{T+1}, v{T+1}')
    a(f'v_mul_f32 v{fC32}, {f32(1/32)}, v{T+1}'); a(f'v_mul_f32 v{fC1k}, {f32(1/1024)}, v{T+1}')
    a(f'v_lshrrev_b32 v{fH4}, 5, v0'); a(f'v_cvt_f32_u32 v{fH4}, v{fH4}'); a(f'v_mul_f32 v{fH4}, {f32(4.0)}, v{fH4}')
    for sg in range(2):
        a(f'v_mov_b32 v{fPh}, {f32(0.25*sg)}')
        for q in range(2): emit_img(a, G+8*sg+4*q, fH4, 8*q, fC32, f'v{fPh}', T)
    for r in range(16): emit_cs(a, CS+r, SN+r, fH4, (r & 3) + 8*(r >> 2), fC1k, None, T)
    a(f'v_and_b32 v{T}, 31, v0'); a(f'v_cvt_f32_u32 v{T}, v{T}'); a(f'v_mul_f32 v{fC32}, {f32(1/32)}, v{T}')
    for q in range(4): emit_img(a, H+4*q, fH4, 8*q, fC32, None, T)
    a(f'v_and_b32 v{T}, 1, v0'); a(f'v_cvt_f32_u32 v{T}, v{T}'); a(f'v_fma_f32 v{vSg}, v{T}, -2.0, 1.0')
    a('v_cmp_gt_u32 vcc, 32, v0'); a(f'v_cndmask_b32 v{vSg}, 0, v{vSg}, vcc')
    for it in range(4):
        a(f's_waitcnt vmcnt({4-it})')
        a(f'ds_write_b64 v4, v[{L+4*it}:{L+4*it+1}] offset:{9344*it}')
        a(f'ds_write_b64 v4, v[{L+4*it+2}:{L+4*it+3}] offset:{9344*it+8}')
    a('s_waitcnt vmcnt(0)')
    a('s_cmp_lg_u32 s20, 0'); a(f's_cbranch_scc1 L_no5_{tag}')
    a(f'ds_write_b64 v4, v[{L+16}:{L+17}] offset:{9344*4}')
    a(f'ds_write_b64 v4, v[{L+18}:{L+19}] offset:{9344*4+8}')
    a.label(f'L_no5_{tag}')
    a('s_waitcnt lgkmcnt(0)'); a('s_barrier')
    a('v_and_b32 v2, 31, v0'); a('v_lshrrev_b32 v3, 5, v0'); a('v_lshl_add_u32 v2, v3, 7, v2')
    a('v_lshrrev_b32 v3, 3, v2'); a('v_mul_u32_u24 v2, 72, v2'); a('v_lshl_add_u32 v2, v3, 3, v2')
    a('s_lshl_b32 s31, s20, 2'); a('v_add_u32 v2, s31, v2'); a('v_mov_b32 v3, s31')
    V = [R.alloc(8, 4), R.alloc(8, 4)]; NQ = [R.alloc(), R.alloc()]
    D1 = [[R.alloc(16, 4), R.alloc(16, 4)], [R.alloc(16, 4), R.alloc(16, 4)]]
    P = [R.alloc(16, 4), R.alloc(16, 4)]
    for z in range(2):
        for q in range(2):
            for jj in range(4):
                a(f'ds_read_b32 v{V[z]+4*q+jj}, v2 offset:{2336*(8*q+jj) + 32*z}')
        a(f'ds_read_b32 v{NQ[z]}, v3 offset:{72*512 + 8*64 + 32*z}')
    a('v_lshlrev_b32 v4, 6, v0'); a('v_and_b32 v4, 0x7ff, v4'); a('v_lshrrev_b32 v5, 5, v0'); a('v_lshl_add_u32 v4, v5, 5, v4')
    for z in range(2):
        a(f's_waitcnt lgkmcnt({9*(1-z)})')
        for sg in range(2):
            d = D1[z][sg]
            a(f'{MF} v[{d}:{d+15}], v[{V[z]}:{V[z]+3}], v[{G+8*sg}:{G+8*sg+3}], 0')
            a(f'{MF} v[{d}:{d+15}], v[{V[z]+4}:{V[z]+7}], v[{G+8*sg+4}:{G+8*sg+7}], v[{d}:{d+15}]')
        a(f'v_lshlrev_b32 v{NQ[z]}, 16, v{NQ[z]}')
    for z in range(2):
        a(f'v_fmac_f32 v{D1[z][0]}, v{NQ[z]}, v{vSg}')
        cmul_pack(a, P[z], D1[z][0], D1[z][1], CS, SN, T)
        d2 = D1[z][0]
        for q in range(4):
            a(f'{MF} v[{d2}:{d2+15}], v[{P[z]+4*q}:{P[z]+4*q+3}], v[{H+4*q}:{H+4*q+3}], ' + ('0' if q == 0 else f'v[{d2}:{d2+15}]'))
    for z in range(2):
        d2 = D1[z][0]; o = D1[z][1]
        for u in range(8): a(f'v_cvt_pk_bf16_f32 v{o+u}, v{d2+2*u}, v{d2+2*u+1}')
        so = 's26' if z == 0 else 's27'
        a(f'buffer_store_dwordx4 v[{o}:{o+3}], v4, s[8:11], {so} offen')
        a(f'buffer_store_dwordx4 v[{o+4}:{o+7}], v4, s[8:11], {so} offen offset:16')
    st_end(a, 4, tag)
    a('s_endpgm')
    return R.p, TILE_BYTES
```

```python
from asm import *

class G16:
    def __init__(s, **kw):
        s.BM=128; s.BN=256; s.WM=1; s.WN=4; s.K=1024; s.S=3; s.NSUB=1; s.pitchA=2048; s.pitchW=7168
        s.NL=4; s.dbufA=False; s.prio=0; s.lds0=0
        s.noload=False; s.nomfma=False
        s.__dict__.update(kw)
        s.TM = s.BM//s.WM//16; s.TN = s.BN//s.WN//16
        s.NC = s.WM*s.WN
        s.RB = s.BN*2
        s.A_BYTES = s.BM*128; s.W_BYTES = 64*s.RB
        s.SUB = s.A_BYTES + s.W_BYTES
        s.STAGE = s.SUB*s.NSUB
        s.nA = s.A_BYTES//1024; s.nW = s.W_BYTES//1024
        assert s.nA % s.NL == 0 and s.nW % s.NL == 0, (s.nA, s.nW, s.NL)
        s.PA = s.nA//s.NL; s.PW = s.nW//s.NL; s.P = (s.PA+s.PW)*s.NSUB
        s.NST = s.K//(64*s.NSUB)
        assert s.NST*64*s.NSUB == s.K
        s.LDS = s.S*s.STAGE
        s.NSTEP = 2*s.NSUB

S_STG, S_NEG = 43, 44
def emit_consts(a, cfg):
    a(f's_mov_b32 s{S_STG}, {cfg.STAGE}')
    a(f's_mov_b32 s{S_NEG}, {hex((-(cfg.S-1)*cfg.STAGE) & 0xffffffff)}')

def w_mask_code(a, cfg, vk, dst, t):
    if cfg.RB >= 256:
        a(f'v_and_b32 v{dst}, 3, v{vk}')
        a(f'v_lshrrev_b32 v{t}, 1, v{vk}'); a(f'v_and_b32 v{t}, 4, v{t}')
        a(f'v_or_b32 v{dst}, v{dst}, v{t}')
        a(f'v_lshlrev_b32 v{dst}, 1, v{dst}')
    else:
        a(f'v_and_b32 v{dst}, 2, v{vk}')
        a(f'v_lshrrev_b32 v{t}, 1, v{vk}'); a(f'v_and_b32 v{t}, 4, v{t}')
        a(f'v_or_b32 v{dst}, v{dst}, v{t}')

def emit_loader_setup(a, cfg, R, vlane, s_lw, s_m0row_bytes, s_n0_bytes, tmp):
    t0, t1, t2, t3 = tmp
    vA = [R.alloc(name=f'vA{i}') for i in range(cfg.PA)]
    vW = [R.alloc(name=f'vW{i}') for i in range(cfg.PW)]
    for i in range(cfg.PA):
        a(f's_mul_i32 s40, {s_lw}, {8*cfg.PA}')
        a(f's_add_u32 s40, s40, {8*i}')
        a(f'v_lshrrev_b32 v{t0}, 3, v{vlane}')
        a(f'v_add_u32 v{t0}, s40, v{t0}')
        a(f'v_lshrrev_b32 v{t1}, 1, v{t0}')
        a(f'v_xor_b32 v{t1}, v{t1}, v{vlane}')
        a(f'v_and_b32 v{t1}, 7, v{t1}')
        a(f'v_lshlrev_b32 v{t1}, 4, v{t1}')
        a(f's_mov_b32 s41, {cfg.pitchA}')
        a(f'v_mul_lo_u32 v{t0}, v{t0}, s41')
        a(f'v_add3_u32 v{vA[i]}, v{t0}, v{t1}, {s_m0row_bytes}')
    cpr = cfg.RB//16; rpp = 64//cpr if cpr <= 64 else None
    sh = cpr.bit_length()-1
    for i in range(cfg.PW):
        a(f's_mul_i32 s40, {s_lw}, {rpp*cfg.PW}')
        a(f's_add_u32 s40, s40, {rpp*i}')
        a(f'v_lshrrev_b32 v{t0}, {sh}, v{vlane}')
        a(f'v_add_u32 v{t0}, s40, v{t0}')
        w_mask_code(a, cfg, t0, t1, t3)
        a(f'v_and_b32 v{t2}, {cpr-1}, v{vlane}')
        a(f'v_xor_b32 v{t1}, v{t1}, v{t2}')
        a(f'v_lshlrev_b32 v{t1}, 4, v{t1}')
        a(f's_mov_b32 s41, {cfg.pitchW}')
        a(f'v_mul_lo_u32 v{t0}, v{t0}, s41')
        a(f'v_add3_u32 v{vW[i]}, v{t0}, v{t1}, {s_n0_bytes}')
    return vA, vW

def stage_load_list(cfg, vA, vW, srdA, srdW, s_kA, s_kW, s_lds, s_tmp):
    out = []
    for sub in range(cfg.NSUB):
        sa, sw = s_kA, s_kW
        pre = []
        if sub:
            pre = [f's_add_u32 s{s_tmp}, s{s_kA}, {128*sub}', f's_add_u32 s{s_tmp+1}, s{s_kW}, {64*cfg.pitchW*sub}']
            sa, sw = s_tmp, s_tmp+1
        for i in range(cfg.PA):
            out.append(pre + [f's_add_u32 m0, s{s_lds}, {sub*cfg.SUB + i*1024}', 's_nop 0',
                        f'buffer_load_dwordx4 v{vA[i]}, s[{srdA}:{srdA+3}], s{sa} offen lds']); pre = []
        for i in range(cfg.PW):
            out.append([f's_add_u32 m0, s{s_lds+1}, {sub*cfg.SUB + i*1024}', 's_nop 0',
                        f'buffer_load_dwordx4 v{vW[i]}, s[{srdW}:{srdW+3}], s{sw} offen lds'])
    return out

def emit_loader_loop(a, cfg, vA, vW, srdA, srdW, s_kA, s_kW, s_lds, s_it, s_stage, s_tmp, tag, tail_loads=None):
    def adv():
        a(f's_add_u32 s{s_kA}, s{s_kA}, {128*cfg.NSUB}')
        a(f's_add_u32 s{s_kW}, s{s_kW}, {64*cfg.pitchW*cfg.NSUB}')
        a(f's_add_u32 s{s_stage}, s{s_stage}, 1')
        a(f's_cmp_eq_u32 s{s_stage}, {cfg.S}')
        a(f's_cselect_b32 s42, s{S_NEG}, s{S_STG}')
        a(f's_cselect_b32 s{s_stage}, 0, s{s_stage}')
        a(f's_add_u32 s{s_lds}, s{s_lds}, s42'); a(f's_add_u32 s{s_lds+1}, s{s_lds+1}, s42')
    def loads(force=False):
        if cfg.noload and not force: return
        for g in stage_load_list(cfg, vA, vW, srdA, srdW, s_kA, s_kW, s_lds, s_tmp):
            for x in g: a(x)
    a(f's_mov_b32 s{s_stage}, 0')
    for i in range(cfg.S-1 + (1 if cfg.noload else 0)):
        loads(True); adv()
    if cfg.noload: a('s_waitcnt vmcnt(0)')
    n_main = cfg.NST - (cfg.S-1)
    a(f's_mov_b32 s{s_it}, 0')
    a(f'L_load_{tag}:')
    a(f's_waitcnt vmcnt({min(63,(cfg.S-2)*cfg.P)})')
    a('s_barrier')
    loads(); adv()
    a(f's_add_u32 s{s_it}, s{s_it}, 1')
    a(f's_cmp_lt_u32 s{s_it}, {n_main}')
    a(f's_cbranch_scc1 L_load_{tag}')
    nx = 0
    if tail_loads: nx = tail_loads(a)
    for i in range(cfg.S-1):
        a(f's_waitcnt vmcnt({min(63,(cfg.S-2-i)*cfg.P + nx)})')
        a('s_barrier')

def emit_consumer_addr(a, cfg, R, vlane, s_wm, s_wn, tmp):
    t0, t1, t2, t3 = tmp
    vRA = [R.alloc(name=f'vRA{ks}') for ks in range(2)]
    vRW = [R.alloc(name=f'vRW{t}') for t in range(cfg.TN)]
    a(f'v_and_b32 v{t0}, 15, v{vlane}')
    a(f's_mul_i32 s40, {s_wm}, {cfg.TM*16}')
    a(f'v_add_u32 v{t0}, s40, v{t0}')
    a(f'v_lshrrev_b32 v{t1}, 1, v{t0}')
    a(f'v_and_b32 v{t1}, 7, v{t1}')
    a(f'v_lshrrev_b32 v{t2}, 4, v{vlane}')
    a(f'v_xor_b32 v{t1}, v{t1}, v{t2}')
    a(f'v_lshlrev_b32 v{t0}, 7, v{t0}')
    if cfg.lds0: a(f'v_add_u32 v{t0}, {cfg.lds0}, v{t0}')
    for ks in range(2):
        a(f'v_xor_b32 v{t2}, {4*ks}, v{t1}')
        a(f'v_lshl_add_u32 v{vRA[ks]}, v{t2}, 4, v{t0}')
    a(f'v_lshrrev_b32 v{t0}, 2, v{vlane}'); a(f'v_and_b32 v{t0}, 3, v{t0}')
    a(f'v_lshrrev_b32 v{t2}, 4, v{vlane}'); a(f'v_lshl_add_u32 v{t0}, v{t2}, 3, v{t0}')
    w_mask_code(a, cfg, t0, t1, t3)
    a(f's_mov_b32 s41, {cfg.RB}'); a(f'v_mul_lo_u32 v{t0}, v{t0}, s41')
    a(f'v_and_b32 v{t2}, 1, v{vlane}'); a(f'v_lshl_add_u32 v{t0}, v{t2}, 3, v{t0}')
    a(f'v_add_u32 v{t0}, {cfg.A_BYTES + cfg.lds0}, v{t0}')
    a(f'v_lshrrev_b32 v{t2}, 1, v{vlane}'); a(f'v_and_b32 v{t2}, 1, v{t2}')
    for t in range(cfg.TN):
        a(f's_mul_i32 s40, {s_wn}, {2*cfg.TN}'); a(f's_add_u32 s40, s40, {2*t}')
        a(f'v_add_u32 v{t3}, s40, v{t2}')
        a(f'v_xor_b32 v{t3}, v{t3}, v{t1}')
        a(f'v_lshl_add_u32 v{vRW[t]}, v{t3}, 4, v{t0}')
    return vRA, vRW

class LgkmTracker:
    def __init__(s, a): s.a = a; s.p = []
    def issue(s, line, tag): s.a(line); s.p.append(tag)
    def need(s, tags):
        idx = -1
        for t in tags:
            if t in s.p: idx = max(idx, len(s.p)-1 - s.p[::-1].index(t))
        if idx < 0: return
        n = len(s.p)-idx-1
        n = min(n, 15)
        s.a(f's_waitcnt lgkmcnt({n})')
        s.p = s.p[len(s.p)-n:] if n else []
    def all(s):
        if s.p: s.a('s_waitcnt lgkmcnt(0)')
        s.p = []

def consumer_regs(cfg, R):
    F = {}
    F['W'] = [R.alloc(4*cfg.TN, 4), R.alloc(4*cfg.TN, 4)]
    if cfg.dbufA: F['A'] = [R.alloc(4*cfg.TM, 4), R.alloc(4*cfg.TM, 4)]
    else:
        x = R.alloc(4*cfg.TM, 4); F['A'] = [x, x]
    F['acc'] = R.alloc(4*cfg.TM*cfg.TN, 4)
    return F

def step_reads(cfg, F, vRA, vRW, step, par):
    sub, ks = step//2, step & 1
    out = []
    so = sub*cfg.SUB
    for t in range(cfg.TN):
        for j in range(2):
            r = F['W'][par] + 4*t + 2*j
            off = so + (32*ks + 4*j)*cfg.RB
            out.append((f'ds_read_b64_tr_b16 v[{r}:{r+1}], v{vRW[t]} offset:{off}', ('W', par, t, j), -1))
    for mt in range(cfg.TM):
        r = F['A'][par] + 4*mt
        e = -1 if cfg.dbufA else (mt+1)*cfg.TN - 1
        out.append((f'ds_read_b128 v[{r}:{r+3}], v{vRA[ks]} offset:{so + mt*2048}', ('A', par if cfg.dbufA else 0, mt), e))
    return out

def emit_step(a, cfg, T, F, par, reads, barrier_at=None, pre_barrier=None, extra=None, maxper=1):
    acc = F['acc']; pend = list(reads); idx = 0
    extra = list(extra or [])
    for mt in range(cfg.TM):
        for t in range(cfg.TN):
            if barrier_at is not None and idx == barrier_at:
                for x in extra: a(x)
                extra = []
                T.all()
                if pre_barrier:
                    for x in pre_barrier: a(x)
                a('s_barrier')
            T.need([('W', par, t, 0), ('W', par, t, 1), ('A', par if cfg.dbufA else 0, mt)])
            c = acc + 4*(mt*cfg.TN + t); w = F['W'][par] + 4*t; x = F['A'][par] + 4*mt
            if not cfg.nomfma:
                a(f'v_mfma_f32_16x16x32_bf16 v[{c}:{c+3}], v[{w}:{w+3}], v[{x}:{x+3}], v[{c}:{c+3}]')
            n = 0
            if barrier_at is None or idx >= barrier_at:
                k = 0
                while k < len(pend) and n < maxper:
                    if pend[k][2] <= idx:
                        T.issue(pend[k][0], pend[k][1]); pend.pop(k); n += 1
                    else: k += 1
            if n == 0 and extra: a(extra.pop(0))
            idx += 1
    for p in pend: T.issue(p[0], p[1])
    for x in extra: a(x)

def emit_consumer_loop(a, cfg, F, vRA, vRW, s_it, s_stage, s_delta, tag):
    NM = cfg.TM*cfg.TN
    T = LgkmTracker(a)
    a('s_barrier')
    if getattr(cfg,'stampfirst',False): a('s_memtime s[58:59]'); a('s_memrealtime s[52:53]'); a('s_waitcnt lgkmcnt(0)')
    first = step_reads(cfg, F, vRA, vRW, 0, 0)
    for ln, tg, e in first: T.issue(ln, tg)
    entry = list(T.p)
    T.all()
    a(f's_mov_b32 s{s_it}, 0'); a(f's_mov_b32 s{s_stage}, 0')
    a(f'L_cons_{tag}:')
    adv = [f'v_add_u32 v{r}, s{s_delta}, v{r}' for r in list(vRA)+list(vRW)]
    def body(last):
        for step in range(cfg.NSTEP):
            par = step & 1
            if step < cfg.NSTEP-1:
                extra = []
                if step == 0 and not last:
                    extra = [f's_add_u32 s{s_stage}, s{s_stage}, 1', f's_cmp_eq_u32 s{s_stage}, {cfg.S}',
                             f's_cselect_b32 s{s_delta}, s{S_NEG}, s{S_STG}', f's_cselect_b32 s{s_stage}, 0, s{s_stage}']
                    for x in extra: a(x)
                emit_step(a, cfg, T, F, par, step_reads(cfg, F, vRA, vRW, step+1, par ^ 1))
            elif last:
                emit_step(a, cfg, T, F, par, [])
            else:
                bat = NM//2 if not cfg.dbufA else max(1, NM//4)
                emit_step(a, cfg, T, F, par, step_reads(cfg, F, vRA, vRW, 0, par ^ 1), barrier_at=bat, extra=adv, maxper=2)
    T.p = []
    start_state = None
    class Dry:
        def __call__(self, s): pass
    a_real = T.a
    T.a = Dry(); a_save = a
    def run(emit, last):
        nonlocal a
        a = emit; T.a = emit
        body(last)
    dry = Dry()
    T.p = []
    run(dry, False)
    st = list(T.p)
    run(dry, False)
    assert st == T.p, (st, T.p)
    T.p = list(st)
    run(a_save, False)
    a = a_save
    a(f's_add_u32 s{s_it}, s{s_it}, 1')
    a(f's_cmp_lt_u32 s{s_it}, {cfg.NST-1}')
    a(f's_cbranch_scc1 L_cons_{tag}')
    T.p = list(st)
    run(a_save, True)
```

```python
from asm import *
from gemm16 import *
from fft import WS_XN, WS_H, WS_S, WS_DBG
M=2048; F=3584; Dm=1024

def silu4(a, c, t, pk=True):
    a(f'v_pk_mul_f32 v[{t}:{t+1}], v[{c}:{c+1}], s[46:47]')
    a(f'v_pk_mul_f32 v[{t+2}:{t+3}], v[{c+2}:{c+3}], s[46:47]')
    for j in range(4): a(f'v_exp_f32 v{t+j}, v{t+j}')
    a(f'v_pk_add_f32 v[{t}:{t+1}], v[{t}:{t+1}], s[48:49]')
    a(f'v_pk_add_f32 v[{t+2}:{t+3}], v[{t+2}:{t+3}], s[48:49]')
    for j in range(4): a(f'v_rcp_f32 v{t+j}, v{t+j}')
    a(f'v_pk_mul_f32 v[{t}:{t+1}], v[{c}:{c+1}], v[{t}:{t+1}]')
    a(f'v_pk_mul_f32 v[{t+2}:{t+3}], v[{c+2}:{c+3}], v[{t+2}:{t+3}]')

def silu_consts(a):
    a('s_mov_b32 s46, 0xbfb8aa3b'); a('s_mov_b32 s47, 0xbfb8aa3b'); a('s_mov_b32 s48, 1.0'); a('s_mov_b32 s49, 1.0')

def stamp_begin(a):
    a('s_memrealtime s[52:53]'); a('s_memtime s[58:59]')
def stamp_mid(a):
    a('s_memrealtime s[54:55]'); a('s_memtime s[60:61]')
def stamp_out(a, endlabel, ws_pair=18, slot=0):
    a('s_waitcnt vmcnt(0)')
    a('s_memrealtime s[56:57]')
    a('s_waitcnt lgkmcnt(0)')
    a('s_cmp_lg_u32 s20, 0'); a(f's_cbranch_scc1 {endlabel}')
    srd_off(a, 12, ws_pair, WS_DBG + slot*0x4000, 0x4000)
    a('v_mov_b32 v10, s52'); a('v_mov_b32 v11, s53'); a('v_mov_b32 v12, s54'); a('v_mov_b32 v13, s55')
    a('s_lshl_b32 s40, s2, 5')
    a('s_sub_u32 s60, s60, s58'); a('v_mov_b32 v18, s60'); a('v_mov_b32 v19, 0'); a('v_mov_b32 v17, s57'); a('v_mov_b32 v16, s56'); a('v_mov_b32 v20, s40')
    a('v_cmp_eq_u32 vcc, 0, v0'); a('s_and_saveexec_b64 s[62:63], vcc')
    a('buffer_store_dwordx4 v[10:13], v20, s[12:15], 0 offen')
    a('buffer_store_dwordx4 v[16:19], v20, s[12:15], 0 offen offset:16')

def loader_part(a, cfg, tag, tmp, tail_loads=None):
    a(f's_sub_u32 s35, s20, {cfg.NC}')
    Rl = Regs(5, 256)
    vA, vW = emit_loader_setup(a, cfg, Rl, 0, 's35', 's26', 's27', tmp)
    a('s_mov_b32 s28, 0'); a('s_mov_b32 s29, 0')
    a(f's_mul_i32 s30, s35, {cfg.PA*1024}')
    a(f's_mul_i32 s31, s35, {cfg.PW*1024}'); a(f's_add_u32 s31, s31, {cfg.A_BYTES}')
    emit_loader_loop(a, cfg, vA, vW, 4, 8, 28, 29, 30, 32, 33, 38, tag, tail_loads)
    a('s_endpgm')

def gen_g1(a, tag, cfg, stamp=False, prefetch_w2=True):
    a('s_load_dwordx2 s[16:17], s[0:1], 32')
    a('s_load_dwordx2 s[18:19], s[0:1], 64')
    if stamp: stamp_begin(a)
    a('v_lshrrev_b32 v1, 6, v0'); a('v_and_b32 v0, 63, v0'); a('v_readfirstlane_b32 s20, v1')
    a('s_and_b32 s21, s2, 7'); a('s_lshr_b32 s22, s2, 3')
    a('s_and_b32 s23, s21, 3'); a('s_lshl_b32 s23, s23, 2'); a('s_and_b32 s24, s22, 3'); a('s_add_u32 s23, s23, s24')
    a('s_lshr_b32 s24, s21, 2'); a('s_mul_i32 s24, s24, 7'); a('s_lshr_b32 s25, s22, 2'); a('s_add_u32 s24, s24, s25')
    a(f's_mul_i32 s26, s23, {cfg.BM*cfg.pitchA}')
    a(f's_mul_i32 s27, s24, {cfg.BN*2}')
    a('s_waitcnt lgkmcnt(0)')
    srd_off(a, 4, 18, WS_XN, M*Dm*2)
    srd(a, 8, 16, Dm*F*2)
    emit_consts(a, cfg)
    tmp = [1,2,3,4]
    a(f's_cmp_ge_u32 s20, {cfg.NC}')
    a(f's_cbranch_scc1 L_loader_{tag}')
    srd_off(a, 12, 18, WS_H, M*F*2)
    a(f's_and_b32 s37, s20, {cfg.WN-1}')
    a(f's_lshr_b32 s36, s20, {cfg.WN.bit_length()-1}')
    Rc = Regs(5, 256)
    vRA, vRW = emit_consumer_addr(a, cfg, Rc, 0, 's36', 's37', tmp)
    Fr = consumer_regs(cfg, Rc)
    acc = Fr['acc']
    for i in range(4*cfg.TM*cfg.TN): a(f'v_mov_b32 v{acc+i}, 0')
    emit_consumer_loop(a, cfg, Fr, vRA, vRW, 32, 33, 34, tag)
    if stamp: stamp_mid(a)
    vO = tmp[0]
    silu_consts(a)
    a(f'v_and_b32 v{tmp[1]}, 15, v0')
    a(f's_mul_i32 s40, s23, {cfg.BM}'); a(f's_mul_i32 s41, s36, {cfg.TM*16}'); a('s_add_u32 s40, s40, s41')
    a(f'v_add_u32 v{tmp[1]}, s40, v{tmp[1]}')
    a(f's_mov_b32 s41, {F*2}')
    a(f'v_mul_lo_u32 v{vO}, v{tmp[1]}, s41')
    a(f'v_lshrrev_b32 v{tmp[1]}, 4, v0'); a(f'v_and_b32 v{tmp[2]}, 1, v{tmp[1]}'); a(f'v_lshl_add_u32 v{vO}, v{tmp[2]}, 5, v{vO}')
    a(f'v_lshrrev_b32 v{tmp[1]}, 5, v0'); a(f'v_lshl_add_u32 v{vO}, v{tmp[1]}, 4, v{vO}')
    a(f's_mul_i32 s40, s37, {cfg.TN*32}'); a('s_add_u32 s40, s40, s27')
    a(f'v_add_u32 v{vO}, s40, v{vO}')
    st = Fr['W'][0]; k = 0; ndst = 3; tb = st + 4*ndst
    for mt in range(cfg.TM):
        for tp in range(cfg.TN//2):
            d = st + (k % ndst)*4; tt = tb + (k % 2)*8; k += 1
            c0 = acc + 4*(mt*cfg.TN + 2*tp); c1 = c0 + 4
            silu4(a, c0, tt); silu4(a, c1, tt+4)
            for j in range(4): a(f'v_cvt_pk_bf16_f32 v{d+j}, v{tt+2*j}, v{tt+2*j+1}')
            a(f'v_permlane16_swap_b32 v{d}, v{d+2}')
            a(f'v_permlane16_swap_b32 v{d+1}, v{d+3}')
            a(f's_mov_b32 s40, {mt*16*F*2}')
            a(f'buffer_store_dwordx4 v[{d}:{d+3}], v{vO}, s[12:15], s40 offen offset:{tp*64}')
    if stamp: stamp_out(a, f'L_g1end_{tag}', 18, 0)
    a.label(f'L_g1end_{tag}')
    a('s_endpgm')
    a.label(f'L_loader_{tag}')
    def pf(a):
        a('s_load_dwordx2 s[64:65], s[0:1], 40')
        a('s_lshl_b32 s40, s2, 2'); a('s_add_u32 s40, s40, s35'); a('s_lshl_b32 s40, s40, 13')
        a(f's_lshl_b32 s41, s35, 10'); a(f's_add_u32 m0, s41, {cfg.LDS}')
        a('v_lshlrev_b32 v1, 4, v0')
        a('s_waitcnt lgkmcnt(0)')
        srd(a, 68, 64, F*Dm*2)
        for i in range(8):
            a(f'buffer_load_dwordx4 v1, s[68:71], s40 offen offset:{1024*(i & 3)} lds')
            if i == 3: a('s_add_u32 s40, s40, 4096')
        return 8
    loader_part(a, cfg, tag, tmp, pf if prefetch_w2 else None)
    return Rc.p, cfg.LDS + 4096

def gen_g2(a, tag, cfg, stamp=False):
    a('s_load_dwordx4 s[16:19], s[0:1], 40')
    a('s_load_dwordx2 s[64:65], s[0:1], 64')
    a('s_load_dwordx2 s[66:67], s[0:1], 0')
    if stamp: stamp_begin(a)
    a('v_lshrrev_b32 v1, 6, v0'); a('v_and_b32 v0, 63, v0'); a('v_readfirstlane_b32 s20, v1')
    a('s_and_b32 s21, s2, 7'); a('s_lshr_b32 s22, s2, 3')
    a('s_and_b32 s23, s21, 3'); a('s_lshl_b32 s23, s23, 2'); a('s_and_b32 s24, s22, 3'); a('s_add_u32 s23, s23, s24')
    a('s_lshr_b32 s24, s21, 2'); a('s_lshl_b32 s24, s24, 3'); a('s_lshr_b32 s25, s22, 2'); a('s_add_u32 s24, s24, s25')
    a(f's_mul_i32 s26, s23, {cfg.BM*cfg.pitchA}')
    a(f's_mul_i32 s27, s24, {cfg.BN*2}')
    a('s_waitcnt lgkmcnt(0)')
    srd_off(a, 4, 64, WS_H, M*F*2)
    srd(a, 8, 16, F*Dm*2)
    emit_consts(a, cfg)
    tmp = [1,2,3,4]
    a(f's_cmp_ge_u32 s20, {cfg.NC}')
    a(f's_cbranch_scc1 L_loader_{tag}')
    srd(a, 12, 18, M*Dm*2)
    srd(a, 68, 66, M*Dm*2)
    srd_off(a, 72, 64, WS_S, M*Dm*2)
    a(f's_and_b32 s37, s20, {cfg.WN-1}')
    a(f's_lshr_b32 s36, s20, {cfg.WN.bit_length()-1}')
    Rc = Regs(5, 256)
    vO = Rc.alloc()
    a(f'v_and_b32 v{tmp[1]}, 15, v0')
    a(f's_mul_i32 s40, s23, {cfg.BM}'); a(f's_mul_i32 s41, s36, {cfg.TM*16}'); a('s_add_u32 s40, s40, s41')
    a(f'v_add_u32 v{tmp[1]}, s40, v{tmp[1]}')
    a(f'v_lshlrev_b32 v{vO}, 11, v{tmp[1]}')
    a(f'v_lshrrev_b32 v{tmp[1]}, 4, v0'); a(f'v_and_b32 v{tmp[2]}, 1, v{tmp[1]}'); a(f'v_lshl_add_u32 v{vO}, v{tmp[2]}, 5, v{vO}')
    a(f'v_lshrrev_b32 v{tmp[1]}, 5, v0'); a(f'v_lshl_add_u32 v{vO}, v{tmp[1]}, 4, v{vO}')
    a(f's_mul_i32 s40, s37, {cfg.TN*32}'); a('s_add_u32 s40, s40, s27')
    a(f'v_add_u32 v{vO}, s40, v{vO}')
    NP = cfg.TM*(cfg.TN//2)
    XR = Rc.alloc(4*NP, 4); SR = Rc.alloc(4*NP, 4)
    k = 0
    for mt in range(cfg.TM):
        for tp in range(cfg.TN//2):
            a(f's_mov_b32 s40, {mt*16*2048}')
            a(f'buffer_load_dwordx4 v[{XR+4*k}:{XR+4*k+3}], v{vO}, s[68:71], s40 offen offset:{tp*64}')
            a(f'buffer_load_dwordx4 v[{SR+4*k}:{SR+4*k+3}], v{vO}, s[72:75], s40 offen offset:{tp*64}')
            k += 1
    vRA, vRW = emit_consumer_addr(a, cfg, Rc, 0, 's36', 's37', tmp)
    Fr = consumer_regs(cfg, Rc)
    acc = Fr['acc']
    for i in range(4*cfg.TM*cfg.TN): a(f'v_mov_b32 v{acc+i}, 0')
    emit_consumer_loop(a, cfg, Fr, vRA, vRW, 32, 33, 34, tag)
    if stamp: stamp_mid(a)
    silu_consts(a)
    T = Rc.alloc(16, 4)
    a('s_waitcnt vmcnt(0)')
    k = 0
    for mt in range(cfg.TM):
        for tp in range(cfg.TN//2):
            x = XR + 4*k; s = SR + 4*k; k += 1
            a(f'v_permlane16_swap_b32 v{x}, v{x+2}'); a(f'v_permlane16_swap_b32 v{x+1}, v{x+3}')
            a(f'v_permlane16_swap_b32 v{s}, v{s+2}'); a(f'v_permlane16_swap_b32 v{s+1}, v{s+3}')
            for tt in range(2):
                c = acc + 4*(mt*cfg.TN + 2*tp + tt); g = T + 4*tt; u = T + 8
                silu4(a, c, g)
                for j in range(2):
                    a(f'v_lshlrev_b32 v{u+2*j}, 16, v{s+2*tt+j}'); a(f'v_and_b32 v{u+2*j+1}, 0xffff0000, v{s+2*tt+j}')
                    a(f'v_lshlrev_b32 v{u+4+2*j}, 16, v{x+2*tt+j}'); a(f'v_and_b32 v{u+4+2*j+1}, 0xffff0000, v{x+2*tt+j}')
                for j in range(2):
                    a(f'v_pk_fma_f32 v[{g+2*j}:{g+2*j+1}], v[{u+2*j}:{u+2*j+1}], v[{g+2*j}:{g+2*j+1}], v[{u+4+2*j}:{u+4+2*j+1}]')
                for j in range(2):
                    a(f'v_cvt_pk_bf16_f32 v{x+2*tt+j}, v{g+2*j}, v{g+2*j+1}')
            a(f'v_permlane16_swap_b32 v{x}, v{x+2}'); a(f'v_permlane16_swap_b32 v{x+1}, v{x+3}')
            a(f's_mov_b32 s40, {mt*16*2048}')
            a(f'buffer_store_dwordx4 v[{x}:{x+3}], v{vO}, s[12:15], s40 offen offset:{tp*64}')
    if stamp: stamp_out(a, f'L_g2end_{tag}', 64, 1)
    a.label(f'L_g2end_{tag}')
    a('s_endpgm')
    a.label(f'L_loader_{tag}')
    loader_part(a, cfg, tag, tmp)
    return Rc.p, cfg.LDS
```

```python
from asm import *

WS_XN = 0x0000000
WS_H  = 0x0400000
WS_Z  = 0x1200000
WS_WP = 0x1680000
WS_Y  = 0x1B00000
WS_S  = 0x2000000
WS_XCH= 0x2400000
WS_TAB= 0x2C00000
WS_DBG= 0x3000000
ZP = 8448
ZBYTES = 513*ZP
TILE_BYTES = 72*528 + 8*66 + 64
MF = 'v_mfma_f32_32x32x16_bf16'

STAMP = False
SCY = ''
SC = ''
def st_begin(a):
    if STAMP: a('s_memrealtime s[90:91]')
def st_end(a, slot, tag, ws=18, wave='s20'):
    if not STAMP: return
    a('s_waitcnt vmcnt(0) lgkmcnt(0)')
    a('s_memrealtime s[92:93]'); a('s_waitcnt lgkmcnt(0)')
    a(f's_cmp_lg_u32 {wave}, 0'); a(f's_cbranch_scc1 L_stx_{tag}')
    srd_off(a, 12, ws, WS_DBG + slot*0x4000, 0x4000)
    a('v_mov_b32 v10, s90'); a('v_mov_b32 v11, s91'); a('v_mov_b32 v12, s92'); a('v_mov_b32 v13, s93')
    a('v_mov_b32 v14, s92'); a('v_mov_b32 v15, s93'); a('v_mov_b32 v16, 0'); a('v_mov_b32 v17, 0')
    a('s_lshl_b32 s40, s2, 5'); a('v_mov_b32 v20, s40')
    a('v_cmp_eq_u32 vcc, 0, v0'); a('s_and_saveexec_b64 s[62:63], vcc')
    a('buffer_store_dwordx4 v[10:13], v20, s[12:15], 0 offen')
    a('buffer_store_dwordx4 v[14:17], v20, s[12:15], 0 offen offset:16')
    a.label(f'L_stx_{tag}')

def allreduce(a, v, t):
    for r in (8, 4, 2, 1):
        a(f'v_add_f32_dpp v{v}, v{v}, v{v} row_ror:{r} row_mask:0xf bank_mask:0xf')
    a(f'v_mov_b32 v{t}, v{v}'); a(f'v_permlane16_swap_b32 v{v}, v{t}'); a(f'v_add_f32 v{v}, v{v}, v{t}')
    a(f'v_mov_b32 v{t}, v{v}'); a(f'v_permlane32_swap_b32 v{v}, v{t}'); a(f'v_add_f32 v{v}, v{v}, v{t}')

def allreduce2(a, v0, t0, v1, t1):
    for r in (8, 4, 2, 1):
        a(f'v_add_f32_dpp v{v0}, v{v0}, v{v0} row_ror:{r} row_mask:0xf bank_mask:0xf')
        a(f'v_add_f32_dpp v{v1}, v{v1}, v{v1} row_ror:{r} row_mask:0xf bank_mask:0xf')
    for op in ('v_permlane16_swap_b32', 'v_permlane32_swap_b32'):
        a(f'v_mov_b32 v{t0}, v{v0}'); a(f'v_mov_b32 v{t1}, v{v1}')
        a(f'{op} v{v0}, v{t0}'); a(f'{op} v{v1}, v{t1}')
        a(f'v_add_f32 v{v0}, v{v0}, v{t0}'); a(f'v_add_f32 v{v1}, v{v1}, v{t1}')

def f32(x):
    import struct
    return hex(struct.unpack('<I', struct.pack('<f', x))[0])

def emit_cs(a, dc, ds, fE, eadd, fF, phase_reg, t):
    if eadd: a(f'v_add_f32 v{t}, {f32(float(eadd))}, v{fE}'); src = t
    else: src = fE
    if phase_reg is None: a(f'v_mul_f32 v{t}, v{src}, v{fF}')
    else: a(f'v_fma_f32 v{t}, v{src}, v{fF}, {phase_reg}')
    a(f'v_fract_f32 v{t}, v{t}')
    if ds is not None: a(f'v_sin_f32 v{ds}, v{t}')
    if dc is not None: a(f'v_cos_f32 v{dc}, v{t}')

def emit_img(a, dst, fE, e0, fF, phase, t):
    for jj in range(4):
        emit_cs(a, t+1, t+2, fE, e0+jj, fF, phase, t)
        a('s_nop 0')
        a(f'v_cvt_pk_bf16_f32 v{dst+jj}, v{t+1}, v{t+2}')

def cmul_pack(a, dst, re, im, cs, sn, t, n=16):
    for r in range(0, n, 2):
        u = t + 4*((r >> 1) & 1)
        a(f'v_pk_mul_f32 v[{u}:{u+1}], v[{re+r}:{re+r+1}], v[{cs+r}:{cs+r+1}]')
        a(f'v_pk_mul_f32 v[{u+2}:{u+3}], v[{im+r}:{im+r+1}], v[{cs+r}:{cs+r+1}]')
        a(f'v_pk_fma_f32 v[{u}:{u+1}], v[{im+r}:{im+r+1}], v[{sn+r}:{sn+r+1}], v[{u}:{u+1}]')
        a(f'v_pk_fma_f32 v[{u+2}:{u+3}], v[{re+r}:{re+r+1}], v[{sn+r}:{sn+r+1}], v[{u+2}:{u+3}] neg_lo:[1,0,0] neg_hi:[1,0,0]')
        a(f'v_cvt_pk_bf16_f32 v{dst+r}, v{u}, v{u+2}')
        a(f'v_cvt_pk_bf16_f32 v{dst+r+1}, v{u+1}, v{u+3}')

def tile_store_phase(a, vlane, s_w, srd_out, s_pos0, t, tile0, tag):
    vA, vG = t, t+1
    d = t+4
    a(f'v_lshrrev_b32 v{t+2}, 2, v{vlane}'); a(f'v_and_b32 v{t+3}, 3, v{vlane}')
    a(f'v_mul_u32_u24 v{vA}, 72, v{t+2}')
    a(f'v_lshrrev_b32 v{vG}, 3, v{t+2}'); a(f'v_lshl_add_u32 v{vA}, v{vG}, 3, v{vA}')
    a(f'v_lshl_add_u32 v{vA}, v{t+3}, 4, v{vA}')
    a(f's_mul_i32 s40, {s_w}, 1168'); a(f's_add_u32 s40, s40, {tile0}')
    a(f'v_add_u32 v{vA}, s40, v{vA}')
    a(f's_lshl_b32 s40, {s_w}, 4'); a(f'v_add_u32 v{vG}, s40, v{t+2}')
    a(f's_mov_b32 s41, {ZP}'); a(f'v_mul_lo_u32 v{vG}, v{vG}, s41'); a(f'v_lshl_add_u32 v{vG}, v{t+3}, 4, v{vG}')
    for it in range(4):
        a(f'ds_read_b64 v[{d+4*it}:{d+4*it+1}], v{vA} offset:{9344*it}')
        a(f'ds_read_b64 v[{d+4*it+2}:{d+4*it+3}], v{vA} offset:{9344*it+8}')
    a(f's_cmp_lg_u32 {s_w}, 0'); a(f's_cbranch_scc1 L_no5_{tag}')
    a(f'ds_read_b64 v[{d+16}:{d+17}], v{vA} offset:{9344*4}')
    a(f'ds_read_b64 v[{d+18}:{d+19}], v{vA} offset:{9344*4+8}')
    a(f's_add_u32 s41, s{s_pos0}, {4*128*ZP}')
    a('s_waitcnt lgkmcnt(0)')
    a(f'buffer_store_dwordx4 v[{d+16}:{d+19}], v{vG}, s[{srd_out}:{srd_out+3}], s41 offen{SC}')
    a.label(f'L_no5_{tag}')
    for it in range(4):
        a(f's_add_u32 s41, s{s_pos0}, {it*128*ZP}')
        a(f's_waitcnt lgkmcnt({2*(3-it)})')
        a(f'buffer_store_dwordx4 v[{d+4*it}:{d+4*it+3}], v{vG}, s[{srd_out}:{srd_out+3}], s41 offen{SC}')

def gen_row_fwd(a, tag, wg='s2'):
    ROWB = (TILE_BYTES + 255)//256*256
    st_begin(a)
    a('s_load_dwordx2 s[16:17], s[0:1], 0')
    a('s_load_dwordx2 s[18:19], s[0:1], 64')
    a('v_lshrrev_b32 v1, 6, v0'); a('v_and_b32 v0, 63, v0'); a('v_readfirstlane_b32 s20, v1')
    a(f's_and_b32 s21, {wg}, 7'); a(f's_lshr_b32 s22, {wg}, 3')
    a('s_lshr_b32 s23, s22, 1')
    a('s_and_b32 s24, s22, 1'); a('s_lshl_b32 s25, s21, 1'); a('s_add_u32 s24, s24, s25')
    a('s_lshl_b32 s25, s23, 2'); a('s_and_b32 s26, s20, 3'); a('s_add_u32 s25, s25, s26'); a('s_lshl_b32 s25, s25, 6')
    a('s_lshl_b32 s26, s24, 2'); a('s_add_u32 s25, s25, s26'); a('s_lshr_b32 s26, s20, 2'); a('s_add_u32 s25, s25, s26')
    a('s_lshl_b32 s26, s25, 11'); a('s_add_u32 s27, s26, 4096')
    a('s_lshr_b32 s28, s24, 3'); a('s_lshl_b32 s28, s28, 2'); a('s_lshr_b32 s29, s23, 1'); a('s_add_u32 s28, s28, s29'); a('s_lshl_b32 s28, s28, 6')
    a('s_and_b32 s29, s23, 1'); a('s_lshl_b32 s29, s29, 5'); a('s_add_u32 s28, s28, s29')
    a('s_and_b32 s29, s24, 7'); a('s_lshl_b32 s29, s29, 2'); a('s_add_u32 s28, s28, s29'); a('s_lshl_b32 s28, s28, 4')
    a('v_lshlrev_b32 v1, 5, v0')
    a('s_waitcnt lgkmcnt(0)')
    srd(a, 4, 16, 2048*2048)
    R = Regs(8, 256)
    X = [R.alloc(8, 4), R.alloc(8, 4)]
    a(f'buffer_load_dwordx4 v[{X[0]}:{X[0]+3}], v1, s[4:7], s26 offen')
    a(f'buffer_load_dwordx4 v[{X[0]+4}:{X[0]+7}], v1, s[4:7], s26 offen offset:16')
    a(f'buffer_load_dwordx4 v[{X[1]}:{X[1]+3}], v1, s[4:7], s27 offen')
    a(f'buffer_load_dwordx4 v[{X[1]+4}:{X[1]+7}], v1, s[4:7], s27 offen offset:16')
    srd_off(a, 8, 18, WS_XN, 2048*2048)
    srd_off(a, 12, 18, WS_Z, ZBYTES)
    B1 = R.alloc(16, 4); CS = R.alloc(16, 2); SN = R.alloc(16, 2); A2 = R.alloc(16, 4)
    T = R.alloc(8, 4)
    fC32, fC1k, fH, fD, fPh = 2, 3, 4, 5, 6
    a('v_and_b32 v7, 31, v0'); a('v_cvt_f32_u32 v7, v7')
    a(f'v_mul_f32 v{fC32}, {f32(1/32)}, v7'); a(f'v_mul_f32 v{fC1k}, {f32(1/1024)}, v7')
    a(f'v_lshrrev_b32 v{fH}, 5, v0'); a(f'v_cvt_f32_u32 v{fH}, v{fH}')
    a(f'v_mul_f32 v7, {f32(8.0)}, v{fH}')
    for q in range(2):
        for jj in range(4):
            for e in range(2):
                aa = 16*q + 2*jj + e
                a(f'v_add_f32 v{T}, {f32(float(aa))}, v7')
                a(f'v_mul_f32 v{T}, v{T}, v{fC32}'); a(f'v_fract_f32 v{T}, v{T}')
                a(f'v_cos_f32 v{T+1+e}, v{T}'); a(f'v_sin_f32 v{T+3+e}, v{T}')
            a('s_nop 0')
            a(f'v_cvt_pk_bf16_f32 v{B1+4*q+jj}, v{T+1}, v{T+2}')
            a(f'v_cvt_pk_bf16_f32 v{B1+8+4*q+jj}, -v{T+3}, -v{T+4}')
    a(f'v_mul_f32 v7, {f32(4.0)}, v{fH}')
    for r in range(16):
        emit_cs(a, CS+r, SN+r, 7, (r & 3) + 8*(r >> 2), fC1k, None, T)
    a(f'v_and_b32 v{fD}, 31, v0'); a(f'v_lshrrev_b32 v{fD}, 1, v{fD}'); a(f'v_cvt_f32_u32 v{fD}, v{fD}'); a(f'v_mul_f32 v{fD}, {f32(1/32)}, v{fD}')
    a(f'v_and_b32 v{fPh}, 1, v0'); a(f'v_cvt_f32_u32 v{fPh}, v{fPh}'); a(f'v_mul_f32 v{fPh}, {f32(0.25)}, v{fPh}')
    for q in range(4): emit_img(a, A2+4*q, 7, 8*q, fD, f'v{fPh}', T)
    vRB = 2
    vTR, vTW = 3, 4
    a(f's_lshl_b32 s30, s20, 12'); a(f's_add_u32 s30, s30, {ROWB}')
    a(f'v_add_u32 v{vRB}, s30, v1')
    a(f'v_lshrrev_b32 v5, 5, v0'); a(f'v_lshlrev_b32 v5, 3, v5'); a(f'v_lshrrev_b32 v6, 2, v0'); a(f'v_and_b32 v6, 3, v6'); a('v_add_u32 v5, v5, v6')
    a('v_lshlrev_b32 v5, 6, v5'); a('v_lshrrev_b32 v6, 4, v0'); a('v_and_b32 v6, 1, v6'); a('v_lshl_add_u32 v5, v6, 5, v5')
    a('v_and_b32 v6, 3, v0'); a('v_lshl_add_u32 v5, v6, 3, v5'); a(f'v_add_u32 v{vTR}, s30, v5')
    a('v_and_b32 v5, 31, v0'); a('v_lshrrev_b32 v6, 5, v0'); a('v_lshl_add_u32 v5, v6, 6, v5')
    a('v_lshrrev_b32 v6, 3, v5'); a('v_mul_u32_u24 v5, 72, v5'); a('v_lshl_add_u32 v5, v6, 3, v5')
    a('s_lshl_b32 s31, s20, 2'); a(f'v_add_u32 v{vTW}, s31, v5')
    XF = [R.alloc(16, 2), R.alloc(16, 2)]
    S = [R.alloc(4, 2), R.alloc(4, 2)]
    a('s_waitcnt vmcnt(0)')
    for z in range(2):
        for j in range(8):
            a(f'v_lshlrev_b32 v{XF[z]+2*j}, 16, v{X[z]+j}')
            a(f'v_and_b32 v{XF[z]+2*j+1}, 0xffff0000, v{X[z]+j}')
    for z in range(2):
        a(f'v_pk_add_f32 v[{S[z]}:{S[z]+1}], v[{XF[z]}:{XF[z]+1}], v[{XF[z]+2}:{XF[z]+3}]')
    for j in range(2, 8):
        for z in range(2):
            a(f'v_pk_add_f32 v[{S[z]}:{S[z]+1}], v[{S[z]}:{S[z]+1}], v[{XF[z]+2*j}:{XF[z]+2*j+1}]')
    for z in range(2): a(f'v_add_f32 v{S[z]}, v{S[z]}, v{S[z]+1}')
    allreduce2(a, S[0], S[0]+2, S[1], S[1]+2)
    M = [R.alloc(2, 2), R.alloc(2, 2)]
    for z in range(2):
        a(f'v_mul_f32 v{M[z]}, {f32(-1/1024)}, v{S[z]}'); a(f'v_mov_b32 v{M[z]+1}, v{M[z]}')
    for z in range(2):
        for j in range(8):
            a(f'v_pk_add_f32 v[{T+2*z}:{T+2*z+1}], v[{XF[z]+2*j}:{XF[z]+2*j+1}], v[{M[z]}:{M[z]+1}]')
            if j == 0: a(f'v_pk_mul_f32 v[{S[z]}:{S[z]+1}], v[{T+2*z}:{T+2*z+1}], v[{T+2*z}:{T+2*z+1}]')
            else: a(f'v_pk_fma_f32 v[{S[z]}:{S[z]+1}], v[{T+2*z}:{T+2*z+1}], v[{T+2*z}:{T+2*z+1}], v[{S[z]}:{S[z]+1}]')
    for z in range(2): a(f'v_add_f32 v{S[z]}, v{S[z]}, v{S[z]+1}')
    allreduce2(a, S[0], S[0]+2, S[1], S[1]+2)
    for z in range(2):
        s = S[z]
        a(f'v_mul_f32 v{s}, {f32(1/1024)}, v{s}')
        a(f'v_cvt_pk_bf16_f32 v{s}, v{s}, v{s}'); a(f'v_lshlrev_b32 v{s}, 16, v{s}')
        a(f'v_add_f32 v{s}, {f32(1e-5)}, v{s}')
        a(f'v_cvt_pk_bf16_f32 v{s}, v{s}, v{s}'); a(f'v_lshlrev_b32 v{s}, 16, v{s}')
        a(f'v_sqrt_f32 v{s}, v{s}'); a('s_nop 0')
        a(f'v_cvt_pk_bf16_f32 v{s}, v{s}, v{s}'); a(f'v_lshlrev_b32 v{s}, 16, v{s}')
        a(f'v_rcp_f32 v{s}, v{s}'); a('s_nop 0'); a(f'v_mov_b32 v{s+1}, v{s}')
        m = M[z]
        a(f'v_cvt_pk_bf16_f32 v{m}, v{m}, v{m}'); a(f'v_lshlrev_b32 v{m}, 16, v{m}'); a(f'v_mov_b32 v{m+1}, v{m}')
    for z in range(2):
        for j in range(8):
            u = T + 2*((j & 1) + 2*z)
            a(f'v_pk_add_f32 v[{u}:{u+1}], v[{XF[z]+2*j}:{XF[z]+2*j+1}], v[{M[z]}:{M[z]+1}]')
            a(f'v_pk_mul_f32 v[{u}:{u+1}], v[{u}:{u+1}], v[{S[z]}:{S[z]+1}]')
            a(f'v_cvt_pk_bf16_f32 v{X[z]+j}, v{u}, v{u+1}')
    for z in range(2):
        so = 's26' if z == 0 else 's27'
        a(f'ds_write_b128 v{vRB}, v[{X[z]}:{X[z]+3}] offset:{2048*z}')
        a(f'ds_write_b128 v{vRB}, v[{X[z]+4}:{X[z]+7}] offset:{2048*z+16}')
        a(f'buffer_store_dwordx4 v[{X[z]}:{X[z]+3}], v1, s[8:11], {so} offen{SC}')
        a(f'buffer_store_dwordx4 v[{X[z]+4}:{X[z]+7}], v1, s[8:11], {so} offen offset:16{SC}')
    AD = [R.alloc(8, 4), R.alloc(8, 4)]
    D1 = [[R.alloc(16, 4), R.alloc(16, 4)], [R.alloc(16, 4), R.alloc(16, 4)]]
    a('s_waitcnt lgkmcnt(0)')
    for z in range(2):
        for q in range(2):
            for jj in range(2):
                a(f'ds_read_b64_tr_b16 v[{AD[z]+4*q+2*jj}:{AD[z]+4*q+2*jj+1}], v{vTR} offset:{2048*z + 1024*q + 256*jj}')
    for z in range(2):
        a(f's_waitcnt lgkmcnt({4*(1-z)})')
        for sg in range(2):
            d = D1[z][sg]
            a(f'{MF} v[{d}:{d+15}], v[{AD[z]}:{AD[z]+3}], v[{B1+8*sg}:{B1+8*sg+3}], 0')
            a(f'{MF} v[{d}:{d+15}], v[{AD[z]+4}:{AD[z]+7}], v[{B1+8*sg+4}:{B1+8*sg+7}], v[{d}:{d+15}]')
    P = XF
    ALT = S
    for z in range(2):
        d = D1[z][0]
        a(f'v_pk_add_f32 v[{ALT[z]}:{ALT[z]+1}], v[{d}:{d+1}], v[{d+2}:{d+3}]')
        for j in range(2, 8): a(f'v_pk_add_f32 v[{ALT[z]}:{ALT[z]+1}], v[{ALT[z]}:{ALT[z]+1}], v[{d+2*j}:{d+2*j+1}]')
        a(f'v_sub_f32 v{ALT[z]}, v{ALT[z]}, v{ALT[z]+1}')
        a(f'v_mov_b32 v{ALT[z]+1}, v{ALT[z]}'); a(f'v_permlane32_swap_b32 v{ALT[z]}, v{ALT[z]+1}'); a(f'v_add_f32 v{ALT[z]}, v{ALT[z]}, v{ALT[z]+1}')
        a(f'v_mov_b32 v{ALT[z]+1}, 0'); a(f'v_cvt_pk_bf16_f32 v{ALT[z]}, v{ALT[z]}, v{ALT[z]+1}')
        cmul_pack(a, P[z], D1[z][0], D1[z][1], CS, SN, T)
        d2 = D1[z][0]
        for q in range(4):
            a(f'{MF} v[{d2}:{d2+15}], v[{A2+4*q}:{A2+4*q+3}], v[{P[z]+4*q}:{P[z]+4*q+3}], ' + ('0' if q == 0 else f'v[{d2}:{d2+15}]'))
    for z in range(2):
        d2 = D1[z][0]; o = D1[z][1]
        for u in range(8):
            a(f'v_cvt_pk_bf16_f32 v{o+u}, v{d2+2*u}, v{d2+2*u+1}')
            du = 32*(u & 1) + 128*(u >> 1)
            a(f'ds_write_b32 v{vTW}, v{o+u} offset:{73*du + 32*z}')
    a('s_mov_b64 exec, 1')
    a(f'v_mov_b32 v5, s31')
    for z in range(2): a(f'ds_write_b32 v5, v{ALT[z]} offset:{72*512 + 8*64 + 32*z}')
    a('s_mov_b64 exec, -1')
    a('s_waitcnt lgkmcnt(0)'); a('s_barrier')
    tile_store_phase(a, 0, 's20', 12, 28, D1[0][0], 0, tag)
    st_end(a, 2, tag)
    a('s_endpgm')
    return R.p, ROWB + 8*4096

def gen_rinv_tables(a, R, ws_pair, srd_base):
    G = R.alloc(16, 4); CS = R.alloc(16, 2); SN = R.alloc(16, 2); H = R.alloc(16, 4); T = R.alloc(8, 4)
    fC32 = R.alloc(); fC1k = R.alloc(); fH4 = R.alloc(); fPh = R.alloc(); vA = R.alloc()
    assert CS == G+16 and SN == CS+16 and H == SN+16
    a(f'v_and_b32 v{T}, 31, v0')
    a(f'v_lshrrev_b32 v{T+1}, 2, v{T}'); a(f'v_and_b32 v{T+1}, 1, v{T+1}'); a(f'v_lshlrev_b32 v{T+1}, 4, v{T+1}')
    a(f'v_lshrrev_b32 v{T+2}, 3, v{T}'); a(f'v_lshl_add_u32 v{T+1}, v{T+2}, 2, v{T+1}')
    a(f'v_and_b32 v{T+2}, 3, v{T}'); a(f'v_add_u32 v{T+1}, v{T+1}, v{T+2}'); a(f'v_cvt_f32_u32 v{T+1}, v{T+1}')
    a(f'v_mul_f32 v{fC32}, {f32(1/32)}, v{T+1}'); a(f'v_mul_f32 v{fC1k}, {f32(1/1024)}, v{T+1}')
    a(f'v_lshrrev_b32 v{fH4}, 5, v0'); a(f'v_cvt_f32_u32 v{fH4}, v{fH4}'); a(f'v_mul_f32 v{fH4}, {f32(4.0)}, v{fH4}')
    for sg in range(2):
        a(f'v_mov_b32 v{fPh}, {f32(0.25*sg)}')
        for q in range(2): emit_img(a, G+8*sg+4*q, fH4, 8*q, fC32, f'v{fPh}', T)
    for r in range(16): emit_cs(a, CS+r, SN+r, fH4, (r & 3) + 8*(r >> 2), fC1k, None, T)
    a(f'v_and_b32 v{T}, 31, v0'); a(f'v_cvt_f32_u32 v{T}, v{T}'); a(f'v_mul_f32 v{fC32}, {f32(1/32)}, v{T}')
    for q in range(4): emit_img(a, H+4*q, fH4, 8*q, fC32, None, T)
    srd_off(a, srd_base, ws_pair, WS_TAB, 16384)
    a(f'v_lshlrev_b32 v{vA}, 4, v0')
    a('s_mov_b32 s40, 0')
    for c in range(16):
        if c and c % 4 == 0: a('s_add_u32 s40, s40, 4096')
        a(f'buffer_store_dwordx4 v[{G+4*c}:{G+4*c+3}], v{vA}, s[{srd_base}:{srd_base+3}], s40 offen offset:{1024*(c & 3)}')
    return 16

def gen_wprep(a, tag, wg='s2', prefetch_w1=True, tables=False):
    st_begin(a)
    a('s_load_dwordx4 s[16:19], s[0:1], 8')
    a('s_load_dwordx2 s[32:33], s[0:1], 32')
    a('s_load_dwordx2 s[34:35], s[0:1], 64')
    a('v_lshrrev_b32 v1, 6, v0'); a('v_mov_b32 v2, v0'); a('v_and_b32 v0, 63, v0'); a('v_readfirstlane_b32 s20, v1')
    a(f's_and_b32 s21, {wg}, 7'); a(f's_lshr_b32 s22, {wg}, 3'); a('s_and_b32 s22, s22, 15')
    a('s_and_b32 s24, s21, 3'); a('s_lshl_b32 s24, s24, 1'); a('s_and_b32 s25, s22, 1'); a('s_add_u32 s24, s24, s25')
    a('s_lshr_b32 s23, s21, 2'); a('s_lshl_b32 s23, s23, 3'); a('s_lshr_b32 s25, s22, 1'); a('s_add_u32 s23, s23, s25')
    a('s_lshl_b32 s25, s23, 2'); a('s_and_b32 s26, s20, 3'); a('s_add_u32 s25, s25, s26'); a('s_lshl_b32 s25, s25, 5')
    a('s_lshl_b32 s26, s24, 2'); a('s_add_u32 s25, s25, s26'); a('s_lshr_b32 s26, s20, 2'); a('s_add_u32 s25, s25, s26')
    a('s_mul_i32 s26, s25, 1026'); a('s_add_u32 s27, s26, 2052')
    a('s_lshr_b32 s28, s23, 1'); a('s_lshl_b32 s28, s28, 6'); a('s_and_b32 s29, s23, 1'); a('s_lshl_b32 s29, s29, 5'); a('s_add_u32 s28, s28, s29')
    a('s_lshl_b32 s29, s24, 2'); a('s_add_u32 s28, s28, s29'); a('s_lshl_b32 s28, s28, 4')
    a('v_lshlrev_b32 v1, 4, v0'); a('v_mov_b32 v3, 1024')
    a('s_waitcnt lgkmcnt(0)')
    srd(a, 4, 16, 2048*1026); srd(a, 8, 18, 2048*1026)
    R = Regs(8, 256)
    WR = [R.alloc(4, 4), R.alloc(4, 4)]; WI = [R.alloc(4, 4), R.alloc(4, 4)]; NY = [R.alloc(2), R.alloc(2)]
    for z, so in enumerate(('s26', 's27')):
        a(f'buffer_load_dwordx4 v[{WR[z]}:{WR[z]+3}], v1, s[4:7], {so} offen')
        a(f'buffer_load_dwordx4 v[{WI[z]}:{WI[z]+3}], v1, s[8:11], {so} offen')
        a(f'buffer_load_ushort v{NY[z]}, v3, s[4:7], {so} offen')
        a(f'buffer_load_ushort v{NY[z]+1}, v3, s[8:11], {so} offen')
    srd_off(a, 12, 34, WS_WP, ZBYTES)
    npf = 0
    if prefetch_w1:
        srd(a, 36, 32, 1024*7168)
        PF = R.alloc(28, 4)
        a(f's_and_b32 s40, {wg}, 127'); a('s_mul_i32 s40, s40, 57344'); a('v_lshlrev_b32 v2, 4, v2')
        for i in range(7):
            a(f'buffer_load_dwordx4 v[{PF+4*i}:{PF+4*i+3}], v2, s[36:39], s40 offen')
            a('s_add_u32 s40, s40, 8192')
        npf = 7
    O = R.alloc(16, 4)
    a('v_mul_u32_u24 v4, 584, v0'); a('s_lshl_b32 s31, s20, 2'); a('v_add_u32 v4, s31, v4')
    a('s_mov_b32 s29, 0x05040100'); a('s_mov_b32 s30, 0x07060302')
    if tables:
        a(f's_and_b32 s40, {wg}, 127'); a('s_or_b32 s40, s40, s20'); a('s_cmp_lg_u32 s40, 0'); a(f's_cbranch_scc1 L_notab_{tag}')
        gen_rinv_tables(a, R, 34, 44)
        a('s_waitcnt vmcnt(0)')
        a.label(f'L_notab_{tag}')
    a(f's_waitcnt vmcnt({npf})')
    for z in range(2):
        for j in range(4):
            a(f'v_perm_b32 v{O+8*z+2*j}, v{WI[z]+j}, v{WR[z]+j}, s29')
            a(f'v_perm_b32 v{O+8*z+2*j+1}, v{WI[z]+j}, v{WR[z]+j}, s30')
        for e in range(8):
            a(f'ds_write_b32 v4, v{O+8*z+e} offset:{72*e + 32*z}')
    for z in range(2): a(f'v_lshl_or_b32 v{NY[z]}, v{NY[z]+1}, 16, v{NY[z]}')
    a('s_mov_b64 exec, 1')
    a('v_mov_b32 v5, s31')
    for z in range(2): a(f'ds_write_b32 v5, v{NY[z]} offset:{72*512 + 8*64 + 32*z}')
    a('s_mov_b64 exec, -1')
    a('s_waitcnt lgkmcnt(0)'); a('s_barrier')
    t = R.alloc(24, 4)
    tile_store_phase(a, 0, 's20', 12, 28, t, 0, tag)
    st_end(a, 2, tag, ws=34)
    a('s_endpgm')
    return R.p, TILE_BYTES


COL_F32 = 0
COL_F64 = 8192
COL_TWB = 40960
COL_TWF = 0
COL_TWI = 16384
COL_LDS = COL_TWB + 32768

def gen_col(a, tag, s_idx, nwg=32, extra_prefetch=None):
    NWV = 8*nwg
    st_begin(a)
    a('s_load_dwordx2 s[18:19], s[0:1], 64')
    a('v_lshrrev_b32 v1, 6, v0'); a('v_and_b32 v0, 63, v0'); a('v_readfirstlane_b32 s20, v1')
    a(f's_lshl_b32 s21, {s_idx}, 3'); a('s_add_u32 s21, s21, s20')
    a('v_lshlrev_b32 v1, 4, v0')
    a('s_waitcnt lgkmcnt(0)')
    srd_off(a, 4, 18, WS_Z, ZBYTES); srd_off(a, 8, 18, WS_WP, ZBYTES); srd_off(a, 12, 18, WS_Y, ZBYTES)
    R = Regs(8, 256)
    ZA = R.alloc(32, 4); WC = R.alloc(32, 4)
    def load_col(dst, srd_, s_col):
        a(f's_mul_i32 s40, {s_col}, {ZP}')
        for g in range(8):
            if g == 4: a('s_add_u32 s40, s40, 4096')
            a(f'buffer_load_dwordx4 v[{dst+4*g}:{dst+4*g+3}], v1, s[{srd_}:{srd_+3}], s40 offen offset:{1024*(g & 3)}')
    load_col(ZA, 4, 's21'); load_col(WC, 8, 's21')
    F32 = R.alloc(32, 4)
    T = R.alloc(16, 4); TWS = R.alloc(8, 4); FB0 = R.alloc(16, 4)
    fF, fH4, fPh = 2, 3, 4
    a('v_and_b32 v5, 31, v0'); a('v_cvt_f32_u32 v5, v5')
    a(f'v_lshrrev_b32 v{fH4}, 5, v0'); a(f'v_cvt_f32_u32 v{fH4}, v{fH4}'); a(f'v_mul_f32 v{fH4}, {f32(4.0)}, v{fH4}')
    a('s_and_b32 s22, s20, 1'); a('s_lshr_b32 s23, s20, 1'); a('s_and_b32 s23, s23, 1'); a('s_lshr_b32 s24, s20, 2')
    a('s_lshl_b32 s25, s23, 5'); a('v_cvt_f32_u32 v6, s25'); a('v_add_f32 v6, v6, v5'); a(f'v_mul_f32 v{fF}, {f32(1/64)}, v6')
    a('v_cvt_f32_u32 v6, s22'); a(f'v_mul_f32 v{fPh}, {f32(0.25)}, v6')
    a('s_lshl_b32 s25, s24, 5'); a('v_cvt_f32_u32 v6, s25'); a(f'v_add_f32 v6, v6, v{fH4}')
    a('s_lshl_b32 s25, s22, 1'); a('s_add_u32 s25, s25, s23'); a('s_lshl_b32 s25, s25, 3'); a('s_lshl_b32 s26, s24, 2'); a('s_add_u32 s25, s25, s26'); a('s_lshl_b32 s25, s25, 10')
    a('v_add_u32 v7, s25, v1')
    for q in range(4):
        emit_img(a, T+4+4*(q & 1), 6, 8*q, fF, f'v{fPh}', T)
        a(f'ds_write_b128 v7, v[{T+4+4*(q & 1)}:{T+7+4*(q & 1)}] offset:{COL_F64 + 1024*q}')
    a(f'v_mul_f32 v{fF}, {f32(1/32)}, v5')
    a('s_lshr_b32 s25, s20, 1'); a('s_lshl_b32 s26, s25, 3'); a('v_cvt_f32_u32 v6, s26'); a(f'v_add_f32 v6, v6, v{fH4}')
    a('s_lshl_b32 s26, s22, 2'); a('s_add_u32 s26, s26, s25'); a('s_lshl_b32 s26, s26, 10'); a('v_add_u32 v7, s26, v1')
    emit_img(a, T+4, 6, 0, fF, f'v{fPh}', T)
    a(f'ds_write_b128 v7, v[{T+4}:{T+7}] offset:{COL_F32}')
    a('s_and_b32 s25, s20, 3'); a('s_lshl_b32 s26, s25, 3'); a('v_cvt_f32_u32 v6, s26'); a(f'v_add_f32 v6, v6, v{fH4}')
    a('s_lshr_b32 s27, s20, 2'); a('s_lshl_b32 s28, s27, 5'); a('v_cvt_f32_u32 v7, s28')
    a('s_lshl_b32 s28, s27, 3'); a('s_lshl_b32 s29, s25, 1'); a('s_add_u32 s28, s28, s29'); a('s_lshl_b32 s28, s28, 10'); a(f's_add_u32 s28, s28, {COL_TWB}'); a('v_add_u32 v2, s28, v1')
    a(f'v_add_f32 v4, v6, v7'); a(f'v_mul_f32 v{T+15}, {f32(1/2048)}, v5')
    for pr in range(2):
        for e in range(2):
            emit_cs(a, T+4+e, T+6+e, 4, 2*pr+e, T+15, None, T)
        a('s_nop 0')
        a(f'ds_write_b128 v2, v[{T+4}:{T+7}] offset:{COL_TWF + 1024*pr}')
        a('s_nop 1')
    a(f'v_add_f32 v4, v5, v7'); a(f'v_mul_f32 v{T+15}, {f32(1/2048)}, v4')
    for pr in range(2):
        for e in range(2):
            emit_cs(a, T+8+e, T+10+e, 6, 2*pr+e, T+15, None, T)
        a('s_nop 0')
        for e in range(4): a(f'v_mul_f32 v{T+8+e}, {f32(2.0**-20)}, v{T+8+e}')
        a(f'ds_write_b128 v2, v[{T+8}:{T+11}] offset:{COL_TWI + 1024*pr}')
        a('s_nop 1')
    a(f'v_add_u32 v2, {COL_TWB}, v1')
    a('s_waitcnt lgkmcnt(0)'); a('s_barrier')
    for i in range(8): a(f'ds_read_b128 v[{F32+4*i}:{F32+4*i+3}], v1 offset:{COL_F32 + 1024*i}')
    D = [[R.alloc(16, 4), R.alloc(16, 4)], [R.alloc(16, 4), R.alloc(16, 4)]]
    P = R.alloc(32, 4)
    NTW = 4
    def twiddle(dst, base):
        seq = [(blk, pr) for blk in range(2) for pr in range(8)]
        slot = lambda n: T + 8 + 4*(n % NTW)
        for n in range(NTW-1): a(f'ds_read_b128 v[{slot(n)}:{slot(n)+3}], v2 offset:{base + 1024*n}')
        for n, (blk, pr) in enumerate(seq):
            cur = slot(n)
            if n+NTW-1 < len(seq):
                nx = slot(n+NTW-1)
                a(f'ds_read_b128 v[{nx}:{nx+3}], v2 offset:{base + 1024*(n+NTW-1)}')
            a(f's_waitcnt lgkmcnt({min(NTW-1, len(seq)-1-n)})')
            r = 2*pr; re = D[0][blk]+r; im = D[1][blk]+r; u = T + 4*(n & 1)
            a(f'v_pk_mul_f32 v[{u}:{u+1}], v[{re}:{re+1}], v[{cur}:{cur+1}]')
            a(f'v_pk_mul_f32 v[{u+2}:{u+3}], v[{im}:{im+1}], v[{cur}:{cur+1}]')
            a(f'v_pk_fma_f32 v[{u}:{u+1}], v[{im}:{im+1}], v[{cur+2}:{cur+3}], v[{u}:{u+1}]')
            a(f'v_pk_fma_f32 v[{u+2}:{u+3}], v[{re}:{re+1}], v[{cur+2}:{cur+3}], v[{u+2}:{u+3}] neg_lo:[1,0,0] neg_hi:[1,0,0]')
            a(f'v_cvt_pk_bf16_f32 v{dst+16*blk+r}, v{u}, v{u+2}')
            a(f'v_cvt_pk_bf16_f32 v{dst+16*blk+r+1}, v{u+1}, v{u+3}')
    NFB = 8
    def f64_stage(data, data_is_A):
        seq = [(sg, blk, q) for blk in range(2) for sg in range(2) for q in range(8)]
        def img(n): sg, blk, q = seq[n]; return COL_F64 + ((sg*2 + blk)*8 + q)*1024
        slot = lambda n: T + 4*(n % NFB)
        for n in range(NFB-1): a(f'ds_read_b128 v[{slot(n)}:{slot(n)+3}], v1 offset:{img(n)}')
        for n, (sg, blk, q) in enumerate(seq):
            if n+NFB-1 < len(seq):
                sl = slot(n+NFB-1)
                a(f'ds_read_b128 v[{sl}:{sl+3}], v1 offset:{img(n+NFB-1)}')
            a(f's_waitcnt lgkmcnt({min(NFB-1, len(seq)-1-n)})')
            f = slot(n); d = D[sg][blk]; x = data + 4*q
            c = '0' if q == 0 else f'v[{d}:{d+15}]'
            if data_is_A: a(f'{MF} v[{d}:{d+15}], v[{x}:{x+3}], v[{f}:{f+3}], {c}')
            else: a(f'{MF} v[{d}:{d+15}], v[{f}:{f+3}], v[{x}:{x+3}], {c}')
    a.label(f'L_col_{tag}')
    a('s_waitcnt vmcnt(8) lgkmcnt(0)')
    for blk in range(2):
        for sg in range(2):
            d = D[sg][blk]
            for q in range(4):
                x = ZA + 16*blk + 4*q; f = F32 + 16*sg + 4*q
                a(f'{MF} v[{d}:{d+15}], v[{x}:{x+3}], v[{f}:{f+3}], ' + ('0' if q == 0 else f'v[{d}:{d+15}]'))
    a(f's_add_u32 s22, s21, {NWV}')
    a(f's_cmp_lt_u32 s22, 513'); a(f's_cselect_b32 s23, s22, s21')
    twiddle(P, COL_TWF)
    load_col(ZA, 4, 's23')
    f64_stage(P, False)
    a('s_waitcnt vmcnt(8)')
    for blk in range(2):
        for r in range(0, 16, 2):
            w = WC + 16*blk + r; u = T + 8*((r >> 1) & 1); xr = D[0][blk]+r; xi = D[1][blk]+r
            a(f'v_lshlrev_b32 v{u}, 16, v{w}'); a(f'v_lshlrev_b32 v{u+1}, 16, v{w+1}')
            a(f'v_and_b32 v{u+2}, 0xffff0000, v{w}'); a(f'v_and_b32 v{u+3}, 0xffff0000, v{w+1}')
            a(f'v_pk_mul_f32 v[{u+4}:{u+5}], v[{xr}:{xr+1}], v[{u}:{u+1}]')
            a(f'v_pk_mul_f32 v[{u+6}:{u+7}], v[{xr}:{xr+1}], v[{u+2}:{u+3}]')
            a(f'v_pk_fma_f32 v[{u+4}:{u+5}], v[{xi}:{xi+1}], v[{u+2}:{u+3}], v[{u+4}:{u+5}] neg_lo:[1,0,0] neg_hi:[1,0,0]')
            a(f'v_pk_fma_f32 v[{u+6}:{u+7}], v[{xi}:{xi+1}], v[{u}:{u+1}], v[{u+6}:{u+7}]')
            a(f'v_cvt_pk_bf16_f32 v{P+16*blk+r}, v{u+4}, -v{u+6}')
            a(f'v_cvt_pk_bf16_f32 v{P+16*blk+r+1}, v{u+5}, -v{u+7}')
    load_col(WC, 8, 's23')
    f64_stage(P, True)
    twiddle(P, COL_TWI)
    for blk in range(2):
        for sg in range(2):
            d = D[sg][blk]
            for q in range(4):
                x = P + 16*blk + 4*q; f = F32 + 16*sg + 4*q
                a(f'{MF} v[{d}:{d+15}], v[{f}:{f+3}], v[{x}:{x+3}], ' + ('0' if q == 0 else f'v[{d}:{d+15}]'))
    a('s_and_b32 s40, s21, 511'); a('s_cmp_lg_u32 s40, 0'); a(f's_cbranch_scc1 L_nosp_{tag}')
    a('s_mov_b32 s40, 0.5'); a('s_mov_b32 s41, 0.5')
    for sg in range(2):
        for blk in range(2):
            for r in range(0, 16, 2):
                d = D[sg][blk]+r
                a(f'v_pk_mul_f32 v[{d}:{d+1}], v[{d}:{d+1}], s[40:41]')
    a.label(f'L_nosp_{tag}')
    a(f's_mul_i32 s40, s21, {ZP}')
    for blk in range(2):
        for q in range(4):
            o = P + 16*blk + 4*q
            for i in range(4):
                a(f'v_cvt_pk_bf16_f32 v{o+i}, v{D[0][blk]+4*q+i}, v{D[1][blk]+4*q+i}')
            g = 4*blk + q
            if g == 4: a('s_add_u32 s40, s40, 4096')
            a(f'buffer_store_dwordx4 v[{o}:{o+3}], v1, s[12:15], s40 offen offset:{1024*(g & 3)}{SCY}')
    a(f's_add_u32 s21, s21, {NWV}')
    a('s_cmp_lt_u32 s21, 513'); a(f's_cbranch_scc1 L_col_{tag}')
    st_end(a, 3, tag)
    a('s_endpgm')
    return R.p, COL_LDS

def gen_row_inv(a, tag, wg='s2'):
    st_begin(a)
    a('s_load_dwordx2 s[18:19], s[0:1], 64')
    a('v_lshrrev_b32 v1, 6, v0'); a('v_and_b32 v0, 63, v0'); a('v_readfirstlane_b32 s20, v1')
    a(f's_and_b32 s21, {wg}, 7'); a(f's_lshr_b32 s22, {wg}, 3')
    a('s_lshr_b32 s23, s22, 1')
    a('s_and_b32 s24, s22, 1'); a('s_lshl_b32 s25, s21, 1'); a('s_add_u32 s24, s24, s25')
    a('s_lshl_b32 s25, s23, 2'); a('s_and_b32 s26, s20, 3'); a('s_add_u32 s25, s25, s26'); a('s_lshl_b32 s25, s25, 6')
    a('s_lshl_b32 s26, s24, 2'); a('s_add_u32 s25, s25, s26'); a('s_lshr_b32 s26, s20, 2'); a('s_add_u32 s25, s25, s26')
    a('s_lshl_b32 s26, s25, 11'); a('s_add_u32 s27, s26, 4096')
    a('s_lshr_b32 s28, s24, 3'); a('s_lshl_b32 s28, s28, 2'); a('s_lshr_b32 s29, s23, 1'); a('s_add_u32 s28, s28, s29'); a('s_lshl_b32 s28, s28, 6')
    a('s_and_b32 s29, s23, 1'); a('s_lshl_b32 s29, s29, 5'); a('s_add_u32 s28, s28, s29')
    a('s_and_b32 s29, s24, 7'); a('s_lshl_b32 s29, s29, 2'); a('s_add_u32 s28, s28, s29'); a('s_lshl_b32 s28, s28, 4')
    a('s_waitcnt lgkmcnt(0)')
    srd_off(a, 4, 18, WS_Y, ZBYTES); srd_off(a, 8, 18, WS_S, 2048*2048)
    R = Regs(8, 256)
    L = R.alloc(20, 4)
    a('v_lshrrev_b32 v2, 2, v0'); a('v_and_b32 v3, 3, v0')
    a('v_mul_u32_u24 v4, 72, v2'); a('v_lshrrev_b32 v5, 3, v2'); a('v_lshl_add_u32 v4, v5, 3, v4'); a('v_lshl_add_u32 v4, v3, 4, v4')
    a('s_mul_i32 s40, s20, 1168'); a('v_add_u32 v4, s40, v4')
    a('s_lshl_b32 s40, s20, 4'); a('v_add_u32 v5, s40, v2'); a(f's_mov_b32 s41, {ZP}'); a('v_mul_lo_u32 v5, v5, s41'); a('v_lshl_add_u32 v5, v3, 4, v5')
    for it in range(5):
        a(f's_add_u32 s41, s28, {it*128*ZP}')
        a(f'buffer_load_dwordx4 v[{L+4*it}:{L+4*it+3}], v5, s[4:7], s41 offen')
    G = R.alloc(16, 4); CS = R.alloc(16, 2); SN = R.alloc(16, 2); H = R.alloc(16, 4); T = R.alloc(8, 4)
    fC32, fC1k, fH4, fPh, vSg = 2, 3, 6, 7, 1
    a(f'v_and_b32 v{T}, 31, v0')
    a(f'v_lshrrev_b32 v{T+1}, 2, v{T}'); a(f'v_and_b32 v{T+1}, 1, v{T+1}'); a(f'v_lshlrev_b32 v{T+1}, 4, v{T+1}')
    a(f'v_lshrrev_b32 v{T+2}, 3, v{T}'); a(f'v_lshl_add_u32 v{T+1}, v{T+2}, 2, v{T+1}')
    a(f'v_and_b32 v{T+2}, 3, v{T}'); a(f'v_add_u32 v{T+1}, v{T+1}, v{T+2}'); a(f'v_cvt_f32_u32 v{T+1}, v{T+1}')
    a(f'v_mul_f32 v{fC32}, {f32(1/32)}, v{T+1}'); a(f'v_mul_f32 v{fC1k}, {f32(1/1024)}, v{T+1}')
    a(f'v_lshrrev_b32 v{fH4}, 5, v0'); a(f'v_cvt_f32_u32 v{fH4}, v{fH4}'); a(f'v_mul_f32 v{fH4}, {f32(4.0)}, v{fH4}')
    for sg in range(2):
        a(f'v_mov_b32 v{fPh}, {f32(0.25*sg)}')
        for q in range(2): emit_img(a, G+8*sg+4*q, fH4, 8*q, fC32, f'v{fPh}', T)
    for r in range(16): emit_cs(a, CS+r, SN+r, fH4, (r & 3) + 8*(r >> 2), fC1k, None, T)
    a(f'v_and_b32 v{T}, 31, v0'); a(f'v_cvt_f32_u32 v{T}, v{T}'); a(f'v_mul_f32 v{fC32}, {f32(1/32)}, v{T}')
    for q in range(4): emit_img(a, H+4*q, fH4, 8*q, fC32, None, T)
    a(f'v_and_b32 v{T}, 1, v0'); a(f'v_cvt_f32_u32 v{T}, v{T}'); a(f'v_fma_f32 v{vSg}, v{T}, -2.0, 1.0')
    a('v_cmp_gt_u32 vcc, 32, v0'); a(f'v_cndmask_b32 v{vSg}, 0, v{vSg}, vcc')
    for it in range(4):
        a(f's_waitcnt vmcnt({4-it})')
        a(f'ds_write_b64 v4, v[{L+4*it}:{L+4*it+1}] offset:{9344*it}')
        a(f'ds_write_b64 v4, v[{L+4*it+2}:{L+4*it+3}] offset:{9344*it+8}')
    a('s_waitcnt vmcnt(0)')
    a('s_cmp_lg_u32 s20, 0'); a(f's_cbranch_scc1 L_no5_{tag}')
    a(f'ds_write_b64 v4, v[{L+16}:{L+17}] offset:{9344*4}')
    a(f'ds_write_b64 v4, v[{L+18}:{L+19}] offset:{9344*4+8}')
    a.label(f'L_no5_{tag}')
    a('s_waitcnt lgkmcnt(0)'); a('s_barrier')
    a('v_and_b32 v2, 31, v0'); a('v_lshrrev_b32 v3, 5, v0'); a('v_lshl_add_u32 v2, v3, 7, v2')
    a('v_lshrrev_b32 v3, 3, v2'); a('v_mul_u32_u24 v2, 72, v2'); a('v_lshl_add_u32 v2, v3, 3, v2')
    a('s_lshl_b32 s31, s20, 2'); a('v_add_u32 v2, s31, v2'); a('v_mov_b32 v3, s31')
    V = [R.alloc(8, 4), R.alloc(8, 4)]; NQ = [R.alloc(), R.alloc()]
    D1 = [[R.alloc(16, 4), R.alloc(16, 4)], [R.alloc(16, 4), R.alloc(16, 4)]]
    P = [R.alloc(16, 4), R.alloc(16, 4)]
    for z in range(2):
        for q in range(2):
            for jj in range(4):
                a(f'ds_read_b32 v{V[z]+4*q+jj}, v2 offset:{2336*(8*q+jj) + 32*z}')
        a(f'ds_read_b32 v{NQ[z]}, v3 offset:{72*512 + 8*64 + 32*z}')
    a('v_lshlrev_b32 v4, 6, v0'); a('v_and_b32 v4, 0x7ff, v4'); a('v_lshrrev_b32 v5, 5, v0'); a('v_lshl_add_u32 v4, v5, 5, v4')
    for z in range(2):
        a(f's_waitcnt lgkmcnt({9*(1-z)})')
        for sg in range(2):
            d = D1[z][sg]
            a(f'{MF} v[{d}:{d+15}], v[{V[z]}:{V[z]+3}], v[{G+8*sg}:{G+8*sg+3}], 0')
            a(f'{MF} v[{d}:{d+15}], v[{V[z]+4}:{V[z]+7}], v[{G+8*sg+4}:{G+8*sg+7}], v[{d}:{d+15}]')
        a(f'v_lshlrev_b32 v{NQ[z]}, 16, v{NQ[z]}')
    for z in range(2):
        a(f'v_fmac_f32 v{D1[z][0]}, v{NQ[z]}, v{vSg}')
        cmul_pack(a, P[z], D1[z][0], D1[z][1], CS, SN, T)
        d2 = D1[z][0]
        for q in range(4):
            a(f'{MF} v[{d2}:{d2+15}], v[{P[z]+4*q}:{P[z]+4*q+3}], v[{H+4*q}:{H+4*q+3}], ' + ('0' if q == 0 else f'v[{d2}:{d2+15}]'))
    for z in range(2):
        d2 = D1[z][0]; o = D1[z][1]
        for u in range(8): a(f'v_cvt_pk_bf16_f32 v{o+u}, v{d2+2*u}, v{d2+2*u+1}')
        so = 's26' if z == 0 else 's27'
        a(f'buffer_store_dwordx4 v[{o}:{o+3}], v4, s[8:11], {so} offen')
        a(f'buffer_store_dwordx4 v[{o+4}:{o+7}], v4, s[8:11], {so} offen offset:16')
    st_end(a, 4, tag)
    a('s_endpgm')
    return R.p, TILE_BYTES
```

```python
from asm import *

class G16:
    def __init__(s, **kw):
        s.BM=128; s.BN=256; s.WM=1; s.WN=4; s.K=1024; s.S=3; s.NSUB=1; s.pitchA=2048; s.pitchW=7168
        s.NL=4; s.dbufA=False; s.prio=0; s.lds0=0
        s.noload=False; s.nomfma=False; s.a0first=False; s.maxper0=1; s.bat=None; s.maxperb=2; s.nords=False; s.kstatic=''; s.vmcut=0; s.nobar=False; s.unroll=1; s.noadv=False
        s.__dict__.update(kw)
        s.TM = s.BM//s.WM//16; s.TN = s.BN//s.WN//16
        s.NC = s.WM*s.WN
        s.RB = s.BN*2
        s.A_BYTES = s.BM*128; s.W_BYTES = 64*s.RB
        s.SUB = s.A_BYTES + s.W_BYTES
        s.STAGE = s.SUB*s.NSUB
        s.nA = s.A_BYTES//1024; s.nW = s.W_BYTES//1024
        assert s.nA % s.NL == 0 and s.nW % s.NL == 0, (s.nA, s.nW, s.NL)
        s.PA = s.nA//s.NL; s.PW = s.nW//s.NL; s.P = (s.PA+s.PW)*s.NSUB
        s.NST = s.K//(64*s.NSUB)
        assert s.NST*64*s.NSUB == s.K
        s.LDS = s.S*s.STAGE
        s.NSTEP = 2*s.NSUB

S_STG, S_NEG = 43, 44
def emit_consts(a, cfg):
    a(f's_mov_b32 s{S_STG}, {cfg.STAGE}')
    a(f's_mov_b32 s{S_NEG}, {hex((-(cfg.S-1)*cfg.STAGE) & 0xffffffff)}')

def w_mask_code(a, cfg, vk, dst, t):
    if cfg.RB >= 256:
        a(f'v_and_b32 v{dst}, 3, v{vk}')
        a(f'v_lshrrev_b32 v{t}, 1, v{vk}'); a(f'v_and_b32 v{t}, 4, v{t}')
        a(f'v_or_b32 v{dst}, v{dst}, v{t}')
        a(f'v_lshlrev_b32 v{dst}, 1, v{dst}')
    else:
        a(f'v_and_b32 v{dst}, 2, v{vk}')
        a(f'v_lshrrev_b32 v{t}, 1, v{vk}'); a(f'v_and_b32 v{t}, 4, v{t}')
        a(f'v_or_b32 v{dst}, v{dst}, v{t}')

def emit_loader_setup(a, cfg, R, vlane, s_lw, s_m0row_bytes, s_n0_bytes, tmp, s_rowxor=None):
    t0, t1, t2, t3 = tmp
    vA = [R.alloc(name=f'vA{i}') for i in range(cfg.PA)]
    vW = [R.alloc(name=f'vW{i}') for i in range(cfg.PW)]
    for i in range(cfg.PA):
        a(f's_mul_i32 s40, {s_lw}, {8*cfg.PA}')
        a(f's_add_u32 s40, s40, {8*i}')
        a(f'v_lshrrev_b32 v{t0}, 3, v{vlane}')
        a(f'v_add_u32 v{t0}, s40, v{t0}')
        a(f'v_lshrrev_b32 v{t1}, 1, v{t0}')
        a(f'v_xor_b32 v{t1}, v{t1}, v{vlane}')
        a(f'v_and_b32 v{t1}, 7, v{t1}')
        a(f'v_lshlrev_b32 v{t1}, 4, v{t1}')
        if s_rowxor: a(f'v_xor_b32 v{t0}, {s_rowxor}, v{t0}')
        a(f's_mov_b32 s41, {cfg.pitchA}')
        a(f'v_mul_lo_u32 v{t0}, v{t0}, s41')
        a(f'v_add3_u32 v{vA[i]}, v{t0}, v{t1}, {s_m0row_bytes}')
    cpr = cfg.RB//16; rpp = 64//cpr if cpr <= 64 else None
    sh = cpr.bit_length()-1
    for i in range(cfg.PW):
        a(f's_mul_i32 s40, {s_lw}, {rpp*cfg.PW}')
        a(f's_add_u32 s40, s40, {rpp*i}')
        a(f'v_lshrrev_b32 v{t0}, {sh}, v{vlane}')
        a(f'v_add_u32 v{t0}, s40, v{t0}')
        w_mask_code(a, cfg, t0, t1, t3)
        a(f'v_and_b32 v{t2}, {cpr-1}, v{vlane}')
        a(f'v_xor_b32 v{t1}, v{t1}, v{t2}')
        a(f'v_lshlrev_b32 v{t1}, 4, v{t1}')
        a(f's_mov_b32 s41, {cfg.pitchW}')
        a(f'v_mul_lo_u32 v{t0}, v{t0}, s41')
        a(f'v_add3_u32 v{vW[i]}, v{t0}, v{t1}, {s_n0_bytes}')
    return vA, vW

def stage_load_list(cfg, vA, vW, srdA, srdW, s_kA, s_kW, s_lds, s_tmp):
    out = []
    for sub in range(cfg.NSUB):
        sa, sw = s_kA, s_kW
        pre = []
        if sub:
            pre = [f's_add_u32 s{s_tmp}, s{s_kA}, {128*sub}', f's_add_u32 s{s_tmp+1}, s{s_kW}, {64*cfg.pitchW*sub}']
            sa, sw = s_tmp, s_tmp+1
        for i in range(cfg.PA):
            out.append(pre + [f's_add_u32 m0, s{s_lds}, {sub*cfg.SUB + i*1024}', 's_nop 0',
                        f'buffer_load_dwordx4 v{vA[i]}, s[{srdA}:{srdA+3}], s{sa} offen lds']); pre = []
        for i in range(cfg.PW):
            out.append([f's_add_u32 m0, s{s_lds+1}, {sub*cfg.SUB + i*1024}', 's_nop 0',
                        f'buffer_load_dwordx4 v{vW[i]}, s[{srdW}:{srdW+3}], s{sw} offen lds'])
    return out

def emit_loader_loop(a, cfg, vA, vW, srdA, srdW, s_kA, s_kW, s_lds, s_it, s_stage, s_tmp, tag, tail_loads=None, after_pro=None, post_bar=None, pre_last=None, extra=None, extra_pro=None):
    def adv():
        if 'A' not in cfg.kstatic: a(f's_add_u32 s{s_kA}, s{s_kA}, {128*cfg.NSUB}')
        if 'W' not in cfg.kstatic: a(f's_add_u32 s{s_kW}, s{s_kW}, {64*cfg.pitchW*cfg.NSUB}')
        a(f's_add_u32 s{s_stage}, s{s_stage}, 1')
        a(f's_cmp_eq_u32 s{s_stage}, {cfg.S}')
        a(f's_cselect_b32 s42, s{S_NEG}, s{S_STG}')
        a(f's_cselect_b32 s{s_stage}, 0, s{s_stage}')
        a(f's_add_u32 s{s_lds}, s{s_lds}, s42'); a(f's_add_u32 s{s_lds+1}, s{s_lds+1}, s42')
    def loads(force=False):
        if cfg.noload and not force: return
        for g in stage_load_list(cfg, vA, vW, srdA, srdW, s_kA, s_kW, s_lds, s_tmp):
            for x in g: a(x)
    a(f's_mov_b32 s{s_stage}, 0')
    E = 1 if extra else 0
    npro = 0
    for i in range(cfg.S-1 + (1 if cfg.noload else 0)):
        loads(True); adv()
    if extra_pro: npro = extra_pro(a)
    if cfg.noload: a('s_waitcnt vmcnt(0)')
    if after_pro: after_pro(a)
    n_main = cfg.NST - (cfg.S-1)
    a(f's_mov_b32 s{s_it}, 0')
    a(f'L_load_{tag}:')
    a(f's_waitcnt vmcnt({min(63,(cfg.S-2-cfg.vmcut)*cfg.P + (cfg.S-1)*E)})')
    if cfg.nobar:
        a(f's_cmp_lg_u32 s{s_it}, 0'); a(f's_cbranch_scc1 L_nb_{tag}'); a('s_barrier'); a(f'L_nb_{tag}:')
    else: a('s_barrier')
    if post_bar: post_bar(a)
    loads(); adv()
    if extra: extra(a)
    a(f's_add_u32 s{s_it}, s{s_it}, 1')
    a(f's_cmp_lt_u32 s{s_it}, {n_main}')
    a(f's_cbranch_scc1 L_load_{tag}')
    nx = 0
    if tail_loads: nx = tail_loads(a)
    for i in range(cfg.S-1):
        a(f's_waitcnt vmcnt({min(63,(cfg.S-2-i)*cfg.P + nx + (cfg.S-1-i)*E)})')
        if pre_last and i == cfg.S-2: pre_last(a)
        if not cfg.nobar: a('s_barrier')

def emit_consumer_addr(a, cfg, R, vlane, s_wm, s_wn, tmp):
    t0, t1, t2, t3 = tmp
    vRA = [R.alloc(name=f'vRA{ks}') for ks in range(2)]
    vRW = [R.alloc(name=f'vRW{t}') for t in range(cfg.TN)]
    a(f'v_and_b32 v{t0}, 15, v{vlane}')
    a(f's_mul_i32 s40, {s_wm}, {cfg.TM*16}')
    a(f'v_add_u32 v{t0}, s40, v{t0}')
    a(f'v_lshrrev_b32 v{t1}, 1, v{t0}')
    a(f'v_and_b32 v{t1}, 7, v{t1}')
    a(f'v_lshrrev_b32 v{t2}, 4, v{vlane}')
    a(f'v_xor_b32 v{t1}, v{t1}, v{t2}')
    a(f'v_lshlrev_b32 v{t0}, 7, v{t0}')
    if cfg.lds0: a(f'v_add_u32 v{t0}, {cfg.lds0}, v{t0}')
    for ks in range(2):
        a(f'v_xor_b32 v{t2}, {4*ks}, v{t1}')
        a(f'v_lshl_add_u32 v{vRA[ks]}, v{t2}, 4, v{t0}')
    a(f'v_lshrrev_b32 v{t0}, 2, v{vlane}'); a(f'v_and_b32 v{t0}, 3, v{t0}')
    a(f'v_lshrrev_b32 v{t2}, 4, v{vlane}'); a(f'v_lshl_add_u32 v{t0}, v{t2}, 3, v{t0}')
    w_mask_code(a, cfg, t0, t1, t3)
    a(f's_mov_b32 s41, {cfg.RB}'); a(f'v_mul_lo_u32 v{t0}, v{t0}, s41')
    a(f'v_and_b32 v{t2}, 1, v{vlane}'); a(f'v_lshl_add_u32 v{t0}, v{t2}, 3, v{t0}')
    a(f'v_add_u32 v{t0}, {cfg.A_BYTES + cfg.lds0}, v{t0}')
    a(f'v_lshrrev_b32 v{t2}, 1, v{vlane}'); a(f'v_and_b32 v{t2}, 1, v{t2}')
    for t in range(cfg.TN):
        a(f's_mul_i32 s40, {s_wn}, {2*cfg.TN}'); a(f's_add_u32 s40, s40, {2*t}')
        a(f'v_add_u32 v{t3}, s40, v{t2}')
        a(f'v_xor_b32 v{t3}, v{t3}, v{t1}')
        a(f'v_lshl_add_u32 v{vRW[t]}, v{t3}, 4, v{t0}')
    return vRA, vRW

class LgkmTracker:
    def __init__(s, a): s.a = a; s.p = []
    def issue(s, line, tag): s.a(line); s.p.append(tag)
    def need(s, tags):
        idx = -1
        for t in tags:
            if t in s.p: idx = max(idx, len(s.p)-1 - s.p[::-1].index(t))
        if idx < 0: return
        n = len(s.p)-idx-1
        n = min(n, 15)
        s.a(f's_waitcnt lgkmcnt({n})')
        s.p = s.p[len(s.p)-n:] if n else []
    def all(s):
        if s.p: s.a('s_waitcnt lgkmcnt(0)')
        s.p = []

def consumer_regs(cfg, R):
    F = {}
    F['W'] = [R.alloc(4*cfg.TN, 4), R.alloc(4*cfg.TN, 4)]
    if cfg.dbufA: F['A'] = [R.alloc(4*cfg.TM, 4), R.alloc(4*cfg.TM, 4)]
    else:
        x = R.alloc(4*cfg.TM, 4); F['A'] = [x, x]
    F['acc'] = R.alloc(4*cfg.TM*cfg.TN, 4)
    return F

def step_reads(cfg, F, vRA, vRW, step, par):
    sub, ks = step//2, step & 1
    out = []
    so = sub*cfg.SUB
    for t in range(cfg.TN):
        for j in range(2):
            r = F['W'][par] + 4*t + 2*j
            off = so + (32*ks + 4*j)*cfg.RB
            out.append((f'ds_read_b64_tr_b16 v[{r}:{r+1}], v{vRW[t]} offset:{off}', ('W', par, t, j), -1))
    for mt in range(cfg.TM):
        r = F['A'][par] + 4*mt
        e = -1 if cfg.dbufA else (mt+1)*cfg.TN - 1
        out.append((f'ds_read_b128 v[{r}:{r+3}], v{vRA[ks]} offset:{so + mt*2048}', ('A', par if cfg.dbufA else 0, mt), e))
    if cfg.a0first and cfg.dbufA:
        nw = 2*cfg.TN
        out = [out[nw]] + out[:nw] + out[nw+1:]
    if cfg.nords: out = []
    return out

def emit_step(a, cfg, T, F, par, reads, barrier_at=None, pre_barrier=None, extra=None, maxper=1):
    acc = F['acc']; pend = list(reads); idx = 0
    extra = list(extra or [])
    for mt in range(cfg.TM):
        for t in range(cfg.TN):
            if barrier_at is not None and idx == barrier_at:
                for x in extra: a(x)
                extra = []
                T.all()
                if pre_barrier:
                    for x in pre_barrier: a(x)
                if not cfg.nobar: a('s_barrier')
            T.need([('W', par, t, 0), ('W', par, t, 1), ('A', par if cfg.dbufA else 0, mt)])
            c = acc + 4*(mt*cfg.TN + t); w = F['W'][par] + 4*t; x = F['A'][par] + 4*mt
            if not cfg.nomfma:
                a(f'v_mfma_f32_16x16x32_bf16 v[{c}:{c+3}], v[{w}:{w+3}], v[{x}:{x+3}], v[{c}:{c+3}]')
            n = 0
            if barrier_at is None or idx >= barrier_at:
                k = 0
                while k < len(pend) and n < maxper:
                    if pend[k][2] <= idx:
                        T.issue(pend[k][0], pend[k][1]); pend.pop(k); n += 1
                    else: k += 1
            if n == 0 and extra: a(extra.pop(0))
            idx += 1
    for p in pend: T.issue(p[0], p[1])
    for x in extra: a(x)

def emit_consumer_loop(a, cfg, F, vRA, vRW, s_it, s_stage, s_delta, tag, pre_barrier=None, before_last=None, per_iter=None):
    NM = cfg.TM*cfg.TN
    T = LgkmTracker(a)
    a('s_barrier')
    if getattr(cfg,'stampfirst',False): a('s_memtime s[58:59]'); a('s_memrealtime s[52:53]'); a('s_waitcnt lgkmcnt(0)')
    if getattr(cfg,'stampb0',False): a('s_memtime s[58:59]'); a('s_memrealtime s[94:95]'); a('s_waitcnt lgkmcnt(0)')
    if getattr(cfg,'prio',0): a(f's_setprio {cfg.prio}')
    first = step_reads(cfg, F, vRA, vRW, 0, 0)
    for ln, tg, e in first: T.issue(ln, tg)
    entry = list(T.p)
    T.all()
    a(f's_mov_b32 s{s_it}, 0'); a(f's_mov_b32 s{s_stage}, 0')
    a(f'L_cons_{tag}:')
    if per_iter: per_iter(a)
    adv = [f'v_add_u32 v{r}, s{s_delta}, v{r}' for r in list(vRA)+list(vRW)] if not cfg.noadv else []
    def body(last):
        for step in range(cfg.NSTEP):
            par = step & 1
            if step < cfg.NSTEP-1:
                extra = []
                if step == 0 and not last:
                    extra = [f's_add_u32 s{s_stage}, s{s_stage}, 1', f's_cmp_eq_u32 s{s_stage}, {cfg.S}',
                             f's_cselect_b32 s{s_delta}, s{S_NEG}, s{S_STG}', f's_cselect_b32 s{s_stage}, 0, s{s_stage}']
                    for x in extra: a(x)
                emit_step(a, cfg, T, F, par, step_reads(cfg, F, vRA, vRW, step+1, par ^ 1), maxper=cfg.maxper0)
            elif last:
                emit_step(a, cfg, T, F, par, [])
            else:
                bat = NM//2 if not cfg.dbufA else max(1, NM//4)
                if cfg.bat is not None: bat = cfg.bat
                emit_step(a, cfg, T, F, par, step_reads(cfg, F, vRA, vRW, 0, par ^ 1), barrier_at=bat, extra=adv, maxper=cfg.maxperb, pre_barrier=pre_barrier)
    T.p = []
    start_state = None
    class Dry:
        def __call__(self, s): pass
    a_real = T.a
    T.a = Dry(); a_save = a
    def run(emit, last):
        nonlocal a
        a = emit; T.a = emit
        body(last)
    dry = Dry()
    T.p = []
    run(dry, False)
    st = list(T.p)
    run(dry, False)
    assert st == T.p, (st, T.p)
    T.p = list(st)
    run(a_save, False)
    a = a_save
    a(f's_add_u32 s{s_it}, s{s_it}, 1')
    a(f's_cmp_lt_u32 s{s_it}, {cfg.NST-1}')
    a(f's_cbranch_scc1 L_cons_{tag}')
    T.p = list(st)
    if before_last: before_last(a_save)
    run(a_save, True)
```

```python
from asm import *
from gemm16 import *
from fft import WS_XN, WS_H, WS_S, WS_DBG, WS_XCH, WS_TAB, WS_Y, ZP, ZBYTES, MF, cmul_pack
M=2048; F=3584; Dm=1024
class HP:
    off = WS_H; pitch = F*2

def silu4(a, c, t, pk=True):
    a(f'v_pk_mul_f32 v[{t}:{t+1}], v[{c}:{c+1}], s[46:47]')
    a(f'v_pk_mul_f32 v[{t+2}:{t+3}], v[{c+2}:{c+3}], s[46:47]')
    for j in range(4): a(f'v_exp_f32 v{t+j}, v{t+j}')
    a(f'v_pk_add_f32 v[{t}:{t+1}], v[{t}:{t+1}], s[48:49]')
    a(f'v_pk_add_f32 v[{t+2}:{t+3}], v[{t+2}:{t+3}], s[48:49]')
    for j in range(4): a(f'v_rcp_f32 v{t+j}, v{t+j}')
    a(f'v_pk_mul_f32 v[{t}:{t+1}], v[{c}:{c+1}], v[{t}:{t+1}]')
    a(f'v_pk_mul_f32 v[{t+2}:{t+3}], v[{c+2}:{c+3}], v[{t+2}:{t+3}]')

def silu_consts(a):
    a('s_mov_b32 s46, 0xbfb8aa3b'); a('s_mov_b32 s47, 0xbfb8aa3b'); a('s_mov_b32 s48, 1.0'); a('s_mov_b32 s49, 1.0')

def stamp_begin(a):
    a('s_memrealtime s[52:53]'); a('s_memtime s[58:59]')
def stamp_mid(a):
    a('s_memrealtime s[54:55]'); a('s_memtime s[60:61]')
def stamp_out(a, endlabel, ws_pair=18, slot=0):
    a('s_waitcnt vmcnt(0)')
    a('s_memrealtime s[56:57]')
    a('s_waitcnt lgkmcnt(0)')
    a('s_cmp_lg_u32 s20, 0'); a(f's_cbranch_scc1 {endlabel}')
    srd_off(a, 12, ws_pair, WS_DBG + slot*0x4000, 0x4000)
    a('v_mov_b32 v10, s52'); a('v_mov_b32 v11, s53'); a('v_mov_b32 v12, s54'); a('v_mov_b32 v13, s55')
    a('s_lshl_b32 s40, s2, 5')
    a('s_sub_u32 s60, s60, s58'); a('v_mov_b32 v18, s60'); a('v_mov_b32 v19, 0'); a('v_mov_b32 v17, s57'); a('v_mov_b32 v16, s56'); a('v_mov_b32 v20, s40')
    a('v_cmp_eq_u32 vcc, 0, v0'); a('s_and_saveexec_b64 s[62:63], vcc')
    a('buffer_store_dwordx4 v[10:13], v20, s[12:15], 0 offen')
    a('buffer_store_dwordx4 v[16:19], v20, s[12:15], 0 offen offset:16')

def loader_part(a, cfg, tag, tmp, tail_loads=None, s_rowxor=None, pre=None, **kw):
    a(f's_sub_u32 s35, s20, {cfg.NC}')
    Rl = Regs(5, 256)
    if pre: pre(a, Rl)
    vA, vW = emit_loader_setup(a, cfg, Rl, 0, 's35', 's26', 's27', tmp, s_rowxor)
    a('s_mov_b32 s28, 0'); a('s_mov_b32 s29, 0')
    a(f's_mul_i32 s30, s35, {cfg.PA*1024}')
    a(f's_mul_i32 s31, s35, {cfg.PW*1024}'); a(f's_add_u32 s31, s31, {cfg.A_BYTES}')
    emit_loader_loop(a, cfg, vA, vW, 4, 8, 28, 29, 30, 32, 33, 38, tag, tail_loads, **kw)
    a('s_endpgm')

def gen_g1(a, tag, cfg, stamp=False, prefetch_w2=True, sentinel=False, hsc='', cprefetch=False):
    a('s_load_dwordx2 s[16:17], s[0:1], 32')
    a('s_load_dwordx2 s[18:19], s[0:1], 64')
    if stamp: stamp_begin(a)
    a('v_lshrrev_b32 v1, 6, v0'); a('v_and_b32 v0, 63, v0'); a('v_readfirstlane_b32 s20, v1')
    a('s_and_b32 s21, s2, 7'); a('s_lshr_b32 s22, s2, 3')
    a('s_and_b32 s23, s21, 3'); a('s_lshl_b32 s23, s23, 2'); a('s_and_b32 s24, s22, 3'); a('s_add_u32 s23, s23, s24')
    a('s_lshr_b32 s24, s21, 2'); a('s_mul_i32 s24, s24, 7'); a('s_lshr_b32 s25, s22, 2'); a('s_add_u32 s24, s24, s25')
    a(f's_mul_i32 s26, s23, {cfg.BM*cfg.pitchA}')
    a(f's_mul_i32 s27, s24, {cfg.BN*2}')
    a('s_waitcnt lgkmcnt(0)')
    srd_off(a, 4, 18, WS_XN, M*Dm*2)
    srd(a, 8, 16, Dm*F*2)
    emit_consts(a, cfg)
    tmp = [1,2,3,4]
    a(f's_cmp_ge_u32 s20, {cfg.NC}')
    a(f's_cbranch_scc1 L_loader_{tag}')
    srd_off(a, 12, 18, HP.off, M*HP.pitch)
    a(f's_and_b32 s37, s20, {cfg.WN-1}')
    a(f's_lshr_b32 s36, s20, {cfg.WN.bit_length()-1}')
    Rc = Regs(5, 256)
    per_iter = None
    if cprefetch or sentinel == 'c':
        vD = Rc.alloc(); vL = Rc.alloc()
        a('s_lshl_b32 s66, s2, 2'); a('s_add_u32 s66, s66, s20')
    if cprefetch:
        a('s_load_dwordx2 s[64:65], s[0:1], 40')
        a(f'v_lshlrev_b32 v{vL}, 6, v0'); a('s_lshl_b32 s40, s66, 13')
        a('s_waitcnt lgkmcnt(0)')
        srd(a, 68, 64, F*Dm*2)
        a(f'buffer_load_dword v{vD}, v{vL}, s[68:71], s40 offen')
        a('s_add_u32 s40, s40, 4096')
        a(f'buffer_load_dword v{vD}, v{vL}, s[68:71], s40 offen')
    if sentinel == 'c':
        SE = Rc.alloc(4, 4)
        srd_off(a, 72, 18, WS_XCH, 0x800000)
        for i in range(4): a(f'v_mov_b32 v{SE+i}, -1')
        a(f'v_lshlrev_b32 v{vL}, 4, v0'); a('s_lshl_b32 s67, s66, 10')
        def per_iter(a):
            a(f'buffer_store_dwordx4 v[{SE}:{SE+3}], v{vL}, s[72:75], s67 offen sc1')
            a(f's_add_u32 s67, s67, {896*1024}')
    vRA, vRW = emit_consumer_addr(a, cfg, Rc, 0, 's36', 's37', tmp)
    Fr = consumer_regs(cfg, Rc)
    acc = Fr['acc']
    for i in range(4*cfg.TM*cfg.TN): a(f'v_mov_b32 v{acc+i}, 0')
    emit_consumer_loop(a, cfg, Fr, vRA, vRW, 32, 33, 34, tag, per_iter=per_iter)
    if stamp: stamp_mid(a)
    vO = tmp[0]
    silu_consts(a)
    a(f'v_and_b32 v{tmp[1]}, 15, v0')
    a(f's_mul_i32 s40, s23, {cfg.BM}'); a(f's_mul_i32 s41, s36, {cfg.TM*16}'); a('s_add_u32 s40, s40, s41')
    a(f'v_add_u32 v{tmp[1]}, s40, v{tmp[1]}')
    a(f's_mov_b32 s41, {HP.pitch}')
    a(f'v_mul_lo_u32 v{vO}, v{tmp[1]}, s41')
    a(f'v_lshrrev_b32 v{tmp[1]}, 4, v0'); a(f'v_and_b32 v{tmp[2]}, 1, v{tmp[1]}'); a(f'v_lshl_add_u32 v{vO}, v{tmp[2]}, 5, v{vO}')
    a(f'v_lshrrev_b32 v{tmp[1]}, 5, v0'); a(f'v_lshl_add_u32 v{vO}, v{tmp[1]}, 4, v{vO}')
    a(f's_mul_i32 s40, s37, {cfg.TN*32}'); a('s_add_u32 s40, s40, s27')
    a(f'v_add_u32 v{vO}, s40, v{vO}')
    st = Fr['W'][0]; k = 0; ndst = 3; tb = st + 4*ndst
    for mt in range(cfg.TM):
        for tp in range(cfg.TN//2):
            d = st + (k % ndst)*4; tt = tb + (k % 2)*8; k += 1
            c0 = acc + 4*(mt*cfg.TN + 2*tp); c1 = c0 + 4
            silu4(a, c0, tt); silu4(a, c1, tt+4)
            for j in range(4): a(f'v_cvt_pk_bf16_f32 v{d+j}, v{tt+2*j}, v{tt+2*j+1}')
            a(f'v_permlane16_swap_b32 v{d}, v{d+2}')
            a(f'v_permlane16_swap_b32 v{d+1}, v{d+3}')
            a(f's_mov_b32 s40, {mt*16*HP.pitch}')
            a(f'buffer_store_dwordx4 v[{d}:{d+3}], v{vO}, s[12:15], s40 offen offset:{tp*64}{hsc}')
    if stamp: stamp_out(a, f'L_g1end_{tag}', 18, 0)
    a.label(f'L_g1end_{tag}')
    a('s_endpgm')
    a.label(f'L_loader_{tag}')
    def pf(a):
        a('s_load_dwordx2 s[64:65], s[0:1], 40')
        a('s_lshl_b32 s40, s2, 2'); a('s_add_u32 s40, s40, s35'); a('s_lshl_b32 s40, s40, 13')
        a(f's_lshl_b32 s41, s35, 10'); a(f's_add_u32 m0, s41, {cfg.LDS}')
        a('v_lshlrev_b32 v1, 4, v0')
        a('s_waitcnt lgkmcnt(0)')
        srd(a, 68, 64, F*Dm*2)
        for i in range(8):
            a(f'buffer_load_dwordx4 v1, s[68:71], s40 offen offset:{1024*(i & 3)} lds')
            if i == 3: a('s_add_u32 s40, s40, 4096')
        if sentinel is not True: return 8
        srd_off(a, 72, 18, WS_XCH, 0x800000)
        for i in range(4): a(f'v_mov_b32 v{8+i}, -1')
        a('s_lshl_b32 s40, s2, 2'); a('s_add_u32 s40, s40, s35'); a('s_mul_i32 s40, s40, 10240')
        for i in range(10):
            a(f'buffer_store_dwordx4 v[8:11], v1, s[72:75], s40 offen offset:{1024*(i & 3)} sc1')
            if i & 3 == 3: a('s_add_u32 s40, s40, 4096')
        return 18
    if sentinel == 'l':
        X = {}
        def pre(a, Rl):
            X['d'] = Rl.alloc(); X['l'] = Rl.alloc(); X['m'] = Rl.alloc(); X['se'] = Rl.alloc(4, 4)
            a('s_load_dwordx2 s[64:65], s[0:1], 40')
            a('s_lshl_b32 s66, s2, 2'); a('s_add_u32 s66, s66, s35')
            a(f'v_lshlrev_b32 v{X["l"]}, 6, v0'); a(f'v_lshlrev_b32 v{X["m"]}, 4, v0')
            for i in range(4): a(f'v_mov_b32 v{X["se"]+i}, -1')
            srd_off(a, 72, 18, WS_XCH, 0x800000)
            a('s_lshl_b32 s67, s66, 10')
            a('s_waitcnt lgkmcnt(0)')
            srd(a, 68, 64, F*Dm*2)
        def extra_pro(a):
            a('s_lshl_b32 s40, s66, 13')
            a(f'buffer_load_dword v{X["d"]}, v{X["l"]}, s[68:71], s40 offen')
            a('s_add_u32 s40, s40, 4096')
            a(f'buffer_load_dword v{X["d"]}, v{X["l"]}, s[68:71], s40 offen')
            return 2
        def extra(a):
            a(f'buffer_store_dwordx4 v[{X["se"]}:{X["se"]+3}], v{X["m"]}, s[72:75], s67 offen sc1')
            a(f's_add_u32 s67, s67, {896*1024}')
        loader_part(a, cfg, tag, tmp, None, pre=pre, extra=extra, extra_pro=extra_pro)
    else:
        loader_part(a, cfg, tag, tmp, pf if prefetch_w2 else None)
    return Rc.p, cfg.LDS + (8192 if prefetch_w2 and sentinel != 'l' else 0)

def gen_g2(a, tag, cfg, stamp=False):
    a('s_load_dwordx4 s[16:19], s[0:1], 40')
    a('s_load_dwordx2 s[64:65], s[0:1], 64')
    a('s_load_dwordx2 s[66:67], s[0:1], 0')
    if stamp: stamp_begin(a)
    a('v_lshrrev_b32 v1, 6, v0'); a('v_and_b32 v0, 63, v0'); a('v_readfirstlane_b32 s20, v1')
    a('s_and_b32 s21, s2, 7'); a('s_lshr_b32 s22, s2, 3')
    a('s_and_b32 s23, s21, 3'); a('s_lshl_b32 s23, s23, 2'); a('s_and_b32 s24, s22, 3'); a('s_add_u32 s23, s23, s24')
    a('s_lshr_b32 s24, s21, 2'); a('s_lshl_b32 s24, s24, 3'); a('s_lshr_b32 s25, s22, 2'); a('s_add_u32 s24, s24, s25')
    a(f's_mul_i32 s26, s23, {cfg.BM*cfg.pitchA}')
    a(f's_mul_i32 s27, s24, {cfg.BN*2}')
    a('s_waitcnt lgkmcnt(0)')
    srd_off(a, 4, 64, HP.off, M*HP.pitch)
    srd(a, 8, 16, F*Dm*2)
    emit_consts(a, cfg)
    tmp = [1,2,3,4]
    a(f's_cmp_ge_u32 s20, {cfg.NC}')
    a(f's_cbranch_scc1 L_loader_{tag}')
    srd(a, 12, 18, M*Dm*2)
    srd(a, 68, 66, M*Dm*2)
    srd_off(a, 72, 64, WS_S, M*Dm*2)
    a(f's_and_b32 s37, s20, {cfg.WN-1}')
    a(f's_lshr_b32 s36, s20, {cfg.WN.bit_length()-1}')
    Rc = Regs(5, 256)
    vO = Rc.alloc()
    a(f'v_and_b32 v{tmp[1]}, 15, v0')
    a(f's_mul_i32 s40, s23, {cfg.BM}'); a(f's_mul_i32 s41, s36, {cfg.TM*16}'); a('s_add_u32 s40, s40, s41')
    a(f'v_add_u32 v{tmp[1]}, s40, v{tmp[1]}')
    a(f'v_lshlrev_b32 v{vO}, 11, v{tmp[1]}')
    a(f'v_lshrrev_b32 v{tmp[1]}, 4, v0'); a(f'v_and_b32 v{tmp[2]}, 1, v{tmp[1]}'); a(f'v_lshl_add_u32 v{vO}, v{tmp[2]}, 5, v{vO}')
    a(f'v_lshrrev_b32 v{tmp[1]}, 5, v0'); a(f'v_lshl_add_u32 v{vO}, v{tmp[1]}, 4, v{vO}')
    a(f's_mul_i32 s40, s37, {cfg.TN*32}'); a('s_add_u32 s40, s40, s27')
    a(f'v_add_u32 v{vO}, s40, v{vO}')
    NP = cfg.TM*(cfg.TN//2)
    XR = Rc.alloc(4*NP, 4); SR = Rc.alloc(4*NP, 4)
    k = 0
    for mt in range(cfg.TM):
        for tp in range(cfg.TN//2):
            a(f's_mov_b32 s40, {mt*16*2048}')
            a(f'buffer_load_dwordx4 v[{XR+4*k}:{XR+4*k+3}], v{vO}, s[68:71], s40 offen offset:{tp*64}')
            a(f'buffer_load_dwordx4 v[{SR+4*k}:{SR+4*k+3}], v{vO}, s[72:75], s40 offen offset:{tp*64}')
            k += 1
    vRA, vRW = emit_consumer_addr(a, cfg, Rc, 0, 's36', 's37', tmp)
    Fr = consumer_regs(cfg, Rc)
    acc = Fr['acc']
    for i in range(4*cfg.TM*cfg.TN): a(f'v_mov_b32 v{acc+i}, 0')
    emit_consumer_loop(a, cfg, Fr, vRA, vRW, 32, 33, 34, tag)
    if stamp: stamp_mid(a)
    silu_consts(a)
    T = Rc.alloc(16, 4)
    a('s_waitcnt vmcnt(0)')
    k = 0
    for mt in range(cfg.TM):
        for tp in range(cfg.TN//2):
            x = XR + 4*k; s = SR + 4*k; k += 1
            a(f'v_permlane16_swap_b32 v{x}, v{x+2}'); a(f'v_permlane16_swap_b32 v{x+1}, v{x+3}')
            a(f'v_permlane16_swap_b32 v{s}, v{s+2}'); a(f'v_permlane16_swap_b32 v{s+1}, v{s+3}')
            for tt in range(2):
                c = acc + 4*(mt*cfg.TN + 2*tp + tt); g = T + 4*tt; u = T + 8
                silu4(a, c, g)
                for j in range(2):
                    a(f'v_lshlrev_b32 v{u+2*j}, 16, v{s+2*tt+j}'); a(f'v_and_b32 v{u+2*j+1}, 0xffff0000, v{s+2*tt+j}')
                    a(f'v_lshlrev_b32 v{u+4+2*j}, 16, v{x+2*tt+j}'); a(f'v_and_b32 v{u+4+2*j+1}, 0xffff0000, v{x+2*tt+j}')
                for j in range(2):
                    a(f'v_pk_fma_f32 v[{g+2*j}:{g+2*j+1}], v[{u+2*j}:{u+2*j+1}], v[{g+2*j}:{g+2*j+1}], v[{u+4+2*j}:{u+4+2*j+1}]')
                for j in range(2):
                    a(f'v_cvt_pk_bf16_f32 v{x+2*tt+j}, v{g+2*j}, v{g+2*j+1}')
            a(f'v_permlane16_swap_b32 v{x}, v{x+2}'); a(f'v_permlane16_swap_b32 v{x+1}, v{x+3}')
            a(f's_mov_b32 s40, {mt*16*2048}')
            a(f'buffer_store_dwordx4 v[{x}:{x+3}], v{vO}, s[12:15], s40 offen offset:{tp*64}')
    if stamp: stamp_out(a, f'L_g2end_{tag}', 64, 1)
    a.label(f'L_g2end_{tag}')
    a('s_endpgm')
    a.label(f'L_loader_{tag}')
    loader_part(a, cfg, tag, tmp)
    return Rc.p, cfg.LDS


def gen_g2s(a, tag, cfg, stamp=False, l2pf=0, SIG=18, mark=False, nopre=False):
    assert cfg.BM == 128 and cfg.BN == 128 and cfg.WM == 2 and cfg.WN == 2 and cfg.S == 4 and cfg.NSUB == 1
    TILE = 3*cfg.STAGE; TAB = TILE + 16384; NYQ = cfg.LDS
    a('s_load_dwordx4 s[16:19], s[0:1], 40')
    a('s_load_dwordx4 s[84:87], s[0:1], 56')
    a('s_load_dwordx2 s[66:67], s[0:1], 0')
    if stamp: a('s_memrealtime s[52:53]'); cfg.stampb0 = True
    a('v_lshrrev_b32 v1, 6, v0'); a('v_and_b32 v0, 63, v0'); a('v_readfirstlane_b32 s20, v1')
    a('s_and_b32 s21, s2, 7'); a('s_lshr_b32 s22, s2, 3')
    a('s_lshr_b32 s25, s21, 2')
    a('s_and_b32 s23, s21, 3'); a('s_lshl_b32 s23, s23, 2'); a('s_and_b32 s24, s22, 3'); a('s_add_u32 s23, s23, s24')
    a('s_lshr_b32 s24, s22, 2')
    a(f's_mul_i32 s26, s23, {cfg.BM*cfg.pitchA}'); a(f's_mul_i32 s40, s25, {cfg.K*2}'); a('s_add_u32 s26, s26, s40')
    a(f's_mul_i32 s27, s24, {cfg.BN*2}'); a(f's_mul_i32 s40, s25, {cfg.K*cfg.pitchW}'); a('s_add_u32 s27, s27, s40')
    a('s_lshr_b32 s88, s23, 1')
    a('s_lshl_b32 s89, s25, 4'); a('s_and_b32 s40, s23, 1'); a('s_lshl_b32 s40, s40, 3'); a('s_add_u32 s89, s89, s40'); a('s_add_u32 s89, s89, s24')
    a('s_waitcnt lgkmcnt(0)')
    a('s_mov_b32 s64, s86'); a('s_mov_b32 s65, s87')
    srd_off(a, 4, 64, HP.off, M*HP.pitch)
    srd(a, 8, 16, F*Dm*2)
    emit_consts(a, cfg)
    srd(a, 80, 84, 256)
    tmp = [1,2,3,4]
    a(f's_cmp_ge_u32 s20, {cfg.NC}')
    a(f's_cbranch_scc1 L_loader_{tag}')
    srd(a, 12, 18, M*Dm*2)
    srd(a, 68, 66, M*Dm*2)
    srd_off(a, 72, 64, WS_S, M*Dm*2)
    srd_off(a, 76, 64, WS_XCH, 0x800000)
    a(f's_and_b32 s37, s20, {cfg.WN-1}')
    a(f's_lshr_b32 s36, s20, {cfg.WN.bit_length()-1}')
    Rc = Regs(5, 256)
    vO = Rc.alloc(); vL16 = Rc.alloc()
    a(f'v_lshlrev_b32 v{vL16}, 4, v0')
    a(f'v_and_b32 v{tmp[1]}, 15, v0')
    a(f's_mul_i32 s40, s23, {cfg.BM}'); a(f's_mul_i32 s41, s36, {cfg.TM*16}'); a('s_add_u32 s40, s40, s41')
    a('s_lshl_b32 s41, s25, 5'); a('s_add_u32 s40, s40, s41')
    a(f'v_add_u32 v{tmp[1]}, s40, v{tmp[1]}')
    a(f'v_lshlrev_b32 v{vO}, 11, v{tmp[1]}')
    a(f'v_lshrrev_b32 v{tmp[1]}, 4, v0'); a(f'v_and_b32 v{tmp[2]}, 1, v{tmp[1]}'); a(f'v_lshl_add_u32 v{vO}, v{tmp[2]}, 5, v{vO}')
    a(f'v_lshrrev_b32 v{tmp[1]}, 5, v0'); a(f'v_lshl_add_u32 v{vO}, v{tmp[1]}, 4, v{vO}')
    a(f's_mul_i32 s40, s37, {cfg.TN*32}'); a(f's_mul_i32 s41, s24, {cfg.BN*2}'); a('s_add_u32 s40, s40, s41')
    a(f'v_add_u32 v{vO}, s40, v{vO}')
    vRA, vRW = emit_consumer_addr(a, cfg, Rc, 0, 's36', 's37', tmp)
    acc = Rc.alloc(4*cfg.TM*cfg.TN, 4)
    for i in range(4*cfg.TM*cfg.TN): a(f'v_mov_b32 v{acc+i}, 0')
    U = Rc.p
    Fr = {'acc': acc, 'W': [Rc.alloc(16, 4), Rc.alloc(16, 4)], 'A': [Rc.alloc(16, 4), Rc.alloc(16, 4)]}
    NP = 4
    XR = Rc.alloc(4*NP, 4); SR = Rc.alloc(4*NP, 4); T = Rc.alloc(16, 4)
    vPF = Rc.alloc(); vPD = Rc.alloc()
    Rr = Regs(U, 256)
    G = Rr.alloc(16, 4); CS = Rr.alloc(16, 2); SN = Rr.alloc(16, 2); H = Rr.alloc(16, 4); TT = Rr.alloc(8, 4)
    V = [Rr.alloc(8, 4), Rr.alloc(8, 4)]; NQ = [Rr.alloc(), Rr.alloc()]; vSg = Rr.alloc(); vV = Rr.alloc(); vN = Rr.alloc(); vS = Rr.alloc()
    D1 = [[Rr.alloc(16, 4), Rr.alloc(16, 4)], [Rr.alloc(16, 4), Rr.alloc(16, 4)]]
    top = max(Rr.p, Rc.p)
    a('s_lshl_b32 s40, s88, 2'); a('s_add_u32 s40, s40, s20'); a('s_lshl_b32 s40, s40, 6'); a('s_lshl_b32 s41, s89, 1'); a('s_add_u32 s40, s40, s41')
    a('s_lshl_b32 s90, s40, 11'); a('s_add_u32 s91, s90, 2048')
    a(f'v_and_b32 v{vV}, 31, v0'); a(f'v_lshrrev_b32 v{vN}, 5, v0'); a(f'v_lshl_add_u32 v{vV}, v{vN}, 7, v{vV}')
    a(f'v_lshlrev_b32 v{vV}, 5, v{vV}'); a('s_lshl_b32 s40, s20, 2'); a(f's_add_u32 s41, s40, {TILE}'); a(f'v_add_u32 v{vV}, s41, v{vV}')
    a(f's_add_u32 s41, s40, {NYQ}'); a(f'v_mov_b32 v{vN}, s41')
    a(f'v_lshlrev_b32 v{vS}, 6, v0'); a(f'v_and_b32 v{vS}, 0x7ff, v{vS}'); a(f'v_lshrrev_b32 v{TT}, 5, v0'); a(f'v_lshl_add_u32 v{vS}, v{TT}, 5, v{vS}')
    a(f'v_and_b32 v{TT}, 1, v0'); a(f'v_cvt_f32_u32 v{TT}, v{TT}'); a(f'v_fma_f32 v{vSg}, v{TT}, -2.0, 1.0')
    a('v_cmp_gt_u32 vcc, 32, v0'); a(f'v_cndmask_b32 v{vSg}, 0, v{vSg}, vcc')
    a(f'v_add_u32 v{TT+1}, {TAB}, v{vL16}')
    a('s_barrier')
    T_ = LgkmTracker(a)
    for c in range(4): T_.issue(f'ds_read_b128 v[{G+4*c}:{G+4*c+3}], v{TT+1} offset:{1024*c}', ('G', c))
    for z in range(2):
        for q in range(2):
            for jj in range(4):
                T_.issue(f'ds_read_b32 v{V[z]+4*q+jj}, v{vV} offset:{1024*(8*q+jj) + 16*z}', ('V', z))
        T_.issue(f'ds_read_b32 v{NQ[z]}, v{vN} offset:{16*z}', ('N', z))
        if z == 0:
            T_.need([('G', c) for c in range(4)])
    for z in range(2):
        T_.need([('V', z), ('N', z)])
        for sg in range(2):
            d = D1[z][sg]
            a(f'{MF} v[{d}:{d+15}], v[{V[z]}:{V[z]+3}], v[{G+8*sg}:{G+8*sg+3}], 0')
            a(f'{MF} v[{d}:{d+15}], v[{V[z]+4}:{V[z]+7}], v[{G+8*sg+4}:{G+8*sg+7}], v[{d}:{d+15}]')
        if z == 0:
            for c in range(4, 12): T_.issue(f'ds_read_b128 v[{G+4*c}:{G+4*c+3}], v{TT+1} offset:{1024*c}', ('C', c))
    for c in range(12, 16): T_.issue(f'ds_read_b128 v[{G+4*c}:{G+4*c+3}], v{TT+1} offset:{1024*c}', ('H', c))
    for z in range(2): a(f'v_lshlrev_b32 v{NQ[z]}, 16, v{NQ[z]}')
    T_.need([('C', c) for c in range(4, 12)])
    for z in range(2):
        a(f'v_fmac_f32 v{D1[z][0]}, v{NQ[z]}, v{vSg}')
        cmul_pack(a, D1[z][1], D1[z][0], D1[z][1], CS, SN, TT)
        if z == 0: T_.all()
        d2 = D1[z][0]; P = D1[z][1]
        for q in range(4):
            a(f'{MF} v[{d2}:{d2+15}], v[{P+4*q}:{P+4*q+3}], v[{H+4*q}:{H+4*q+3}], ' + ('0' if q == 0 else f'v[{d2}:{d2+15}]'))
    for z in range(2):
        d2 = D1[z][0]; o = D1[z][1]
        for u in range(8): a(f'v_cvt_pk_bf16_f32 v{o+u}, v{d2+2*u}, v{d2+2*u+1}')
        so = 's90' if z == 0 else 's91'
        a(f'buffer_store_dwordx4 v[{o}:{o+3}], v{vS}, s[72:75], {so} offen sc1')
        a(f'buffer_store_dwordx4 v[{o+4}:{o+7}], v{vS}, s[72:75], {so} offen offset:16 sc1')
    a('s_lshl_b32 s40, s23, 3'); a('s_add_u32 s40, s40, s24'); a('s_lshl_b32 s40, s40, 3'); a('s_add_u32 s40, s40, s20')
    a('s_lshl_b32 s41, s25, 2'); a('s_add_u32 s38, s40, s41'); a('s_lshl_b32 s38, s38, 13')
    a('s_xor_b32 s39, s38, 0x8000')
    pre_bar = [f's_cmp_lg_u32 s32, {SIG-1}', f's_cbranch_scc1 L_nw_{tag}', 's_waitcnt vmcnt(0)', f'L_nw_{tag}:']
    for i in range(4): a(f'v_mov_b32 v{XR+i}, -1')
    a('s_mov_b32 s96, s38')
    def per_iter(a):
        a('s_cmp_ge_u32 s32, 4'); a(f's_cbranch_scc1 L_nomark_{tag}')
        a(f'buffer_store_dwordx4 v[{XR}:{XR+3}], v{vL16}, s[76:79], s96 offen sc1')
        a(f'buffer_store_dwordx4 v[{XR}:{XR+3}], v{vL16}, s[76:79], s96 offen offset:1024 sc1')
        a('s_add_u32 s96, s96, 2048')
        a.label(f'L_nomark_{tag}')
    def before_last(a):
        k = 0
        for mt in range(2):
            for tp in range(2):
                a(f's_mov_b32 s40, {mt*16*2048}')
                a(f'buffer_load_dwordx4 v[{XR+4*k}:{XR+4*k+3}], v{vO}, s[68:71], s40 offen offset:{tp*64}')
                a(f'buffer_load_dwordx4 v[{SR+4*k}:{SR+4*k+3}], v{vO}, s[72:75], s40 offen offset:{tp*64} sc1')
                k += 1
    emit_consumer_loop(a, cfg, Fr, vRA, vRW, 32, 33, 34, tag, pre_barrier=None if nopre else pre_bar, before_last=before_last, per_iter=per_iter if mark else None)
    if stamp: stamp_mid(a)
    a('s_add_u32 s41, s39, 4096')
    for r in range(8):
        c = acc + 32 + 4*r
        a(f'buffer_store_dwordx4 v[{c}:{c+3}], v{vL16}, s[76:79], {"s39" if r < 4 else "s41"} offen offset:{1024*(r & 3)} sc1')
    RX = Fr['W'][0]
    assert Fr['W'][1] == RX+16 and Fr['A'][0] == RX+32
    silu_consts(a)
    a('s_add_u32 s41, s38, 4096'); a('s_mov_b32 s42, 0')
    a.label(f'L_xch_{tag}')
    for r in range(8):
        a(f'buffer_load_dwordx4 v[{RX+4*r}:{RX+4*r+3}], v{vL16}, s[76:79], {"s38" if r < 4 else "s41"} offen offset:{1024*(r & 3)} sc1')
    a('s_add_u32 s42, s42, 1')
    q = RX + 32
    a('s_waitcnt vmcnt(0)')
    a(f'v_max3_u32 v{q}, v{RX}, v{RX+1}, v{RX+2}'); a(f'v_max3_u32 v{q+1}, v{RX+3}, v{RX+4}, v{RX+5}')
    for i in range(6, 32, 4):
        a(f'v_max3_u32 v{q}, v{q}, v{RX+i}, v{RX+i+1}')
        if i+2 < 32: a(f'v_max3_u32 v{q+1}, v{q+1}, v{RX+i+2}, v{RX+i+3}')
    a(f'v_max_u32 v{q}, v{q}, v{q+1}')
    a(f'v_cmp_eq_u32 vcc, -1, v{q}')
    a(f's_cbranch_vccz L_xok_{tag}')
    a('s_cmp_lt_u32 s42, 0x4000'); a(f's_cbranch_scc1 L_xch_{tag}')
    a.label(f'L_xok_{tag}')
    if stamp: a('s_memrealtime s[92:93]')
    for i in range(0, 32, 2):
        a(f'v_pk_add_f32 v[{acc+i}:{acc+i+1}], v[{acc+i}:{acc+i+1}], v[{RX+i}:{RX+i+1}]')
    k = 0
    for mt in range(2):
        for tp in range(2):
            x = XR + 4*k; s = SR + 4*k; k += 1
            a(f'v_permlane16_swap_b32 v{x}, v{x+2}'); a(f'v_permlane16_swap_b32 v{x+1}, v{x+3}')
            a(f'v_permlane16_swap_b32 v{s}, v{s+2}'); a(f'v_permlane16_swap_b32 v{s+1}, v{s+3}')
            for tt in range(2):
                c = acc + 4*(mt*cfg.TN + 2*tp + tt); g = T + 4*tt; u = T + 8
                silu4(a, c, g)
                for j in range(2):
                    a(f'v_lshlrev_b32 v{u+2*j}, 16, v{s+2*tt+j}'); a(f'v_and_b32 v{u+2*j+1}, 0xffff0000, v{s+2*tt+j}')
                    a(f'v_lshlrev_b32 v{u+4+2*j}, 16, v{x+2*tt+j}'); a(f'v_and_b32 v{u+4+2*j+1}, 0xffff0000, v{x+2*tt+j}')
                for j in range(2):
                    a(f'v_pk_fma_f32 v[{g+2*j}:{g+2*j+1}], v[{u+2*j}:{u+2*j+1}], v[{g+2*j}:{g+2*j+1}], v[{u+4+2*j}:{u+4+2*j+1}]')
                for j in range(2):
                    a(f'v_cvt_pk_bf16_f32 v{x+2*tt+j}, v{g+2*j}, v{g+2*j+1}')
            a(f'v_permlane16_swap_b32 v{x}, v{x+2}'); a(f'v_permlane16_swap_b32 v{x+1}, v{x+3}')
            a(f's_mov_b32 s40, {mt*16*2048}')
            a(f'buffer_store_dwordx4 v[{x}:{x+3}], v{vO}, s[12:15], s40 offen offset:{tp*64}')
    if stamp:
        a('s_waitcnt lgkmcnt(0)')
        a('s_sub_u32 s60, s60, s58')
        a('s_waitcnt vmcnt(0)'); a('s_memrealtime s[56:57]'); a('s_waitcnt lgkmcnt(0)')
        a('s_cmp_lg_u32 s20, 0'); a(f's_cbranch_scc1 L_g2end_{tag}')
        srd_off(a, 12, 64, WS_DBG + 5*0x4000, 0x4000)
        for i, r in enumerate((52, 53, 94, 95, 54, 55, 92, 93, 56, 57, 60)): a(f'v_mov_b32 v{12+i}, s{r}')
        a('v_mov_b32 v23, 0')
        a('s_lshl_b32 s40, s2, 6'); a('v_mov_b32 v10, s40')
        a('v_cmp_eq_u32 vcc, 0, v0'); a('s_and_saveexec_b64 s[62:63], vcc')
        for i in range(3): a(f'buffer_store_dwordx4 v[{12+4*i}:{15+4*i}], v10, s[12:15], 0 offen offset:{16*i}')
    a.label(f'L_g2end_{tag}')
    a('s_endpgm')
    a.label(f'L_loader_{tag}')
    def pre(a, Rl):
        vY = Rl.alloc(); vT = Rl.alloc()
        srd_off(a, 12, 64, WS_Y, ZBYTES); srd_off(a, 68, 64, WS_TAB, 16384)
        a(f'v_lshrrev_b32 v{vT}, 1, v0'); a(f's_mov_b32 s41, {ZP}'); a(f'v_mul_lo_u32 v{vY}, v{vT}, s41')
        a(f'v_and_b32 v{vT}, 1, v0'); a(f'v_lshl_add_u32 v{vY}, v{vT}, 4, v{vY}')
        a(f'v_lshlrev_b32 v{vT}, 4, v0')
        a('s_lshr_b32 s40, s89, 4'); a('s_lshl_b32 s40, s40, 2'); a('s_lshr_b32 s41, s88, 1'); a('s_add_u32 s40, s40, s41'); a('s_lshl_b32 s40, s40, 6')
        a('s_and_b32 s41, s88, 1'); a('s_lshl_b32 s41, s41, 5'); a('s_add_u32 s40, s40, s41')
        a('s_and_b32 s41, s89, 15'); a('s_lshl_b32 s41, s41, 1'); a('s_add_u32 s40, s40, s41'); a('s_lshl_b32 s90, s40, 4')
        a(f's_mul_i32 s40, s35, {4*32*ZP}'); a('s_add_u32 s40, s40, s90')
        a('s_lshl_b32 s41, s35, 12')
        for i in range(4):
            a(f's_add_u32 m0, s41, {TILE + 1024*i}'); a('s_nop 0')
            a(f'buffer_load_dwordx4 v{vY}, s[12:15], s40 offen lds')
            if i < 3: a(f's_add_u32 s40, s40, {32*ZP}')
        a(f's_add_u32 m0, s41, {TAB}'); a('s_nop 0')
        for i in range(4):
            a(f'buffer_load_dwordx4 v{vT}, s[68:71], s41 offen offset:{1024*i} lds')
        a('s_cmp_lg_u32 s35, 0'); a(f's_cbranch_scc1 L_nonyq_{tag}')
        a(f's_add_u32 s40, s90, {512*ZP}'); a(f's_mov_b32 m0, {NYQ}'); a('s_mov_b64 exec, 3')
        a(f'buffer_load_dwordx4 v{vY}, s[12:15], s40 offen lds')
        a('s_mov_b64 exec, -1')
        a.label(f'L_nonyq_{tag}')
    NPRO = (l2pf - (cfg.S-1)) if l2pf else 0
    assert NPRO == 0 or NPRO >= cfg.S-1
    def pf_setup(a, Rl):
        vP = Rl.alloc(); vD = Rl.alloc(); t = Rl.alloc()
        a('s_cmp_ge_u32 s35, 2'); a(f's_cbranch_scc1 L_pfw_{tag}')
        a('s_and_b32 s40, s21, 3'); a('s_lshl_b32 s40, s40, 9'); a('s_lshl_b32 s41, s22, 4'); a('s_add_u32 s40, s40, s41')
        a('s_lshl_b32 s41, s35, 3'); a('s_add_u32 s40, s40, s41')
        a(f'v_add_u32 v{vP}, s40, v0'); a(f's_mov_b32 s41, {cfg.pitchA}'); a(f'v_mul_lo_u32 v{vP}, v{vP}, s41')
        a(f's_mul_i32 s40, s25, {cfg.K*2}'); a(f'v_add_u32 v{vP}, s40, v{vP}')
        a(f'v_mov_b32 v{t}, 0x7f000000'); a('v_cmp_gt_u32 vcc, 8, v0'); a(f'v_cndmask_b32 v{vP}, v{t}, v{vP}, vcc')
        for i in range(4): a(f's_mov_b32 s{72+i}, s{4+i}')
        a('s_mov_b32 s97, 128')
        a(f's_branch L_pfx_{tag}')
        a.label(f'L_pfw_{tag}')
        a(f's_mul_i32 s40, s25, {cfg.K}'); a('s_lshl_b32 s41, s22, 1'); a('s_add_u32 s40, s40, s41'); a('s_add_u32 s40, s40, s35'); a('s_sub_u32 s40, s40, 2')
        a('s_lshl_b32 s40, s40, 11')
        a(f'v_lshlrev_b32 v{vP}, 7, v0'); a(f'v_add_u32 v{vP}, s40, v{vP}')
        a(f'v_mov_b32 v{t}, 0x7f000000'); a('v_cmp_gt_u32 vcc, 16, v0'); a(f'v_cndmask_b32 v{vP}, v{t}, v{vP}, vcc')
        for i in range(4): a(f's_mov_b32 s{72+i}, s{8+i}')
        a(f's_mov_b32 s97, {64*cfg.pitchW}')
        a.label(f'L_pfx_{tag}')
        a(f's_mul_i32 s98, s97, {cfg.S-1}')
        return vP, vD
    PFR = {}
    def pf_one(a):
        a(f'buffer_load_dword v{PFR["d"]}, v{PFR["p"]}, s[72:75], s98 offen')
        a('s_add_u32 s98, s98, s97')
    def pf_pro(a):
        for i in range(NPRO): pf_one(a)
        return NPRO
    def after_pro(a):
        a(f's_waitcnt vmcnt({(cfg.S-1)*cfg.P + NPRO})'); a('s_barrier')
    def post_bar(a):
        a(f's_cmp_lg_u32 s32, {SIG}'); a(f's_cbranch_scc1 L_nosig_{tag}')
        a('s_cmp_lg_u32 s35, 0'); a(f's_cbranch_scc1 L_nosig_{tag}')
        a('s_lshl_b32 s40, s88, 5'); a('v_mov_b32 v1, s40'); a('v_mov_b32 v2, 1'); a('s_mov_b64 exec, 1')
        a('buffer_atomic_add v2, v1, s[80:83], 0 offen sc1')
        a('s_mov_b64 exec, -1')
        a.label(f'L_nosig_{tag}')
    def tail(a):
        a('s_lshl_b32 s40, s88, 5'); a('v_mov_b32 v1, s40')
        a('buffer_load_dword v2, v1, s[80:83], 0 offen sc1')
        return 1
    def pre_last(a):
        a('s_mov_b32 s42, 0')
        a.label(f'L_poll_{tag}')
        a('s_waitcnt vmcnt(0)')
        a('v_readfirstlane_b32 s40, v2')
        a('s_cmp_ge_u32 s40, 32'); a(f's_cbranch_scc1 L_pollok_{tag}')
        a('buffer_load_dword v2, v1, s[80:83], 0 offen sc1')
        a('s_add_u32 s42, s42, 1'); a('s_cmp_lt_u32 s42, 0x8000'); a(f's_cbranch_scc1 L_poll_{tag}')
        a.label(f'L_pollok_{tag}')
    def pre2(a, R):
        a('s_lshl_b32 s92, s25, 5'); pre(a, R)
        if l2pf: PFR['p'], PFR['d'] = pf_setup(a, R)
    loader_part(a, cfg, tag, tmp, tail, s_rowxor='s92', pre=pre2, after_pro=after_pro, post_bar=post_bar, pre_last=pre_last,
                extra=pf_one if l2pf else None, extra_pro=pf_pro if l2pf else None)
    return top, cfg.LDS + 64
```

```python
import sys
from asm import *
from fft import *
from roles_gemm import *
import hazard, fft
from full import wrap, KN
def common(stamp, hsc=' sc1', sentinel='l', cprefetch=False, sc=' sc1', scy=' sc1'):
    fft.SC = sc; fft.SCY = scy
    ks = []
    fft.STAMP = stamp
    a = Asm(); name = 'prep_kernel'
    a('s_cmp_ge_u32 s2, 256'); a(f's_cbranch_scc1 L_end_{name}')
    a('s_cmp_ge_u32 s2, 128'); a(f's_cbranch_scc1 L_wp_{name}')
    nv1, l1 = gen_row_fwd(a, 'rf')
    a.label(f'L_wp_{name}')
    nv2, l2 = gen_wprep(a, 'wp', tables=True)
    a.label(f'L_end_{name}'); a('s_endpgm')
    ks.append(wrap(name, a.text(), max(nv1,nv2), 256, 512, max(l1,l2,82944)))
    a = Asm(); name = 'g1col_kernel'
    a('s_cmp_ge_u32 s2, 256'); a(f's_cbranch_scc1 L_end_{name}')
    a('s_cmp_ge_u32 s2, 224'); a(f's_cbranch_scc1 L_col_role')
    nv1, l1 = gen_g1(a, 'g1', G16(S=3), stamp, sentinel=sentinel, hsc=hsc, prefetch_w2=(not cprefetch and sentinel != 'l'), cprefetch=cprefetch)
    a.label('L_col_role')
    a('s_sub_u32 s3, s2, 224')
    nv2, l2 = gen_col(a, 'c', 's3', 32)
    a.label(f'L_end_{name}'); a('s_endpgm')
    ks.append(wrap(name, a.text(), max(nv1,nv2), 256, 512, max(l1,l2)))
    return ks
def g2k(name, stamp, opts={}, **kw):
    a = Asm()
    a('s_cmp_ge_u32 s2, 256'); a(f's_cbranch_scc1 L_end_{name}')
    d = dict(BM=128, BN=128, WM=2, WN=2, K=1792, S=4, NSUB=1, pitchA=HP.pitch, pitchW=2048, dbufA=True); d.update(kw)
    cfg2 = G16(**d)
    nv, l = gen_g2s(a, name, cfg2, stamp, **opts)
    a.label(f'L_end_{name}'); a('s_endpgm')
    return wrap(name, a.text(), nv, 256, 64*(cfg2.NC+cfg2.NL), l)
def finish(ks):
    hdr = open('cdna_kernels/' + KN + '.s.ref').read().split('; Override launch geometry')[0]
    txt = hdr + '\n'.join(k[0] for k in ks) + '\n.amdgcn_target "amdgcn-amd-amdhsa--gfx950"\n' + ''.join(k[1] for k in ks) + ''.join(k[2] for k in ks)
    txt, n = hazard.fix(txt, False)
    print('nops', n, 'bytes', len(txt))
    return txt
if __name__ == '__main__':
    if len(sys.argv) > 1: HP.off = 0x4000000; HP.pitch = int(sys.argv[1])
    S1 = dict(a0first=True, maxper0=2, bat=1)
    S2 = dict(a0first=True, maxper0=2, bat=0)
    S3 = dict(a0first=True, maxper0=1, bat=4)
    S4 = dict(a0first=True, maxper0=2, bat=2, maxperb=1)
    NN = dict(noload=True, nords=True, **S3)
    NM = dict(nomfma=True, **S3)
    NM = dict(nomfma=True, nords=True, **S3)
    V = {'base': ({}, S3),
         'nm': ({}, NM), 'nmAW': ({}, dict(kstatic='AW', **NM)), 'nmA': ({}, dict(kstatic='A', **NM)), 'nmW': ({}, dict(kstatic='W', **NM)),
         'AW': ({}, dict(kstatic='AW', **S3)),
         }
    ks = common(True)
    for nm, (o, kw) in V.items(): ks.append(g2k(f'g2{nm}_kernel', True, o, **kw))
    ks.append(g2k(KN + '_kernel', True))
    open('var%s_st.s' % (sys.argv[1] if len(sys.argv) > 1 else ''),'w').write(finish(ks))
    for st in (False, True):
        ks = common(st); ks.append(g2k(KN + '_kernel', st, **S3))
        open('f3%s.s' % ('_st' if st else ''),'w').write(finish(ks))
    ks = common(False, sc='', scy=''); ks.append(g2k(KN + '_kernel', False, **S3))
    open('f3a.s','w').write(finish(ks))
    ks = common(True, sc='', scy=''); ks.append(g2k(KN + '_kernel', True, **S3))
    open('f3a_st.s','w').write(finish(ks))
    ks = common(True, sc=' sc1', scy=''); ks.append(g2k(KN + '_kernel', True, **S3))
    open('f3b_st.s','w').write(finish(ks))
```

```python
from asm import *

WS_XN = 0x0000000
WS_H  = 0x0400000
WS_Z  = 0x1200000
WS_WP = 0x1680000
WS_Y  = 0x1B00000
WS_S  = 0x2000000
WS_XCH= 0x2400000
WS_TAB= 0x2C00000
WS_FLG= 0x2C10000
WS_DBG= 0x3000000
ZP = 8448
ZBYTES = 513*ZP
TILE_BYTES = 72*528 + 8*66 + 64
MF = 'v_mfma_f32_32x32x16_bf16'

STAMP = False
SCY = ''
SCX = ''
SC = ''
def st_begin(a):
    if STAMP: a('s_memrealtime s[90:91]')
def st_end(a, slot, tag, ws=18, wave='s20'):
    if not STAMP: return
    a('s_waitcnt vmcnt(0) lgkmcnt(0)')
    a('s_memrealtime s[92:93]'); a('s_waitcnt lgkmcnt(0)')
    a(f's_cmp_lg_u32 {wave}, 0'); a(f's_cbranch_scc1 L_stx_{tag}')
    srd_off(a, 12, ws, WS_DBG + slot*0x4000, 0x4000)
    a('v_mov_b32 v10, s90'); a('v_mov_b32 v11, s91'); a('v_mov_b32 v12, s92'); a('v_mov_b32 v13, s93')
    a('v_mov_b32 v14, s92'); a('v_mov_b32 v15, s93'); a('v_mov_b32 v16, 0'); a('v_mov_b32 v17, 0')
    a('s_lshl_b32 s40, s2, 5'); a('v_mov_b32 v20, s40')
    a('v_cmp_eq_u32 vcc, 0, v0'); a('s_and_saveexec_b64 s[62:63], vcc')
    a('buffer_store_dwordx4 v[10:13], v20, s[12:15], 0 offen')
    a('buffer_store_dwordx4 v[14:17], v20, s[12:15], 0 offen offset:16')
    a.label(f'L_stx_{tag}')

def allreduce(a, v, t):
    for r in (8, 4, 2, 1):
        a(f'v_add_f32_dpp v{v}, v{v}, v{v} row_ror:{r} row_mask:0xf bank_mask:0xf')
    a(f'v_mov_b32 v{t}, v{v}'); a(f'v_permlane16_swap_b32 v{v}, v{t}'); a(f'v_add_f32 v{v}, v{v}, v{t}')
    a(f'v_mov_b32 v{t}, v{v}'); a(f'v_permlane32_swap_b32 v{v}, v{t}'); a(f'v_add_f32 v{v}, v{v}, v{t}')

def allreduce2(a, v0, t0, v1, t1):
    for r in (8, 4, 2, 1):
        a(f'v_add_f32_dpp v{v0}, v{v0}, v{v0} row_ror:{r} row_mask:0xf bank_mask:0xf')
        a(f'v_add_f32_dpp v{v1}, v{v1}, v{v1} row_ror:{r} row_mask:0xf bank_mask:0xf')
    for op in ('v_permlane16_swap_b32', 'v_permlane32_swap_b32'):
        a(f'v_mov_b32 v{t0}, v{v0}'); a(f'v_mov_b32 v{t1}, v{v1}')
        a(f'{op} v{v0}, v{t0}'); a(f'{op} v{v1}, v{t1}')
        a(f'v_add_f32 v{v0}, v{v0}, v{t0}'); a(f'v_add_f32 v{v1}, v{v1}, v{t1}')

def f32(x):
    import struct
    return hex(struct.unpack('<I', struct.pack('<f', x))[0])

def emit_cs(a, dc, ds, fE, eadd, fF, phase_reg, t):
    if eadd: a(f'v_add_f32 v{t}, {f32(float(eadd))}, v{fE}'); src = t
    else: src = fE
    if phase_reg is None: a(f'v_mul_f32 v{t}, v{src}, v{fF}')
    else: a(f'v_fma_f32 v{t}, v{src}, v{fF}, {phase_reg}')
    a(f'v_fract_f32 v{t}, v{t}')
    if ds is not None: a(f'v_sin_f32 v{ds}, v{t}')
    if dc is not None: a(f'v_cos_f32 v{dc}, v{t}')

def emit_img(a, dst, fE, e0, fF, phase, t):
    for jj in range(4):
        emit_cs(a, t+1, t+2, fE, e0+jj, fF, phase, t)
        a('s_nop 0')
        a(f'v_cvt_pk_bf16_f32 v{dst+jj}, v{t+1}, v{t+2}')

def cmul_pack(a, dst, re, im, cs, sn, t, n=16):
    for r in range(0, n, 2):
        u = t + 4*((r >> 1) & 1)
        a(f'v_pk_mul_f32 v[{u}:{u+1}], v[{re+r}:{re+r+1}], v[{cs+r}:{cs+r+1}]')
        a(f'v_pk_mul_f32 v[{u+2}:{u+3}], v[{im+r}:{im+r+1}], v[{cs+r}:{cs+r+1}]')
        a(f'v_pk_fma_f32 v[{u}:{u+1}], v[{im+r}:{im+r+1}], v[{sn+r}:{sn+r+1}], v[{u}:{u+1}]')
        a(f'v_pk_fma_f32 v[{u+2}:{u+3}], v[{re+r}:{re+r+1}], v[{sn+r}:{sn+r+1}], v[{u+2}:{u+3}] neg_lo:[1,0,0] neg_hi:[1,0,0]')
        a(f'v_cvt_pk_bf16_f32 v{dst+r}, v{u}, v{u+2}')
        a(f'v_cvt_pk_bf16_f32 v{dst+r+1}, v{u+1}, v{u+3}')

def tile_store_phase(a, vlane, s_w, srd_out, s_pos0, t, tile0, tag):
    vA, vG = t, t+1
    d = t+4
    a(f'v_lshrrev_b32 v{t+2}, 2, v{vlane}'); a(f'v_and_b32 v{t+3}, 3, v{vlane}')
    a(f'v_mul_u32_u24 v{vA}, 72, v{t+2}')
    a(f'v_lshrrev_b32 v{vG}, 3, v{t+2}'); a(f'v_lshl_add_u32 v{vA}, v{vG}, 3, v{vA}')
    a(f'v_lshl_add_u32 v{vA}, v{t+3}, 4, v{vA}')
    a(f's_mul_i32 s40, {s_w}, 1168'); a(f's_add_u32 s40, s40, {tile0}')
    a(f'v_add_u32 v{vA}, s40, v{vA}')
    a(f's_lshl_b32 s40, {s_w}, 4'); a(f'v_add_u32 v{vG}, s40, v{t+2}')
    a(f's_mov_b32 s41, {ZP}'); a(f'v_mul_lo_u32 v{vG}, v{vG}, s41'); a(f'v_lshl_add_u32 v{vG}, v{t+3}, 4, v{vG}')
    for it in range(4):
        a(f'ds_read_b64 v[{d+4*it}:{d+4*it+1}], v{vA} offset:{9344*it}')
        a(f'ds_read_b64 v[{d+4*it+2}:{d+4*it+3}], v{vA} offset:{9344*it+8}')
    a(f's_cmp_lg_u32 {s_w}, 0'); a(f's_cbranch_scc1 L_no5_{tag}')
    a(f'ds_read_b64 v[{d+16}:{d+17}], v{vA} offset:{9344*4}')
    a(f'ds_read_b64 v[{d+18}:{d+19}], v{vA} offset:{9344*4+8}')
    a(f's_add_u32 s41, s{s_pos0}, {4*128*ZP}')
    a('s_waitcnt lgkmcnt(0)')
    a(f'buffer_store_dwordx4 v[{d+16}:{d+19}], v{vG}, s[{srd_out}:{srd_out+3}], s41 offen{SC}')
    a.label(f'L_no5_{tag}')
    for it in range(4):
        a(f's_add_u32 s41, s{s_pos0}, {it*128*ZP}')
        a(f's_waitcnt lgkmcnt({2*(3-it)})')
        a(f'buffer_store_dwordx4 v[{d+4*it}:{d+4*it+3}], v{vG}, s[{srd_out}:{srd_out+3}], s41 offen{SC}')

def gen_row_fwd(a, tag, wg='s2'):
    ROWB = (TILE_BYTES + 255)//256*256
    st_begin(a)
    a('s_load_dwordx2 s[16:17], s[0:1], 0')
    a('s_load_dwordx2 s[18:19], s[0:1], 64')
    a('v_lshrrev_b32 v1, 6, v0'); a('v_and_b32 v0, 63, v0'); a('v_readfirstlane_b32 s20, v1')
    a(f's_and_b32 s21, {wg}, 7'); a(f's_lshr_b32 s22, {wg}, 3')
    a('s_lshr_b32 s23, s22, 1')
    a('s_and_b32 s24, s22, 1'); a('s_lshl_b32 s25, s21, 1'); a('s_add_u32 s24, s24, s25')
    a('s_lshl_b32 s25, s23, 2'); a('s_and_b32 s26, s20, 3'); a('s_add_u32 s25, s25, s26'); a('s_lshl_b32 s25, s25, 6')
    a('s_lshl_b32 s26, s24, 2'); a('s_add_u32 s25, s25, s26'); a('s_lshr_b32 s26, s20, 2'); a('s_add_u32 s25, s25, s26')
    a('s_lshl_b32 s26, s25, 11'); a('s_add_u32 s27, s26, 4096')
    a('s_lshr_b32 s28, s24, 3'); a('s_lshl_b32 s28, s28, 2'); a('s_lshr_b32 s29, s23, 1'); a('s_add_u32 s28, s28, s29'); a('s_lshl_b32 s28, s28, 6')
    a('s_and_b32 s29, s23, 1'); a('s_lshl_b32 s29, s29, 5'); a('s_add_u32 s28, s28, s29')
    a('s_and_b32 s29, s24, 7'); a('s_lshl_b32 s29, s29, 2'); a('s_add_u32 s28, s28, s29'); a('s_lshl_b32 s28, s28, 4')
    a('v_lshlrev_b32 v1, 5, v0')
    a('s_waitcnt lgkmcnt(0)')
    srd(a, 4, 16, 2048*2048)
    R = Regs(8, 256)
    X = [R.alloc(8, 4), R.alloc(8, 4)]
    a(f'buffer_load_dwordx4 v[{X[0]}:{X[0]+3}], v1, s[4:7], s26 offen')
    a(f'buffer_load_dwordx4 v[{X[0]+4}:{X[0]+7}], v1, s[4:7], s26 offen offset:16')
    a(f'buffer_load_dwordx4 v[{X[1]}:{X[1]+3}], v1, s[4:7], s27 offen')
    a(f'buffer_load_dwordx4 v[{X[1]+4}:{X[1]+7}], v1, s[4:7], s27 offen offset:16')
    srd_off(a, 8, 18, WS_XN, 2048*2048)
    srd_off(a, 12, 18, WS_Z, ZBYTES)
    B1 = R.alloc(16, 4); CS = R.alloc(16, 2); SN = R.alloc(16, 2); A2 = R.alloc(16, 4)
    T = R.alloc(8, 4)
    fC32, fC1k, fH, fD, fPh = 2, 3, 4, 5, 6
    a('v_and_b32 v7, 31, v0'); a('v_cvt_f32_u32 v7, v7')
    a(f'v_mul_f32 v{fC32}, {f32(1/32)}, v7'); a(f'v_mul_f32 v{fC1k}, {f32(1/1024)}, v7')
    a(f'v_lshrrev_b32 v{fH}, 5, v0'); a(f'v_cvt_f32_u32 v{fH}, v{fH}')
    a(f'v_mul_f32 v7, {f32(8.0)}, v{fH}')
    for q in range(2):
        for jj in range(4):
            for e in range(2):
                aa = 16*q + 2*jj + e
                a(f'v_add_f32 v{T}, {f32(float(aa))}, v7')
                a(f'v_mul_f32 v{T}, v{T}, v{fC32}'); a(f'v_fract_f32 v{T}, v{T}')
                a(f'v_cos_f32 v{T+1+e}, v{T}'); a(f'v_sin_f32 v{T+3+e}, v{T}')
            a('s_nop 0')
            a(f'v_cvt_pk_bf16_f32 v{B1+4*q+jj}, v{T+1}, v{T+2}')
            a(f'v_cvt_pk_bf16_f32 v{B1+8+4*q+jj}, -v{T+3}, -v{T+4}')
    a(f'v_mul_f32 v7, {f32(4.0)}, v{fH}')
    for r in range(16):
        emit_cs(a, CS+r, SN+r, 7, (r & 3) + 8*(r >> 2), fC1k, None, T)
    a(f'v_and_b32 v{fD}, 31, v0'); a(f'v_lshrrev_b32 v{fD}, 1, v{fD}'); a(f'v_cvt_f32_u32 v{fD}, v{fD}'); a(f'v_mul_f32 v{fD}, {f32(1/32)}, v{fD}')
    a(f'v_and_b32 v{fPh}, 1, v0'); a(f'v_cvt_f32_u32 v{fPh}, v{fPh}'); a(f'v_mul_f32 v{fPh}, {f32(0.25)}, v{fPh}')
    for q in range(4): emit_img(a, A2+4*q, 7, 8*q, fD, f'v{fPh}', T)
    vRB = 2
    vTR, vTW = 3, 4
    a(f's_lshl_b32 s30, s20, 12'); a(f's_add_u32 s30, s30, {ROWB}')
    a(f'v_add_u32 v{vRB}, s30, v1')
    a(f'v_lshrrev_b32 v5, 5, v0'); a(f'v_lshlrev_b32 v5, 3, v5'); a(f'v_lshrrev_b32 v6, 2, v0'); a(f'v_and_b32 v6, 3, v6'); a('v_add_u32 v5, v5, v6')
    a('v_lshlrev_b32 v5, 6, v5'); a('v_lshrrev_b32 v6, 4, v0'); a('v_and_b32 v6, 1, v6'); a('v_lshl_add_u32 v5, v6, 5, v5')
    a('v_and_b32 v6, 3, v0'); a('v_lshl_add_u32 v5, v6, 3, v5'); a(f'v_add_u32 v{vTR}, s30, v5')
    a('v_and_b32 v5, 31, v0'); a('v_lshrrev_b32 v6, 5, v0'); a('v_lshl_add_u32 v5, v6, 6, v5')
    a('v_lshrrev_b32 v6, 3, v5'); a('v_mul_u32_u24 v5, 72, v5'); a('v_lshl_add_u32 v5, v6, 3, v5')
    a('s_lshl_b32 s31, s20, 2'); a(f'v_add_u32 v{vTW}, s31, v5')
    XF = [R.alloc(16, 2), R.alloc(16, 2)]
    S = [R.alloc(4, 2), R.alloc(4, 2)]
    a('s_waitcnt vmcnt(0)')
    for z in range(2):
        for j in range(8):
            a(f'v_lshlrev_b32 v{XF[z]+2*j}, 16, v{X[z]+j}')
            a(f'v_and_b32 v{XF[z]+2*j+1}, 0xffff0000, v{X[z]+j}')
    for z in range(2):
        a(f'v_pk_add_f32 v[{S[z]}:{S[z]+1}], v[{XF[z]}:{XF[z]+1}], v[{XF[z]+2}:{XF[z]+3}]')
    for j in range(2, 8):
        for z in range(2):
            a(f'v_pk_add_f32 v[{S[z]}:{S[z]+1}], v[{S[z]}:{S[z]+1}], v[{XF[z]+2*j}:{XF[z]+2*j+1}]')
    for z in range(2): a(f'v_add_f32 v{S[z]}, v{S[z]}, v{S[z]+1}')
    allreduce2(a, S[0], S[0]+2, S[1], S[1]+2)
    M = [R.alloc(2, 2), R.alloc(2, 2)]
    for z in range(2):
        a(f'v_mul_f32 v{M[z]}, {f32(-1/1024)}, v{S[z]}'); a(f'v_mov_b32 v{M[z]+1}, v{M[z]}')
    for z in range(2):
        for j in range(8):
            a(f'v_pk_add_f32 v[{T+2*z}:{T+2*z+1}], v[{XF[z]+2*j}:{XF[z]+2*j+1}], v[{M[z]}:{M[z]+1}]')
            if j == 0: a(f'v_pk_mul_f32 v[{S[z]}:{S[z]+1}], v[{T+2*z}:{T+2*z+1}], v[{T+2*z}:{T+2*z+1}]')
            else: a(f'v_pk_fma_f32 v[{S[z]}:{S[z]+1}], v[{T+2*z}:{T+2*z+1}], v[{T+2*z}:{T+2*z+1}], v[{S[z]}:{S[z]+1}]')
    for z in range(2): a(f'v_add_f32 v{S[z]}, v{S[z]}, v{S[z]+1}')
    allreduce2(a, S[0], S[0]+2, S[1], S[1]+2)
    for z in range(2):
        s = S[z]
        a(f'v_mul_f32 v{s}, {f32(1/1024)}, v{s}')
        a(f'v_cvt_pk_bf16_f32 v{s}, v{s}, v{s}'); a(f'v_lshlrev_b32 v{s}, 16, v{s}')
        a(f'v_add_f32 v{s}, {f32(1e-5)}, v{s}')
        a(f'v_cvt_pk_bf16_f32 v{s}, v{s}, v{s}'); a(f'v_lshlrev_b32 v{s}, 16, v{s}')
        a(f'v_sqrt_f32 v{s}, v{s}'); a('s_nop 0')
        a(f'v_cvt_pk_bf16_f32 v{s}, v{s}, v{s}'); a(f'v_lshlrev_b32 v{s}, 16, v{s}')
        a(f'v_rcp_f32 v{s}, v{s}'); a('s_nop 0'); a(f'v_mov_b32 v{s+1}, v{s}')
        m = M[z]
        a(f'v_cvt_pk_bf16_f32 v{m}, v{m}, v{m}'); a(f'v_lshlrev_b32 v{m}, 16, v{m}'); a(f'v_mov_b32 v{m+1}, v{m}')
    for z in range(2):
        for j in range(8):
            u = T + 2*((j & 1) + 2*z)
            a(f'v_pk_add_f32 v[{u}:{u+1}], v[{XF[z]+2*j}:{XF[z]+2*j+1}], v[{M[z]}:{M[z]+1}]')
            a(f'v_pk_mul_f32 v[{u}:{u+1}], v[{u}:{u+1}], v[{S[z]}:{S[z]+1}]')
            a(f'v_cvt_pk_bf16_f32 v{X[z]+j}, v{u}, v{u+1}')
    for z in range(2):
        so = 's26' if z == 0 else 's27'
        a(f'ds_write_b128 v{vRB}, v[{X[z]}:{X[z]+3}] offset:{2048*z}')
        a(f'ds_write_b128 v{vRB}, v[{X[z]+4}:{X[z]+7}] offset:{2048*z+16}')
        a(f'buffer_store_dwordx4 v[{X[z]}:{X[z]+3}], v1, s[8:11], {so} offen{SCX}')
        a(f'buffer_store_dwordx4 v[{X[z]+4}:{X[z]+7}], v1, s[8:11], {so} offen offset:16{SCX}')
    AD = [R.alloc(8, 4), R.alloc(8, 4)]
    D1 = [[R.alloc(16, 4), R.alloc(16, 4)], [R.alloc(16, 4), R.alloc(16, 4)]]
    a('s_waitcnt lgkmcnt(0)')
    for z in range(2):
        for q in range(2):
            for jj in range(2):
                a(f'ds_read_b64_tr_b16 v[{AD[z]+4*q+2*jj}:{AD[z]+4*q+2*jj+1}], v{vTR} offset:{2048*z + 1024*q + 256*jj}')
    for z in range(2):
        a(f's_waitcnt lgkmcnt({4*(1-z)})')
        for sg in range(2):
            d = D1[z][sg]
            a(f'{MF} v[{d}:{d+15}], v[{AD[z]}:{AD[z]+3}], v[{B1+8*sg}:{B1+8*sg+3}], 0')
            a(f'{MF} v[{d}:{d+15}], v[{AD[z]+4}:{AD[z]+7}], v[{B1+8*sg+4}:{B1+8*sg+7}], v[{d}:{d+15}]')
    P = XF
    ALT = S
    for z in range(2):
        d = D1[z][0]
        a(f'v_pk_add_f32 v[{ALT[z]}:{ALT[z]+1}], v[{d}:{d+1}], v[{d+2}:{d+3}]')
        for j in range(2, 8): a(f'v_pk_add_f32 v[{ALT[z]}:{ALT[z]+1}], v[{ALT[z]}:{ALT[z]+1}], v[{d+2*j}:{d+2*j+1}]')
        a(f'v_sub_f32 v{ALT[z]}, v{ALT[z]}, v{ALT[z]+1}')
        a(f'v_mov_b32 v{ALT[z]+1}, v{ALT[z]}'); a(f'v_permlane32_swap_b32 v{ALT[z]}, v{ALT[z]+1}'); a(f'v_add_f32 v{ALT[z]}, v{ALT[z]}, v{ALT[z]+1}')
        a(f'v_mov_b32 v{ALT[z]+1}, 0'); a(f'v_cvt_pk_bf16_f32 v{ALT[z]}, v{ALT[z]}, v{ALT[z]+1}')
        cmul_pack(a, P[z], D1[z][0], D1[z][1], CS, SN, T)
        d2 = D1[z][0]
        for q in range(4):
            a(f'{MF} v[{d2}:{d2+15}], v[{A2+4*q}:{A2+4*q+3}], v[{P[z]+4*q}:{P[z]+4*q+3}], ' + ('0' if q == 0 else f'v[{d2}:{d2+15}]'))
    for z in range(2):
        d2 = D1[z][0]; o = D1[z][1]
        for u in range(8):
            a(f'v_cvt_pk_bf16_f32 v{o+u}, v{d2+2*u}, v{d2+2*u+1}')
            du = 32*(u & 1) + 128*(u >> 1)
            a(f'ds_write_b32 v{vTW}, v{o+u} offset:{73*du + 32*z}')
    a('s_mov_b64 exec, 1')
    a(f'v_mov_b32 v5, s31')
    for z in range(2): a(f'ds_write_b32 v5, v{ALT[z]} offset:{72*512 + 8*64 + 32*z}')
    a('s_mov_b64 exec, -1')
    a('s_waitcnt lgkmcnt(0)'); a('s_barrier')
    tile_store_phase(a, 0, 's20', 12, 28, D1[0][0], 0, tag)
    st_end(a, 2, tag)
    a('s_endpgm')
    return R.p, ROWB + 8*4096

def gen_rinv_tables(a, R, ws_pair, srd_base):
    G = R.alloc(16, 4); CS = R.alloc(16, 2); SN = R.alloc(16, 2); H = R.alloc(16, 4); T = R.alloc(8, 4)
    fC32 = R.alloc(); fC1k = R.alloc(); fH4 = R.alloc(); fPh = R.alloc(); vA = R.alloc()
    assert CS == G+16 and SN == CS+16 and H == SN+16
    a(f'v_and_b32 v{T}, 31, v0')
    a(f'v_lshrrev_b32 v{T+1}, 2, v{T}'); a(f'v_and_b32 v{T+1}, 1, v{T+1}'); a(f'v_lshlrev_b32 v{T+1}, 4, v{T+1}')
    a(f'v_lshrrev_b32 v{T+2}, 3, v{T}'); a(f'v_lshl_add_u32 v{T+1}, v{T+2}, 2, v{T+1}')
    a(f'v_and_b32 v{T+2}, 3, v{T}'); a(f'v_add_u32 v{T+1}, v{T+1}, v{T+2}'); a(f'v_cvt_f32_u32 v{T+1}, v{T+1}')
    a(f'v_mul_f32 v{fC32}, {f32(1/32)}, v{T+1}'); a(f'v_mul_f32 v{fC1k}, {f32(1/1024)}, v{T+1}')
    a(f'v_lshrrev_b32 v{fH4}, 5, v0'); a(f'v_cvt_f32_u32 v{fH4}, v{fH4}'); a(f'v_mul_f32 v{fH4}, {f32(4.0)}, v{fH4}')
    for sg in range(2):
        a(f'v_mov_b32 v{fPh}, {f32(0.25*sg)}')
        for q in range(2): emit_img(a, G+8*sg+4*q, fH4, 8*q, fC32, f'v{fPh}', T)
    for r in range(16): emit_cs(a, CS+r, SN+r, fH4, (r & 3) + 8*(r >> 2), fC1k, None, T)
    a(f'v_and_b32 v{T}, 31, v0'); a(f'v_cvt_f32_u32 v{T}, v{T}'); a(f'v_mul_f32 v{fC32}, {f32(1/32)}, v{T}')
    for q in range(4): emit_img(a, H+4*q, fH4, 8*q, fC32, None, T)
    srd_off(a, srd_base, ws_pair, WS_TAB, 16384)
    a(f'v_lshlrev_b32 v{vA}, 4, v0')
    a('s_mov_b32 s40, 0')
    for c in range(16):
        if c and c % 4 == 0: a('s_add_u32 s40, s40, 4096')
        a(f'buffer_store_dwordx4 v[{G+4*c}:{G+4*c+3}], v{vA}, s[{srd_base}:{srd_base+3}], s40 offen offset:{1024*(c & 3)}')
    return 16

def gen_wprep(a, tag, wg='s2', prefetch_w1=True, tables=False):
    st_begin(a)
    a('s_load_dwordx4 s[16:19], s[0:1], 8')
    a('s_load_dwordx2 s[32:33], s[0:1], 32')
    a('s_load_dwordx2 s[34:35], s[0:1], 64')
    a('v_lshrrev_b32 v1, 6, v0'); a('v_mov_b32 v2, v0'); a('v_and_b32 v0, 63, v0'); a('v_readfirstlane_b32 s20, v1')
    a(f's_and_b32 s21, {wg}, 7'); a(f's_lshr_b32 s22, {wg}, 3'); a('s_and_b32 s22, s22, 15')
    a('s_and_b32 s24, s21, 3'); a('s_lshl_b32 s24, s24, 1'); a('s_and_b32 s25, s22, 1'); a('s_add_u32 s24, s24, s25')
    a('s_lshr_b32 s23, s21, 2'); a('s_lshl_b32 s23, s23, 3'); a('s_lshr_b32 s25, s22, 1'); a('s_add_u32 s23, s23, s25')
    a('s_lshl_b32 s25, s23, 2'); a('s_and_b32 s26, s20, 3'); a('s_add_u32 s25, s25, s26'); a('s_lshl_b32 s25, s25, 5')
    a('s_lshl_b32 s26, s24, 2'); a('s_add_u32 s25, s25, s26'); a('s_lshr_b32 s26, s20, 2'); a('s_add_u32 s25, s25, s26')
    a('s_mul_i32 s26, s25, 1026'); a('s_add_u32 s27, s26, 2052')
    a('s_lshr_b32 s28, s23, 1'); a('s_lshl_b32 s28, s28, 6'); a('s_and_b32 s29, s23, 1'); a('s_lshl_b32 s29, s29, 5'); a('s_add_u32 s28, s28, s29')
    a('s_lshl_b32 s29, s24, 2'); a('s_add_u32 s28, s28, s29'); a('s_lshl_b32 s28, s28, 4')
    a('v_lshlrev_b32 v1, 4, v0'); a('v_mov_b32 v3, 1024')
    a('s_waitcnt lgkmcnt(0)')
    srd(a, 4, 16, 2048*1026); srd(a, 8, 18, 2048*1026)
    R = Regs(8, 256)
    WR = [R.alloc(4, 4), R.alloc(4, 4)]; WI = [R.alloc(4, 4), R.alloc(4, 4)]; NY = [R.alloc(2), R.alloc(2)]
    for z, so in enumerate(('s26', 's27')):
        a(f'buffer_load_dwordx4 v[{WR[z]}:{WR[z]+3}], v1, s[4:7], {so} offen')
        a(f'buffer_load_dwordx4 v[{WI[z]}:{WI[z]+3}], v1, s[8:11], {so} offen')
        a(f'buffer_load_ushort v{NY[z]}, v3, s[4:7], {so} offen')
        a(f'buffer_load_ushort v{NY[z]+1}, v3, s[8:11], {so} offen')
    srd_off(a, 12, 34, WS_WP, ZBYTES)
    npf = 0
    if prefetch_w1:
        srd(a, 36, 32, 1024*7168)
        PF = R.alloc(28, 4)
        a(f's_and_b32 s40, {wg}, 127'); a('s_mul_i32 s40, s40, 57344'); a('v_lshlrev_b32 v2, 4, v2')
        for i in range(7):
            a(f'buffer_load_dwordx4 v[{PF+4*i}:{PF+4*i+3}], v2, s[36:39], s40 offen')
            a('s_add_u32 s40, s40, 8192')
        npf = 7
    O = R.alloc(16, 4)
    a('v_mul_u32_u24 v4, 584, v0'); a('s_lshl_b32 s31, s20, 2'); a('v_add_u32 v4, s31, v4')
    a('s_mov_b32 s29, 0x05040100'); a('s_mov_b32 s30, 0x07060302')
    if tables:
        a(f's_and_b32 s40, {wg}, 127'); a('s_or_b32 s40, s40, s20'); a('s_cmp_lg_u32 s40, 0'); a(f's_cbranch_scc1 L_notab_{tag}')
        gen_rinv_tables(a, R, 34, 44)
        a('s_waitcnt vmcnt(0)')
        a.label(f'L_notab_{tag}')
    a(f's_waitcnt vmcnt({npf})')
    for z in range(2):
        for j in range(4):
            a(f'v_perm_b32 v{O+8*z+2*j}, v{WI[z]+j}, v{WR[z]+j}, s29')
            a(f'v_perm_b32 v{O+8*z+2*j+1}, v{WI[z]+j}, v{WR[z]+j}, s30')
        for e in range(8):
            a(f'ds_write_b32 v4, v{O+8*z+e} offset:{72*e + 32*z}')
    for z in range(2): a(f'v_lshl_or_b32 v{NY[z]}, v{NY[z]+1}, 16, v{NY[z]}')
    a('s_mov_b64 exec, 1')
    a('v_mov_b32 v5, s31')
    for z in range(2): a(f'ds_write_b32 v5, v{NY[z]} offset:{72*512 + 8*64 + 32*z}')
    a('s_mov_b64 exec, -1')
    a('s_waitcnt lgkmcnt(0)'); a('s_barrier')
    t = R.alloc(24, 4)
    tile_store_phase(a, 0, 's20', 12, 28, t, 0, tag)
    st_end(a, 2, tag, ws=34)
    a('s_endpgm')
    return R.p, TILE_BYTES


COL_F32 = 0
COL_F64 = 8192
COL_TWB = 40960
COL_TWF = 0
COL_TWI = 16384
COL_LDS = COL_TWB + 32768

def gen_col(a, tag, s_idx, nwg=32, extra_prefetch=None, inited=False, poll=None, ldsc='', stamp_end=None):
    NWV = 8*nwg
    if not inited:
        st_begin(a)
        a('s_load_dwordx2 s[18:19], s[0:1], 64')
        a('v_lshrrev_b32 v1, 6, v0'); a('v_and_b32 v0, 63, v0'); a('v_readfirstlane_b32 s20, v1')
    a(f's_lshl_b32 s21, {s_idx}, 3'); a('s_add_u32 s21, s21, s20')
    a('v_lshlrev_b32 v1, 4, v0')
    a('s_waitcnt lgkmcnt(0)')
    srd_off(a, 4, 18, WS_Z, ZBYTES); srd_off(a, 8, 18, WS_WP, ZBYTES); srd_off(a, 12, 18, WS_Y, ZBYTES)
    R = Regs(8, 256)
    ZA = R.alloc(32, 4); WC = R.alloc(32, 4)
    def load_col(dst, srd_, s_col):
        a(f's_mul_i32 s40, {s_col}, {ZP}')
        for g in range(8):
            if g == 4: a('s_add_u32 s40, s40, 4096')
            a(f'buffer_load_dwordx4 v[{dst+4*g}:{dst+4*g+3}], v1, s[{srd_}:{srd_+3}], s40 offen offset:{1024*(g & 3)}{ldsc}')
    if not poll:
        load_col(ZA, 4, 's21'); load_col(WC, 8, 's21')
    F32 = R.alloc(32, 4)
    T = R.alloc(16, 4); TWS = R.alloc(8, 4); FB0 = R.alloc(16, 4)
    fF, fH4, fPh = 2, 3, 4
    a('v_and_b32 v5, 31, v0'); a('v_cvt_f32_u32 v5, v5')
    a(f'v_lshrrev_b32 v{fH4}, 5, v0'); a(f'v_cvt_f32_u32 v{fH4}, v{fH4}'); a(f'v_mul_f32 v{fH4}, {f32(4.0)}, v{fH4}')
    a('s_and_b32 s22, s20, 1'); a('s_lshr_b32 s23, s20, 1'); a('s_and_b32 s23, s23, 1'); a('s_lshr_b32 s24, s20, 2')
    a('s_lshl_b32 s25, s23, 5'); a('v_cvt_f32_u32 v6, s25'); a('v_add_f32 v6, v6, v5'); a(f'v_mul_f32 v{fF}, {f32(1/64)}, v6')
    a('v_cvt_f32_u32 v6, s22'); a(f'v_mul_f32 v{fPh}, {f32(0.25)}, v6')
    a('s_lshl_b32 s25, s24, 5'); a('v_cvt_f32_u32 v6, s25'); a(f'v_add_f32 v6, v6, v{fH4}')
    a('s_lshl_b32 s25, s22, 1'); a('s_add_u32 s25, s25, s23'); a('s_lshl_b32 s25, s25, 3'); a('s_lshl_b32 s26, s24, 2'); a('s_add_u32 s25, s25, s26'); a('s_lshl_b32 s25, s25, 10')
    a('v_add_u32 v7, s25, v1')
    for q in range(4):
        emit_img(a, T+4+4*(q & 1), 6, 8*q, fF, f'v{fPh}', T)
        a(f'ds_write_b128 v7, v[{T+4+4*(q & 1)}:{T+7+4*(q & 1)}] offset:{COL_F64 + 1024*q}')
    a(f'v_mul_f32 v{fF}, {f32(1/32)}, v5')
    a('s_lshr_b32 s25, s20, 1'); a('s_lshl_b32 s26, s25, 3'); a('v_cvt_f32_u32 v6, s26'); a(f'v_add_f32 v6, v6, v{fH4}')
    a('s_lshl_b32 s26, s22, 2'); a('s_add_u32 s26, s26, s25'); a('s_lshl_b32 s26, s26, 10'); a('v_add_u32 v7, s26, v1')
    emit_img(a, T+4, 6, 0, fF, f'v{fPh}', T)
    a(f'ds_write_b128 v7, v[{T+4}:{T+7}] offset:{COL_F32}')
    a('s_and_b32 s25, s20, 3'); a('s_lshl_b32 s26, s25, 3'); a('v_cvt_f32_u32 v6, s26'); a(f'v_add_f32 v6, v6, v{fH4}')
    a('s_lshr_b32 s27, s20, 2'); a('s_lshl_b32 s28, s27, 5'); a('v_cvt_f32_u32 v7, s28')
    a('s_lshl_b32 s28, s27, 3'); a('s_lshl_b32 s29, s25, 1'); a('s_add_u32 s28, s28, s29'); a('s_lshl_b32 s28, s28, 10'); a(f's_add_u32 s28, s28, {COL_TWB}'); a('v_add_u32 v2, s28, v1')
    a(f'v_add_f32 v4, v6, v7'); a(f'v_mul_f32 v{T+15}, {f32(1/2048)}, v5')
    for pr in range(2):
        for e in range(2):
            emit_cs(a, T+4+e, T+6+e, 4, 2*pr+e, T+15, None, T)
        a('s_nop 0')
        a(f'ds_write_b128 v2, v[{T+4}:{T+7}] offset:{COL_TWF + 1024*pr}')
        a('s_nop 1')
    a(f'v_add_f32 v4, v5, v7'); a(f'v_mul_f32 v{T+15}, {f32(1/2048)}, v4')
    for pr in range(2):
        for e in range(2):
            emit_cs(a, T+8+e, T+10+e, 6, 2*pr+e, T+15, None, T)
        a('s_nop 0')
        for e in range(4): a(f'v_mul_f32 v{T+8+e}, {f32(2.0**-20)}, v{T+8+e}')
        a(f'ds_write_b128 v2, v[{T+8}:{T+11}] offset:{COL_TWI + 1024*pr}')
        a('s_nop 1')
    a(f'v_add_u32 v2, {COL_TWB}, v1')
    if poll: poll(a)
    a('s_waitcnt lgkmcnt(0)'); a('s_barrier')
    if poll:
        load_col(ZA, 4, 's21'); load_col(WC, 8, 's21')
    for i in range(8): a(f'ds_read_b128 v[{F32+4*i}:{F32+4*i+3}], v1 offset:{COL_F32 + 1024*i}')
    D = [[R.alloc(16, 4), R.alloc(16, 4)], [R.alloc(16, 4), R.alloc(16, 4)]]
    P = R.alloc(32, 4)
    NTW = 4
    def twiddle(dst, base):
        seq = [(blk, pr) for blk in range(2) for pr in range(8)]
        slot = lambda n: T + 8 + 4*(n % NTW)
        for n in range(NTW-1): a(f'ds_read_b128 v[{slot(n)}:{slot(n)+3}], v2 offset:{base + 1024*n}')
        for n, (blk, pr) in enumerate(seq):
            cur = slot(n)
            if n+NTW-1 < len(seq):
                nx = slot(n+NTW-1)
                a(f'ds_read_b128 v[{nx}:{nx+3}], v2 offset:{base + 1024*(n+NTW-1)}')
            a(f's_waitcnt lgkmcnt({min(NTW-1, len(seq)-1-n)})')
            r = 2*pr; re = D[0][blk]+r; im = D[1][blk]+r; u = T + 4*(n & 1)
            a(f'v_pk_mul_f32 v[{u}:{u+1}], v[{re}:{re+1}], v[{cur}:{cur+1}]')
            a(f'v_pk_mul_f32 v[{u+2}:{u+3}], v[{im}:{im+1}], v[{cur}:{cur+1}]')
            a(f'v_pk_fma_f32 v[{u}:{u+1}], v[{im}:{im+1}], v[{cur+2}:{cur+3}], v[{u}:{u+1}]')
            a(f'v_pk_fma_f32 v[{u+2}:{u+3}], v[{re}:{re+1}], v[{cur+2}:{cur+3}], v[{u+2}:{u+3}] neg_lo:[1,0,0] neg_hi:[1,0,0]')
            a(f'v_cvt_pk_bf16_f32 v{dst+16*blk+r}, v{u}, v{u+2}')
            a(f'v_cvt_pk_bf16_f32 v{dst+16*blk+r+1}, v{u+1}, v{u+3}')
    NFB = 8
    def f64_stage(data, data_is_A):
        seq = [(sg, blk, q) for blk in range(2) for sg in range(2) for q in range(8)]
        def img(n): sg, blk, q = seq[n]; return COL_F64 + ((sg*2 + blk)*8 + q)*1024
        slot = lambda n: T + 4*(n % NFB)
        for n in range(NFB-1): a(f'ds_read_b128 v[{slot(n)}:{slot(n)+3}], v1 offset:{img(n)}')
        for n, (sg, blk, q) in enumerate(seq):
            if n+NFB-1 < len(seq):
                sl = slot(n+NFB-1)
                a(f'ds_read_b128 v[{sl}:{sl+3}], v1 offset:{img(n+NFB-1)}')
            a(f's_waitcnt lgkmcnt({min(NFB-1, len(seq)-1-n)})')
            f = slot(n); d = D[sg][blk]; x = data + 4*q
            c = '0' if q == 0 else f'v[{d}:{d+15}]'
            if data_is_A: a(f'{MF} v[{d}:{d+15}], v[{x}:{x+3}], v[{f}:{f+3}], {c}')
            else: a(f'{MF} v[{d}:{d+15}], v[{f}:{f+3}], v[{x}:{x+3}], {c}')
    a.label(f'L_col_{tag}')
    a('s_waitcnt vmcnt(8) lgkmcnt(0)')
    for blk in range(2):
        for sg in range(2):
            d = D[sg][blk]
            for q in range(4):
                x = ZA + 16*blk + 4*q; f = F32 + 16*sg + 4*q
                a(f'{MF} v[{d}:{d+15}], v[{x}:{x+3}], v[{f}:{f+3}], ' + ('0' if q == 0 else f'v[{d}:{d+15}]'))
    a(f's_add_u32 s22, s21, {NWV}')
    a(f's_cmp_lt_u32 s22, 513'); a(f's_cselect_b32 s23, s22, s21')
    twiddle(P, COL_TWF)
    load_col(ZA, 4, 's23')
    f64_stage(P, False)
    a('s_waitcnt vmcnt(8)')
    for blk in range(2):
        for r in range(0, 16, 2):
            w = WC + 16*blk + r; u = T + 8*((r >> 1) & 1); xr = D[0][blk]+r; xi = D[1][blk]+r
            a(f'v_lshlrev_b32 v{u}, 16, v{w}'); a(f'v_lshlrev_b32 v{u+1}, 16, v{w+1}')
            a(f'v_and_b32 v{u+2}, 0xffff0000, v{w}'); a(f'v_and_b32 v{u+3}, 0xffff0000, v{w+1}')
            a(f'v_pk_mul_f32 v[{u+4}:{u+5}], v[{xr}:{xr+1}], v[{u}:{u+1}]')
            a(f'v_pk_mul_f32 v[{u+6}:{u+7}], v[{xr}:{xr+1}], v[{u+2}:{u+3}]')
            a(f'v_pk_fma_f32 v[{u+4}:{u+5}], v[{xi}:{xi+1}], v[{u+2}:{u+3}], v[{u+4}:{u+5}] neg_lo:[1,0,0] neg_hi:[1,0,0]')
            a(f'v_pk_fma_f32 v[{u+6}:{u+7}], v[{xi}:{xi+1}], v[{u}:{u+1}], v[{u+6}:{u+7}]')
            a(f'v_cvt_pk_bf16_f32 v{P+16*blk+r}, v{u+4}, -v{u+6}')
            a(f'v_cvt_pk_bf16_f32 v{P+16*blk+r+1}, v{u+5}, -v{u+7}')
    load_col(WC, 8, 's23')
    f64_stage(P, True)
    twiddle(P, COL_TWI)
    for blk in range(2):
        for sg in range(2):
            d = D[sg][blk]
            for q in range(4):
                x = P + 16*blk + 4*q; f = F32 + 16*sg + 4*q
                a(f'{MF} v[{d}:{d+15}], v[{f}:{f+3}], v[{x}:{x+3}], ' + ('0' if q == 0 else f'v[{d}:{d+15}]'))
    a('s_and_b32 s40, s21, 511'); a('s_cmp_lg_u32 s40, 0'); a(f's_cbranch_scc1 L_nosp_{tag}')
    a('s_mov_b32 s40, 0.5'); a('s_mov_b32 s41, 0.5')
    for sg in range(2):
        for blk in range(2):
            for r in range(0, 16, 2):
                d = D[sg][blk]+r
                a(f'v_pk_mul_f32 v[{d}:{d+1}], v[{d}:{d+1}], s[40:41]')
    a.label(f'L_nosp_{tag}')
    a(f's_mul_i32 s40, s21, {ZP}')
    for blk in range(2):
        for q in range(4):
            o = P + 16*blk + 4*q
            for i in range(4):
                a(f'v_cvt_pk_bf16_f32 v{o+i}, v{D[0][blk]+4*q+i}, v{D[1][blk]+4*q+i}')
            g = 4*blk + q
            if g == 4: a('s_add_u32 s40, s40, 4096')
            a(f'buffer_store_dwordx4 v[{o}:{o+3}], v1, s[12:15], s40 offen offset:{1024*(g & 3)}{SCY}')
    a(f's_add_u32 s21, s21, {NWV}')
    a('s_cmp_lt_u32 s21, 513'); a(f's_cbranch_scc1 L_col_{tag}')
    if stamp_end: stamp_end(a)
    else: st_end(a, 3, tag)
    a('s_endpgm')
    return R.p, COL_LDS

def gen_row_inv(a, tag, wg='s2'):
    st_begin(a)
    a('s_load_dwordx2 s[18:19], s[0:1], 64')
    a('v_lshrrev_b32 v1, 6, v0'); a('v_and_b32 v0, 63, v0'); a('v_readfirstlane_b32 s20, v1')
    a(f's_and_b32 s21, {wg}, 7'); a(f's_lshr_b32 s22, {wg}, 3')
    a('s_lshr_b32 s23, s22, 1')
    a('s_and_b32 s24, s22, 1'); a('s_lshl_b32 s25, s21, 1'); a('s_add_u32 s24, s24, s25')
    a('s_lshl_b32 s25, s23, 2'); a('s_and_b32 s26, s20, 3'); a('s_add_u32 s25, s25, s26'); a('s_lshl_b32 s25, s25, 6')
    a('s_lshl_b32 s26, s24, 2'); a('s_add_u32 s25, s25, s26'); a('s_lshr_b32 s26, s20, 2'); a('s_add_u32 s25, s25, s26')
    a('s_lshl_b32 s26, s25, 11'); a('s_add_u32 s27, s26, 4096')
    a('s_lshr_b32 s28, s24, 3'); a('s_lshl_b32 s28, s28, 2'); a('s_lshr_b32 s29, s23, 1'); a('s_add_u32 s28, s28, s29'); a('s_lshl_b32 s28, s28, 6')
    a('s_and_b32 s29, s23, 1'); a('s_lshl_b32 s29, s29, 5'); a('s_add_u32 s28, s28, s29')
    a('s_and_b32 s29, s24, 7'); a('s_lshl_b32 s29, s29, 2'); a('s_add_u32 s28, s28, s29'); a('s_lshl_b32 s28, s28, 4')
    a('s_waitcnt lgkmcnt(0)')
    srd_off(a, 4, 18, WS_Y, ZBYTES); srd_off(a, 8, 18, WS_S, 2048*2048)
    R = Regs(8, 256)
    L = R.alloc(20, 4)
    a('v_lshrrev_b32 v2, 2, v0'); a('v_and_b32 v3, 3, v0')
    a('v_mul_u32_u24 v4, 72, v2'); a('v_lshrrev_b32 v5, 3, v2'); a('v_lshl_add_u32 v4, v5, 3, v4'); a('v_lshl_add_u32 v4, v3, 4, v4')
    a('s_mul_i32 s40, s20, 1168'); a('v_add_u32 v4, s40, v4')
    a('s_lshl_b32 s40, s20, 4'); a('v_add_u32 v5, s40, v2'); a(f's_mov_b32 s41, {ZP}'); a('v_mul_lo_u32 v5, v5, s41'); a('v_lshl_add_u32 v5, v3, 4, v5')
    for it in range(5):
        a(f's_add_u32 s41, s28, {it*128*ZP}')
        a(f'buffer_load_dwordx4 v[{L+4*it}:{L+4*it+3}], v5, s[4:7], s41 offen')
    G = R.alloc(16, 4); CS = R.alloc(16, 2); SN = R.alloc(16, 2); H = R.alloc(16, 4); T = R.alloc(8, 4)
    fC32, fC1k, fH4, fPh, vSg = 2, 3, 6, 7, 1
    a(f'v_and_b32 v{T}, 31, v0')
    a(f'v_lshrrev_b32 v{T+1}, 2, v{T}'); a(f'v_and_b32 v{T+1}, 1, v{T+1}'); a(f'v_lshlrev_b32 v{T+1}, 4, v{T+1}')
    a(f'v_lshrrev_b32 v{T+2}, 3, v{T}'); a(f'v_lshl_add_u32 v{T+1}, v{T+2}, 2, v{T+1}')
    a(f'v_and_b32 v{T+2}, 3, v{T}'); a(f'v_add_u32 v{T+1}, v{T+1}, v{T+2}'); a(f'v_cvt_f32_u32 v{T+1}, v{T+1}')
    a(f'v_mul_f32 v{fC32}, {f32(1/32)}, v{T+1}'); a(f'v_mul_f32 v{fC1k}, {f32(1/1024)}, v{T+1}')
    a(f'v_lshrrev_b32 v{fH4}, 5, v0'); a(f'v_cvt_f32_u32 v{fH4}, v{fH4}'); a(f'v_mul_f32 v{fH4}, {f32(4.0)}, v{fH4}')
    for sg in range(2):
        a(f'v_mov_b32 v{fPh}, {f32(0.25*sg)}')
        for q in range(2): emit_img(a, G+8*sg+4*q, fH4, 8*q, fC32, f'v{fPh}', T)
    for r in range(16): emit_cs(a, CS+r, SN+r, fH4, (r & 3) + 8*(r >> 2), fC1k, None, T)
    a(f'v_and_b32 v{T}, 31, v0'); a(f'v_cvt_f32_u32 v{T}, v{T}'); a(f'v_mul_f32 v{fC32}, {f32(1/32)}, v{T}')
    for q in range(4): emit_img(a, H+4*q, fH4, 8*q, fC32, None, T)
    a(f'v_and_b32 v{T}, 1, v0'); a(f'v_cvt_f32_u32 v{T}, v{T}'); a(f'v_fma_f32 v{vSg}, v{T}, -2.0, 1.0')
    a('v_cmp_gt_u32 vcc, 32, v0'); a(f'v_cndmask_b32 v{vSg}, 0, v{vSg}, vcc')
    for it in range(4):
        a(f's_waitcnt vmcnt({4-it})')
        a(f'ds_write_b64 v4, v[{L+4*it}:{L+4*it+1}] offset:{9344*it}')
        a(f'ds_write_b64 v4, v[{L+4*it+2}:{L+4*it+3}] offset:{9344*it+8}')
    a('s_waitcnt vmcnt(0)')
    a('s_cmp_lg_u32 s20, 0'); a(f's_cbranch_scc1 L_no5_{tag}')
    a(f'ds_write_b64 v4, v[{L+16}:{L+17}] offset:{9344*4}')
    a(f'ds_write_b64 v4, v[{L+18}:{L+19}] offset:{9344*4+8}')
    a.label(f'L_no5_{tag}')
    a('s_waitcnt lgkmcnt(0)'); a('s_barrier')
    a('v_and_b32 v2, 31, v0'); a('v_lshrrev_b32 v3, 5, v0'); a('v_lshl_add_u32 v2, v3, 7, v2')
    a('v_lshrrev_b32 v3, 3, v2'); a('v_mul_u32_u24 v2, 72, v2'); a('v_lshl_add_u32 v2, v3, 3, v2')
    a('s_lshl_b32 s31, s20, 2'); a('v_add_u32 v2, s31, v2'); a('v_mov_b32 v3, s31')
    V = [R.alloc(8, 4), R.alloc(8, 4)]; NQ = [R.alloc(), R.alloc()]
    D1 = [[R.alloc(16, 4), R.alloc(16, 4)], [R.alloc(16, 4), R.alloc(16, 4)]]
    P = [R.alloc(16, 4), R.alloc(16, 4)]
    for z in range(2):
        for q in range(2):
            for jj in range(4):
                a(f'ds_read_b32 v{V[z]+4*q+jj}, v2 offset:{2336*(8*q+jj) + 32*z}')
        a(f'ds_read_b32 v{NQ[z]}, v3 offset:{72*512 + 8*64 + 32*z}')
    a('v_lshlrev_b32 v4, 6, v0'); a('v_and_b32 v4, 0x7ff, v4'); a('v_lshrrev_b32 v5, 5, v0'); a('v_lshl_add_u32 v4, v5, 5, v4')
    for z in range(2):
        a(f's_waitcnt lgkmcnt({9*(1-z)})')
        for sg in range(2):
            d = D1[z][sg]
            a(f'{MF} v[{d}:{d+15}], v[{V[z]}:{V[z]+3}], v[{G+8*sg}:{G+8*sg+3}], 0')
            a(f'{MF} v[{d}:{d+15}], v[{V[z]+4}:{V[z]+7}], v[{G+8*sg+4}:{G+8*sg+7}], v[{d}:{d+15}]')
        a(f'v_lshlrev_b32 v{NQ[z]}, 16, v{NQ[z]}')
    for z in range(2):
        a(f'v_fmac_f32 v{D1[z][0]}, v{NQ[z]}, v{vSg}')
        cmul_pack(a, P[z], D1[z][0], D1[z][1], CS, SN, T)
        d2 = D1[z][0]
        for q in range(4):
            a(f'{MF} v[{d2}:{d2+15}], v[{P[z]+4*q}:{P[z]+4*q+3}], v[{H+4*q}:{H+4*q+3}], ' + ('0' if q == 0 else f'v[{d2}:{d2+15}]'))
    for z in range(2):
        d2 = D1[z][0]; o = D1[z][1]
        for u in range(8): a(f'v_cvt_pk_bf16_f32 v{o+u}, v{d2+2*u}, v{d2+2*u+1}')
        so = 's26' if z == 0 else 's27'
        a(f'buffer_store_dwordx4 v[{o}:{o+3}], v4, s[8:11], {so} offen')
        a(f'buffer_store_dwordx4 v[{o+4}:{o+7}], v4, s[8:11], {so} offen offset:16')
    st_end(a, 4, tag)
    a('s_endpgm')
    return R.p, TILE_BYTES
```

```python
from asm import *
from fft import *
import fft
from gemm16 import *
from roles_gemm import *
WS_PF = 0x2C30000
WS_CS = 0x2C20000
ZB2 = 515*ZP
ROWB = 49152; TILE0 = 98304; CSP = 137216
STAT_LDS = 147456; CS_LDS = STAT_LDS + 1024; SIGC_LDS = CS_LDS + 2048; FUSED_LDS = SIGC_LDS + 64
NLOG2E = 0xbfb8aa3b
SC1 = ' sc1'
PSLEEP = 0; NOSYNC = False

def top(a, stamp):
    a('s_load_dwordx2 s[80:81], s[0:1], 0')
    a('s_load_dwordx2 s[82:83], s[0:1], 32')
    a('s_load_dwordx2 s[84:85], s[0:1], 64')
    a('s_load_dwordx2 s[86:87], s[0:1], 56')
    a('s_load_dwordx2 s[88:89], s[0:1], 40')
    if stamp: stamp_begin(a)
    a('v_lshrrev_b32 v1, 6, v0'); a('v_and_b32 v0, 63, v0'); a('v_readfirstlane_b32 s20, v1')
    for r in range(240, 252): a(f'v_mov_b32 v{r}, 0')
    a('s_and_b32 s21, s2, 7'); a('s_lshr_b32 s22, s2, 3')
    a('s_and_b32 s76, s21, 3'); a('s_lshl_b32 s76, s76, 2'); a('s_and_b32 s24, s22, 3'); a('s_add_u32 s76, s76, s24')
    a('s_lshr_b32 s77, s21, 2'); a('s_mul_i32 s77, s77, 7'); a('s_lshr_b32 s25, s22, 2'); a('s_add_u32 s77, s77, s25')

class Early:
    def __init__(s, cfg): s.cfg = cfg; s.vA = None
    def emit(s, a, tag):
        cfg = s.cfg
        a('s_cmp_lt_u32 s20, 4'); a(f's_cbranch_scc1 L_noearly_{tag}')
        a('s_sub_u32 s64, s20, 4')
        a(f's_mul_i32 s65, s76, {cfg.BM*cfg.pitchA}'); a(f's_mul_i32 s66, s77, {cfg.BN*2}')
        srd(a, 68, 80, M*Dm*2); srd(a, 72, 82, Dm*F*2)
        R = Regs(240, 256)
        s.vA, s.vW = emit_loader_setup(a, cfg, R, 0, 's64', 's65', 's66', [236, 237, 238, 239])
        a(f's_mul_i32 s78, s64, {cfg.PA*1024}')
        a(f's_mul_i32 s79, s64, {cfg.PW*1024}'); a(f's_add_u32 s79, s79, {cfg.A_BYTES}')
        a('s_mov_b32 s67, 0')
        for g in stage_load_list(cfg, s.vA, s.vW, 68, 72, 67, 67, 78, 38):
            for x in g: a(x)
        a.label(f'L_noearly_{tag}')
        return cfg.P
    def wait(s, a, n, tag):
        a(f's_waitcnt vmcnt({n + s.cfg.P})')
        a('s_cmp_ge_u32 s20, 4'); a(f's_cbranch_scc1 L_w{tag}')
        a(f's_waitcnt vmcnt({n})')
        a.label(f'L_w{tag}')

def row_part(a, tag, early):
    wg = 's2'
    a(f's_and_b32 s21, {wg}, 7'); a(f's_lshr_b32 s22, {wg}, 3')
    a('s_lshr_b32 s23, s22, 1')
    a('s_and_b32 s24, s22, 1'); a('s_lshl_b32 s25, s21, 1'); a('s_add_u32 s24, s24, s25')
    a('s_lshl_b32 s25, s23, 2'); a('s_and_b32 s26, s20, 3'); a('s_add_u32 s25, s25, s26'); a('s_lshl_b32 s25, s25, 6')
    a('s_lshl_b32 s26, s24, 2'); a('s_add_u32 s25, s25, s26'); a('s_lshr_b32 s26, s20, 2'); a('s_add_u32 s25, s25, s26')
    a('s_lshl_b32 s26, s25, 11'); a('s_add_u32 s27, s26, 4096')
    a('s_lshr_b32 s28, s24, 3'); a('s_lshl_b32 s28, s28, 2'); a('s_lshr_b32 s29, s23, 1'); a('s_add_u32 s28, s28, s29'); a('s_lshl_b32 s28, s28, 6')
    a('s_and_b32 s29, s23, 1'); a('s_lshl_b32 s29, s29, 5'); a('s_add_u32 s28, s28, s29')
    a('s_and_b32 s29, s24, 7'); a('s_lshl_b32 s29, s29, 2'); a('s_add_u32 s28, s28, s29'); a('s_lshl_b32 s28, s28, 4')
    a('v_lshlrev_b32 v1, 5, v0')
    a('s_waitcnt lgkmcnt(0)')
    srd(a, 4, 80, 2048*2048)
    R = Regs(8, 236)
    X = [R.alloc(8, 4), R.alloc(8, 4)]
    a(f'buffer_load_dwordx4 v[{X[0]}:{X[0]+3}], v1, s[4:7], s26 offen')
    a(f'buffer_load_dwordx4 v[{X[0]+4}:{X[0]+7}], v1, s[4:7], s26 offen offset:16')
    a(f'buffer_load_dwordx4 v[{X[1]}:{X[1]+3}], v1, s[4:7], s27 offen')
    a(f'buffer_load_dwordx4 v[{X[1]+4}:{X[1]+7}], v1, s[4:7], s27 offen offset:16')
    if early: early.emit(a, tag)
    srd_off(a, 12, 84, WS_Z, ZB2)
    B1 = R.alloc(16, 4); CS = R.alloc(16, 2); SN = R.alloc(16, 2); A2 = R.alloc(16, 4)
    T = R.alloc(8, 4)
    fC32, fC1k, fH, fD, fPh = 2, 3, 4, 5, 6
    a('v_and_b32 v7, 31, v0'); a('v_cvt_f32_u32 v7, v7')
    a(f'v_mul_f32 v{fC32}, {f32(1/32)}, v7'); a(f'v_mul_f32 v{fC1k}, {f32(1/1024)}, v7')
    a(f'v_lshrrev_b32 v{fH}, 5, v0'); a(f'v_cvt_f32_u32 v{fH}, v{fH}')
    a(f'v_mul_f32 v7, {f32(8.0)}, v{fH}')
    for q in range(2):
        for jj in range(4):
            for e in range(2):
                aa = 16*q + 2*jj + e
                a(f'v_add_f32 v{T}, {f32(float(aa))}, v7')
                a(f'v_mul_f32 v{T}, v{T}, v{fC32}'); a(f'v_fract_f32 v{T}, v{T}')
                a(f'v_cos_f32 v{T+1+e}, v{T}'); a(f'v_sin_f32 v{T+3+e}, v{T}')
            a('s_nop 0')
            a(f'v_cvt_pk_bf16_f32 v{B1+4*q+jj}, v{T+1}, v{T+2}')
            a(f'v_cvt_pk_bf16_f32 v{B1+8+4*q+jj}, -v{T+3}, -v{T+4}')
    a(f'v_mul_f32 v7, {f32(4.0)}, v{fH}')
    for r in range(16):
        emit_cs(a, CS+r, SN+r, 7, (r & 3) + 8*(r >> 2), fC1k, None, T)
    a(f'v_and_b32 v{fD}, 31, v0'); a(f'v_lshrrev_b32 v{fD}, 1, v{fD}'); a(f'v_cvt_f32_u32 v{fD}, v{fD}'); a(f'v_mul_f32 v{fD}, {f32(1/32)}, v{fD}')
    a(f'v_and_b32 v{fPh}, 1, v0'); a(f'v_cvt_f32_u32 v{fPh}, v{fPh}'); a(f'v_mul_f32 v{fPh}, {f32(0.25)}, v{fPh}')
    for q in range(4): emit_img(a, A2+4*q, 7, 8*q, fD, f'v{fPh}', T)
    vRB = 2; vTR, vTW = 3, 4
    a(f's_lshl_b32 s30, s20, 12'); a(f's_add_u32 s30, s30, {ROWB}')
    a(f'v_add_u32 v{vRB}, s30, v1')
    a(f'v_lshrrev_b32 v5, 5, v0'); a(f'v_lshlrev_b32 v5, 3, v5'); a(f'v_lshrrev_b32 v6, 2, v0'); a(f'v_and_b32 v6, 3, v6'); a('v_add_u32 v5, v5, v6')
    a('v_lshlrev_b32 v5, 6, v5'); a('v_lshrrev_b32 v6, 4, v0'); a('v_and_b32 v6, 1, v6'); a('v_lshl_add_u32 v5, v6, 5, v5')
    a('v_and_b32 v6, 3, v0'); a('v_lshl_add_u32 v5, v6, 3, v5'); a(f'v_add_u32 v{vTR}, s30, v5')
    a('v_and_b32 v5, 31, v0'); a('v_lshrrev_b32 v6, 5, v0'); a('v_lshl_add_u32 v5, v6, 6, v5')
    a('v_lshrrev_b32 v6, 3, v5'); a('v_mul_u32_u24 v5, 72, v5'); a('v_lshl_add_u32 v5, v6, 3, v5')
    a('s_lshl_b32 s31, s20, 2'); a(f's_add_u32 s31, s31, {TILE0}'); a(f'v_add_u32 v{vTW}, s31, v5')
    a('v_mov_b32 v5, s31')
    XF = [R.alloc(16, 2), R.alloc(16, 2)]
    S = [R.alloc(4, 2), R.alloc(4, 2)]
    if early: early.wait(a, 0, tag)
    else: a('s_waitcnt vmcnt(0)')
    for z in range(2):
        for j in range(8):
            a(f'v_lshlrev_b32 v{XF[z]+2*j}, 16, v{X[z]+j}')
            a(f'v_and_b32 v{XF[z]+2*j+1}, 0xffff0000, v{X[z]+j}')
    for z in range(2):
        a(f'v_pk_add_f32 v[{S[z]}:{S[z]+1}], v[{XF[z]}:{XF[z]+1}], v[{XF[z]+2}:{XF[z]+3}]')
    for j in range(2, 8):
        for z in range(2):
            a(f'v_pk_add_f32 v[{S[z]}:{S[z]+1}], v[{S[z]}:{S[z]+1}], v[{XF[z]+2*j}:{XF[z]+2*j+1}]')
    for z in range(2): a(f'v_add_f32 v{S[z]}, v{S[z]}, v{S[z]+1}')
    allreduce2(a, S[0], S[0]+2, S[1], S[1]+2)
    Mn = [R.alloc(2, 2), R.alloc(2, 2)]
    ST = R.alloc(4, 2)
    for z in range(2):
        a(f'v_mul_f32 v{Mn[z]}, {f32(-1/1024)}, v{S[z]}'); a(f'v_mov_b32 v{Mn[z]+1}, v{Mn[z]}')
    for z in range(2):
        for j in range(8):
            a(f'v_pk_add_f32 v[{T+2*z}:{T+2*z+1}], v[{XF[z]+2*j}:{XF[z]+2*j+1}], v[{Mn[z]}:{Mn[z]+1}]')
            if j == 0: a(f'v_pk_mul_f32 v[{S[z]}:{S[z]+1}], v[{T+2*z}:{T+2*z+1}], v[{T+2*z}:{T+2*z+1}]')
            else: a(f'v_pk_fma_f32 v[{S[z]}:{S[z]+1}], v[{T+2*z}:{T+2*z+1}], v[{T+2*z}:{T+2*z+1}], v[{S[z]}:{S[z]+1}]')
    for z in range(2): a(f'v_add_f32 v{S[z]}, v{S[z]}, v{S[z]+1}')
    allreduce2(a, S[0], S[0]+2, S[1], S[1]+2)
    for z in range(2):
        s = S[z]
        a(f'v_mul_f32 v{s}, {f32(1/1024)}, v{s}')
        a(f'v_cvt_pk_bf16_f32 v{s}, v{s}, v{s}'); a(f'v_lshlrev_b32 v{s}, 16, v{s}')
        a(f'v_add_f32 v{s}, {f32(1e-5)}, v{s}')
        a(f'v_cvt_pk_bf16_f32 v{s}, v{s}, v{s}'); a(f'v_lshlrev_b32 v{s}, 16, v{s}')
        a(f'v_sqrt_f32 v{s}, v{s}'); a('s_nop 0')
        a(f'v_cvt_pk_bf16_f32 v{s}, v{s}, v{s}'); a(f'v_lshlrev_b32 v{s}, 16, v{s}')
        a(f'v_rcp_f32 v{s}, v{s}'); a('s_nop 0'); a(f'v_mov_b32 v{s+1}, v{s}')
        m = Mn[z]
        a(f'v_cvt_pk_bf16_f32 v{m}, v{m}, v{m}'); a(f'v_lshlrev_b32 v{m}, 16, v{m}'); a(f'v_mov_b32 v{m+1}, v{m}')
        a(f'v_mul_f32 v{ST+2*z}, {hex(NLOG2E)}, v{s}'); a(f'v_mul_f32 v{ST+2*z+1}, v{ST+2*z}, v{m}')
    a('s_mov_b64 exec, 1')
    for z in range(2):
        a(f'ds_write_b32 v5, v{ST+2*z} offset:{72*513 + 8*64 + 32*z}')
        a(f'ds_write_b32 v5, v{ST+2*z+1} offset:{72*514 + 8*64 + 32*z}')
    a('s_mov_b64 exec, -1')
    for z in range(2):
        for j in range(8):
            u = T + 2*((j & 1) + 2*z)
            a(f'v_pk_add_f32 v[{u}:{u+1}], v[{XF[z]+2*j}:{XF[z]+2*j+1}], v[{Mn[z]}:{Mn[z]+1}]')
            a(f'v_pk_mul_f32 v[{u}:{u+1}], v[{u}:{u+1}], v[{S[z]}:{S[z]+1}]')
            a(f'v_cvt_pk_bf16_f32 v{X[z]+j}, v{u}, v{u+1}')
    for z in range(2):
        a(f'ds_write_b128 v{vRB}, v[{X[z]}:{X[z]+3}] offset:{2048*z}')
        a(f'ds_write_b128 v{vRB}, v[{X[z]+4}:{X[z]+7}] offset:{2048*z+16}')
    AD = [R.alloc(8, 4), R.alloc(8, 4)]
    D1 = [[R.alloc(16, 4), R.alloc(16, 4)], [R.alloc(16, 4), R.alloc(16, 4)]]
    a('s_waitcnt lgkmcnt(0)')
    for z in range(2):
        for q in range(2):
            for jj in range(2):
                a(f'ds_read_b64_tr_b16 v[{AD[z]+4*q+2*jj}:{AD[z]+4*q+2*jj+1}], v{vTR} offset:{2048*z + 1024*q + 256*jj}')
    for z in range(2):
        a(f's_waitcnt lgkmcnt({4*(1-z)})')
        for sg in range(2):
            d = D1[z][sg]
            a(f'{MF} v[{d}:{d+15}], v[{AD[z]}:{AD[z]+3}], v[{B1+8*sg}:{B1+8*sg+3}], 0')
            a(f'{MF} v[{d}:{d+15}], v[{AD[z]+4}:{AD[z]+7}], v[{B1+8*sg+4}:{B1+8*sg+7}], v[{d}:{d+15}]')
    P = XF; ALT = S
    for z in range(2):
        d = D1[z][0]
        a(f'v_pk_add_f32 v[{ALT[z]}:{ALT[z]+1}], v[{d}:{d+1}], v[{d+2}:{d+3}]')
        for j in range(2, 8): a(f'v_pk_add_f32 v[{ALT[z]}:{ALT[z]+1}], v[{ALT[z]}:{ALT[z]+1}], v[{d+2*j}:{d+2*j+1}]')
        a(f'v_sub_f32 v{ALT[z]}, v{ALT[z]}, v{ALT[z]+1}')
        a(f'v_mov_b32 v{ALT[z]+1}, v{ALT[z]}'); a(f'v_permlane32_swap_b32 v{ALT[z]}, v{ALT[z]+1}'); a(f'v_add_f32 v{ALT[z]}, v{ALT[z]}, v{ALT[z]+1}')
        a(f'v_mov_b32 v{ALT[z]+1}, 0'); a(f'v_cvt_pk_bf16_f32 v{ALT[z]}, v{ALT[z]}, v{ALT[z]+1}')
        cmul_pack(a, P[z], D1[z][0], D1[z][1], CS, SN, T)
        d2 = D1[z][0]
        for q in range(4):
            a(f'{MF} v[{d2}:{d2+15}], v[{A2+4*q}:{A2+4*q+3}], v[{P[z]+4*q}:{P[z]+4*q+3}], ' + ('0' if q == 0 else f'v[{d2}:{d2+15}]'))
    for z in range(2):
        d2 = D1[z][0]; o = D1[z][1]
        for u in range(8):
            a(f'v_cvt_pk_bf16_f32 v{o+u}, v{d2+2*u}, v{d2+2*u+1}')
            du = 32*(u & 1) + 128*(u >> 1)
            a(f'ds_write_b32 v{vTW}, v{o+u} offset:{73*du + 32*z}')
    a('s_mov_b64 exec, 1')
    for z in range(2): a(f'ds_write_b32 v5, v{ALT[z]} offset:{72*512 + 8*64 + 32*z}')
    a('s_mov_b64 exec, -1')
    a('s_waitcnt lgkmcnt(0)'); a('s_barrier')
    return R.p

def wp_part(a, tag, early, tables, nocs=False):
    wg = 's2'
    a('s_load_dwordx4 s[16:19], s[0:1], 8')
    a(f's_and_b32 s21, {wg}, 7'); a(f's_lshr_b32 s22, {wg}, 3'); a('s_and_b32 s22, s22, 15')
    a('s_and_b32 s24, s21, 3'); a('s_lshl_b32 s24, s24, 1'); a('s_and_b32 s25, s22, 1'); a('s_add_u32 s24, s24, s25')
    a('s_lshr_b32 s23, s21, 2'); a('s_lshl_b32 s23, s23, 3'); a('s_lshr_b32 s25, s22, 1'); a('s_add_u32 s23, s23, s25')
    a('s_lshl_b32 s25, s23, 2'); a('s_and_b32 s26, s20, 3'); a('s_add_u32 s25, s25, s26'); a('s_lshl_b32 s25, s25, 5')
    a('s_lshl_b32 s26, s24, 2'); a('s_add_u32 s25, s25, s26'); a('s_lshr_b32 s26, s20, 2'); a('s_add_u32 s25, s25, s26')
    a('s_mul_i32 s26, s25, 1026'); a('s_add_u32 s27, s26, 2052')
    a('s_lshr_b32 s28, s23, 1'); a('s_lshl_b32 s28, s28, 6'); a('s_and_b32 s29, s23, 1'); a('s_lshl_b32 s29, s29, 5'); a('s_add_u32 s28, s28, s29')
    a('s_lshl_b32 s29, s24, 2'); a('s_add_u32 s28, s28, s29'); a('s_lshl_b32 s28, s28, 4')
    a('v_lshlrev_b32 v1, 4, v0'); a('v_mov_b32 v3, 1024')
    a('s_and_b32 s34, s2, 127')
    a('s_waitcnt lgkmcnt(0)')
    srd(a, 4, 16, 2048*1026); srd(a, 8, 18, 2048*1026)
    R = Regs(8, 236)
    if tables:
        ZV = R.alloc(4, 4); ZA_ = R.alloc(2)
        for i in range(4): a(f'v_mov_b32 v{ZV+i}, 0')
        all_addr(a, ZA_)
        srd_off(a, 96, 84, WS_PF, 4096); srd(a, 92, 86, 256)
        a('s_cmp_lg_u32 s2, 240'); a(f's_cbranch_scc1 L_noclr_{tag}'); a('s_cmp_lg_u32 s20, 7'); a(f's_cbranch_scc1 L_noclr_{tag}')
        a(f'buffer_store_dwordx4 v[{ZV}:{ZV+3}], v{ZA_}, s[96:99], 0 offen sc1')
        a.label(f'L_noclr_{tag}')
    WR = [R.alloc(4, 4), R.alloc(4, 4)]; WI = [R.alloc(4, 4), R.alloc(4, 4)]; NY = [R.alloc(2), R.alloc(2)]
    for z, so in enumerate(('s26', 's27')):
        a(f'buffer_load_dwordx4 v[{WR[z]}:{WR[z]+3}], v1, s[4:7], {so} offen')
        a(f'buffer_load_dwordx4 v[{WI[z]}:{WI[z]+3}], v1, s[8:11], {so} offen')
        a(f'buffer_load_ushort v{NY[z]}, v3, s[4:7], {so} offen')
        a(f'buffer_load_ushort v{NY[z]+1}, v3, s[8:11], {so} offen')
    PF = R.alloc(32, 4)
    srd(a, 36, 82, 1024*7168)
    a('v_lshrrev_b32 v2, 3, v0'); a('s_lshl_b32 s40, s20, 3'); a('v_add_u32 v2, s40, v2'); a('s_mov_b32 s41, 7168'); a('v_mul_lo_u32 v2, v2, s41')
    a('v_and_b32 v6, 7, v0'); a('v_lshl_add_u32 v2, v6, 4, v2')
    a('s_and_b32 s40, s34, 1'); a(f's_mul_i32 s40, s40, {512*7168}'); a('s_lshr_b32 s41, s34, 1'); a('s_lshl_b32 s41, s41, 7'); a('s_add_u32 s40, s40, s41')
    a('s_cmp_lt_u32 s34, %d' % (0 if nocs else 112)); a(f's_cselect_b32 s40, s40, {hex(0x7000000)}')
    for i in range(8):
        a(f'buffer_load_dwordx4 v[{PF+4*i}:{PF+4*i+3}], v2, s[36:39], s40 offen')
        a(f's_add_u32 s40, s40, {64*7168}')
    if early: early.emit(a, tag)
    srd_off(a, 12, 84, WS_WP, ZBYTES)
    O = R.alloc(16, 4)
    a('v_mul_u32_u24 v4, 584, v0'); a('s_lshl_b32 s31, s20, 2'); a(f's_add_u32 s31, s31, {TILE0}'); a('v_add_u32 v4, s31, v4')
    a('s_mov_b32 s29, 0x05040100'); a('s_mov_b32 s30, 0x07060302')
    if tables:
        a(f's_cmp_lg_u32 s2, 255'); a(f's_cbranch_scc1 L_notab_{tag}'); a('s_cmp_lg_u32 s20, 7'); a(f's_cbranch_scc1 L_notab_{tag}')
        gen_rinv_tables(a, R, 84, 44)
        a('s_waitcnt vmcnt(0)')
        a.label(f'L_notab_{tag}')
    if early: early.wait(a, 8, tag + 'a')
    else: a('s_waitcnt vmcnt(8)')
    if tables:
        a('s_cmp_lg_u32 s2, 240'); a(f's_cbranch_scc1 L_noopen_{tag}'); a('s_cmp_lg_u32 s20, 7'); a(f's_cbranch_scc1 L_noopen_{tag}')
        a(f'v_mov_b32 v{ZA_}, 0'); a(f'v_mov_b32 v{ZA_+1}, 1'); a('s_mov_b64 exec, 1')
        a(f'buffer_store_dword v{ZA_+1}, v{ZA_}, s[92:95], 0 offen sc1')
        a('s_mov_b64 exec, -1')
        a.label(f'L_noopen_{tag}')
    for z in range(2):
        for j in range(4):
            a(f'v_perm_b32 v{O+8*z+2*j}, v{WI[z]+j}, v{WR[z]+j}, s29')
            a(f'v_perm_b32 v{O+8*z+2*j+1}, v{WI[z]+j}, v{WR[z]+j}, s30')
        for e in range(8):
            a(f'ds_write_b32 v4, v{O+8*z+e} offset:{72*e + 32*z}')
    for z in range(2): a(f'v_lshl_or_b32 v{NY[z]}, v{NY[z]+1}, 16, v{NY[z]}')
    a('s_mov_b64 exec, 1')
    a('v_mov_b32 v5, s31')
    for z in range(2): a(f'ds_write_b32 v5, v{NY[z]} offset:{72*512 + 8*64 + 32*z}')
    a('s_mov_b64 exec, -1')
    AC = R.alloc(8, 4); U = R.alloc(8, 2)
    if early: early.wait(a, 0, tag + 'b')
    else: a('s_waitcnt vmcnt(0)')
    for i in range(8):
        for d in range(4):
            u = U + 2*(d & 3)
            dst = AC + 2*d if i == 0 else u
            a(f'v_lshlrev_b32 v{dst}, 16, v{PF+4*i+d}'); a(f'v_and_b32 v{dst+1}, 0xffff0000, v{PF+4*i+d}')
        if i:
            for d in range(4):
                u = U + 2*d
                a(f'v_pk_add_f32 v[{AC+2*d}:{AC+2*d+1}], v[{AC+2*d}:{AC+2*d+1}], v[{u}:{u+1}]')
    for r in range(8): a(f'v_add_f32_dpp v{AC+r}, v{AC+r}, v{AC+r} row_ror:8 row_mask:0xf bank_mask:0xf')
    for op in ('v_permlane16_swap_b32', 'v_permlane32_swap_b32'):
        for r in range(8): a(f'v_mov_b32 v{U+r}, v{AC+r}')
        for r in range(8): a(f'{op} v{AC+r}, v{U+r}')
        for r in range(8): a(f'v_add_f32 v{AC+r}, v{AC+r}, v{U+r}')
    a('v_lshlrev_b32 v6, 5, v0'); a('s_lshl_b32 s40, s20, 8'); a(f's_add_u32 s40, s40, {CSP}'); a('v_add_u32 v6, s40, v6')
    a('s_mov_b64 exec, 0xff')
    a(f'ds_write_b128 v6, v[{AC}:{AC+3}]'); a(f'ds_write_b128 v6, v[{AC+4}:{AC+7}] offset:16')
    a('s_mov_b64 exec, -1')
    a('s_waitcnt lgkmcnt(0)'); a('s_barrier')
    a('s_cmp_lg_u32 s20, 0'); a(f's_cbranch_scc1 L_nocs_{tag}')
    a('s_cmp_ge_u32 s34, 112'); a(f's_cbranch_scc1 L_nocs_{tag}')
    a(f'v_lshlrev_b32 v6, 2, v0'); a(f'v_add_u32 v7, {CSP}, v6')
    for w in range(8): a(f'ds_read_b32 v{U+w}, v7 offset:{256*w}')
    srd_off(a, 36, 84, WS_CS, 2*3584*4)
    a('s_and_b32 s40, s34, 1'); a(f's_mul_i32 s40, s40, {3584*4}'); a('s_lshr_b32 s41, s34, 1'); a('s_lshl_b32 s41, s41, 8'); a('s_add_u32 s40, s40, s41')
    a('s_waitcnt lgkmcnt(0)')
    for h in (4, 2, 1):
        for w in range(h): a(f'v_add_f32 v{U+w}, v{U+w}, v{U+w+h}')
    a(f'buffer_store_dword v{U}, v6, s[36:39], s40 offen sc1')
    a.label(f'L_nocs_{tag}')
    return R.p

def gate_issue(a, vt):
    srd(a, 92, 86, 256)
    a(f'v_mov_b32 v{vt}, 0')
    a(f'buffer_load_dword v{vt+1}, v{vt}, s[92:95], 0 offen sc1')
def signal(a, vt, tag):
    srd(a, 92, 86, 256)
    a('s_mov_b32 s42, 0')
    a.label(f'L_gate_{tag}')
    a(f'v_readfirstlane_b32 s40, v{vt+1}'); a('s_cmp_eq_u32 s40, 1'); a(f's_cbranch_scc1 L_gateok_{tag}')
    if PSLEEP: a(f's_sleep {PSLEEP}')
    a(f'buffer_load_dword v{vt+1}, v{vt}, s[92:95], 0 offen sc1')
    a('s_waitcnt vmcnt(0)')
    a('s_add_u32 s42, s42, 1'); a('s_cmp_lt_u32 s42, 0x8000'); a(f's_cbranch_scc1 L_gate_{tag}')
    a.label(f'L_gateok_{tag}')
    srd_off(a, 96, 84, WS_PF, 4096)
    a('s_lshr_b32 s40, s2, 3'); a('s_lshl_b32 s40, s40, 7'); a('s_and_b32 s41, s2, 7'); a('s_lshl_b32 s41, s41, 2'); a('s_add_u32 s40, s40, s41')
    a(f'v_mov_b32 v{vt}, s40'); a(f'v_mov_b32 v{vt+1}, 1'); a('s_mov_b64 exec, 1')
    if not NOSYNC: a(f'buffer_store_dword v{vt+1}, v{vt}, s[96:99], 0 offen sc1')
    a('s_mov_b64 exec, -1')

def all_addr(a, vt):
    a(f'v_lshrrev_b32 v{vt}, 1, v0'); a(f'v_lshlrev_b32 v{vt}, 7, v{vt}'); a(f'v_and_b32 v{vt+1}, 1, v0'); a(f'v_lshl_add_u32 v{vt}, v{vt+1}, 4, v{vt}')
def poll_all(a, vt, vd, tag):
    srd_off(a, 96, 84, WS_PF, 4096)
    all_addr(a, vt)
    a('s_mov_b32 s42, 0')
    a.label(f'L_poll_{tag}')
    a(f'buffer_load_dwordx4 v[{vd}:{vd+3}], v{vt}, s[96:99], 0 offen sc1')
    a('s_waitcnt vmcnt(0)')
    for i in range(4):
        a(f'v_cmp_eq_u32 vcc, 1, v{vd+i}')
        if i == 0: a('s_mov_b64 s[40:41], vcc')
        else: a('s_and_b64 s[40:41], s[40:41], vcc')
    a('s_cmp_eq_u64 s[40:41], -1'); a(f's_cbranch_scc1 L_pollok_{tag}')
    if NOSYNC: a(f's_branch L_pollok_{tag}')
    if PSLEEP: a(f's_sleep {PSLEEP}')
    a('s_add_u32 s42, s42, 1'); a('s_cmp_lt_u32 s42, 0x8000'); a(f's_cbranch_scc1 L_poll_{tag}')
    a.label(f'L_pollok_{tag}')
def poll3_addr(a, vt):
    a('s_lshr_b32 s40, s76, 1'); a('s_lshl_b32 s40, s40, 1'); a('s_add_u32 s41, s77, 16')
    a(f'v_lshrrev_b32 v{vt}, 3, v0'); a(f'v_add_u32 v{vt}, s40, v{vt}'); a(f'v_mov_b32 v{vt+1}, s41')
    a('v_cmp_gt_u32 vcc, 16, v0'); a(f'v_cndmask_b32 v{vt}, v{vt+1}, v{vt}, vcc')
    a(f'v_lshlrev_b32 v{vt}, 7, v{vt}'); a(f'v_and_b32 v{vt+1}, 7, v0'); a(f'v_lshl_add_u32 v{vt}, v{vt+1}, 2, v{vt}')
def poll3_check(a, vt, tag):
    a('s_mov_b32 s42, 0'); a(f's_branch L_pc_{tag}')
    a.label(f'L_poll_{tag}')
    if PSLEEP: a(f's_sleep {PSLEEP}')
    a(f'buffer_load_dword v{vt+1}, v{vt}, s[96:99], 0 offen sc1')
    a('s_waitcnt vmcnt(0)')
    a.label(f'L_pc_{tag}')
    a(f'v_cmp_eq_u32 vcc, 1, v{vt+1}')
    a('s_cmp_eq_u64 vcc, -1'); a(f's_cbranch_scc1 L_pollok_{tag}')
    if NOSYNC: a(f's_branch L_pollok_{tag}')
    a('s_add_u32 s42, s42, 1'); a('s_cmp_lt_u32 s42, 0x8000'); a(f's_cbranch_scc1 L_poll_{tag}')
    a.label(f'L_pollok_{tag}')

def stamp_rec(a, regs, slot, endlabel, ws=84):
    a('s_waitcnt vmcnt(0)'); a('s_memrealtime s[56:57]'); a('s_waitcnt lgkmcnt(0)')
    a('s_cmp_lg_u32 s20, 0'); a(f's_cbranch_scc1 {endlabel}')
    srd_off(a, 12, ws, WS_DBG + slot*0x4000, 0x4000)
    for i, r in enumerate(regs): a(f'v_mov_b32 v{12+i}, s{r}')
    a('s_lshl_b32 s40, s2, 6'); a('v_mov_b32 v10, s40')
    a('v_cmp_eq_u32 vcc, 0, v0'); a('s_and_saveexec_b64 s[62:63], vcc')
    for i in range((len(regs)+3)//4): a(f'buffer_store_dwordx4 v[{12+4*i}:{15+4*i}], v10, s[12:15], 0 offen offset:{16*i}')

def g1_part(a, tag, cfg, early, stamp, hsc, sigk, tsc=SC1):
    tmp = [1, 2, 3, 4]
    if stamp: a('s_memrealtime s[90:91]')
    a('s_mov_b32 s23, s76'); a('s_mov_b32 s24, s77')
    a(f's_mul_i32 s26, s23, {cfg.BM*cfg.pitchA}'); a(f's_mul_i32 s27, s24, {cfg.BN*2}')
    emit_consts(a, cfg)
    a(f's_cmp_ge_u32 s20, {cfg.NC}'); a(f's_cbranch_scc1 L_loader_{tag}')
    a('v_mov_b32 v65, 1')
    a('s_cmp_lg_u32 s20, 0'); a(f's_cbranch_scc1 L_nogate_{tag}')
    gate_issue(a, 64)
    a.label(f'L_nogate_{tag}')
    save = fft.SC; fft.SC = tsc
    tile_store_phase(a, 0, 's20', 12, 28, 8, TILE0, tag + 'a')
    a('s_add_u32 s21, s20, 4')
    tile_store_phase(a, 0, 's21', 12, 28, 40, TILE0, tag + 'b')
    fft.SC = save
    srd_off(a, 12, 84, HP.off, M*HP.pitch)
    a(f's_and_b32 s37, s20, {cfg.WN-1}')
    a(f's_lshr_b32 s36, s20, {cfg.WN.bit_length()-1}')
    Rc = Regs(72, 256)
    sets = emit_consumer_addr2(a, cfg, Rc, 0, 's36', 's37', tmp)
    vO = 5; vST = 6; vCS = 7
    Fr = consumer_regs(cfg, Regs(8, 256))
    Fr['acc'] = Rc.alloc(4*cfg.TM*cfg.TN, 4)
    acc = Fr['acc']
    for i in range(4*cfg.TM*cfg.TN): a(f'v_mov_b32 v{acc+i}, 0')
    a('s_waitcnt lgkmcnt(0)')
    a('s_waitcnt vmcnt(0)')
    a('v_mov_b32 v3, v65'); a('v_mov_b32 v2, 0')
    if stamp: a('s_memrealtime s[64:65]'); a('s_waitcnt lgkmcnt(0)')
    def first(a):
        a('s_cmp_lg_u32 s20, 0'); a(f's_cbranch_scc1 L_nosig_{tag}')
        signal(a, 2, tag)
        a.label(f'L_nosig_{tag}')
    ool = emit_consumer_loop2(a, cfg, Fr, sets, 32, tag, hooks={'first': first, 'pre_bar': dict([(5, ['s_memrealtime s[66:67]', 's_waitcnt lgkmcnt(0)']), (9, ['s_memrealtime s[68:69]', 's_waitcnt lgkmcnt(0)'])] if stamp else [])})
    if stamp: stamp_mid(a)
    STv = Fr['A'][0]; CSv = STv + 16
    a(f'v_and_b32 v{tmp[1]}, 15, v0'); a(f'v_lshlrev_b32 v{vST}, 3, v{tmp[1]}'); a(f'v_add_u32 v{vST}, {STAT_LDS}, v{vST}')
    a(f'v_lshrrev_b32 v{vCS}, 4, v0'); a(f'v_lshlrev_b32 v{vCS}, 4, v{vCS}'); a(f's_mul_i32 s40, s37, {cfg.TN*64}'); a(f's_add_u32 s40, s40, {CS_LDS}'); a(f'v_add_u32 v{vCS}, s40, v{vCS}')
    st = Fr['W'][0]; ndst = 3; tb = st + 4*ndst
    for t in range(cfg.TN): a(f'ds_read_b128 v[{CSv+4*t}:{CSv+4*t+3}], v{vCS} offset:{64*t}')
    for t in range(cfg.TN): a(f'ds_read_b128 v[{st+4*t}:{st+4*t+3}], v{vCS} offset:{1024+64*t}')
    for mt in range(cfg.TM): a(f'ds_read_b64 v[{STv+2*mt}:{STv+2*mt+1}], v{vST} offset:{128*mt}')
    a('s_mov_b32 s46, 0xbfb8aa3b'); a('s_mov_b32 s47, 0xbfb8aa3b')
    a(f's_mul_i32 s40, s23, {cfg.BM}'); a(f's_mul_i32 s41, s36, {cfg.TM*16}'); a('s_add_u32 s40, s40, s41')
    a(f'v_add_u32 v{tmp[1]}, s40, v{tmp[1]}')
    a(f's_mov_b32 s41, {HP.pitch}')
    a(f'v_mul_lo_u32 v{vO}, v{tmp[1]}, s41')
    a(f'v_lshrrev_b32 v{tmp[1]}, 4, v0'); a(f'v_and_b32 v{tmp[2]}, 1, v{tmp[1]}'); a(f'v_lshl_add_u32 v{vO}, v{tmp[2]}, 5, v{vO}')
    a(f'v_lshrrev_b32 v{tmp[1]}, 5, v0'); a(f'v_lshl_add_u32 v{vO}, v{tmp[1]}, 4, v{vO}')
    a(f's_mul_i32 s40, s37, {cfg.TN*32}'); a('s_add_u32 s40, s40, s27')
    a(f'v_add_u32 v{vO}, s40, v{vO}')
    a(f's_waitcnt lgkmcnt({cfg.TM})')
    for i in range(0, 4*cfg.TN, 2): a(f'v_pk_add_f32 v[{CSv+i}:{CSv+i+1}], v[{CSv+i}:{CSv+i+1}], v[{st+i}:{st+i+1}]')
    a('s_waitcnt lgkmcnt(0)')
    def act4(c, t, cs, sp):
        for j in (0, 2): a(f'v_pk_mul_f32 v[{t+j}:{t+j+1}], v[{cs+j}:{cs+j+1}], v[{sp}:{sp+1}] op_sel:[0,1] op_sel_hi:[1,1]')
        for j in (0, 2): a(f'v_pk_fma_f32 v[{c+j}:{c+j+1}], v[{c+j}:{c+j+1}], v[{sp}:{sp+1}], v[{t+j}:{t+j+1}] op_sel:[0,0,0] op_sel_hi:[1,0,1]')
        for j in range(4): a(f'v_exp_f32 v{t+j}, v{c+j}')
        for j in (0, 2): a(f'v_pk_fma_f32 v[{t+j}:{t+j+1}], v[{t+j}:{t+j+1}], s[46:47], s[46:47]')
        for j in range(4): a(f'v_rcp_f32 v{t+j}, v{t+j}')
        for j in (0, 2): a(f'v_pk_mul_f32 v[{t+j}:{t+j+1}], v[{c+j}:{c+j+1}], v[{t+j}:{t+j+1}]')
    k = 0
    for mt in range(cfg.TM):
        for tp in range(cfg.TN//2):
            d = st + (k % ndst)*4; tt = tb + (k % 2)*8; k += 1
            c0 = acc + 4*(mt*cfg.TN + 2*tp); c1 = c0 + 4
            act4(c0, tt, CSv + 8*tp, STv + 2*mt); act4(c1, tt+4, CSv + 8*tp + 4, STv + 2*mt)
            for j in range(4): a(f'v_cvt_pk_bf16_f32 v{d+j}, v{tt+2*j}, v{tt+2*j+1}')
            a(f'v_permlane16_swap_b32 v{d}, v{d+2}')
            a(f'v_permlane16_swap_b32 v{d+1}, v{d+3}')
            a(f's_mov_b32 s40, {mt*16*HP.pitch}')
            a(f'buffer_store_dwordx4 v[{d}:{d+3}], v{vO}, s[12:15], s40 offen offset:{tp*64}{hsc}')
    if stamp:
        a('s_waitcnt lgkmcnt(0)'); a('s_sub_u32 s60, s60, s58')
        stamp_rec(a, (52, 53, 90, 91, 54, 55, 56, 57, 64, 65, 66, 67, 68, 69, 68, 69), 0, f'L_g1end_{tag}')
    a.label(f'L_g1end_{tag}')
    a('s_endpgm')
    for blk in ool:
        for ln in blk: a(ln)
    a.label(f'L_loader_{tag}')
    a(f's_sub_u32 s35, s20, {cfg.NC}')
    srd(a, 4, 80, M*Dm*2); srd(a, 8, 82, Dm*F*2)
    Rl = Regs(5, 236)
    X = {k: Rl.alloc() for k in ('d', 'l', 'z', 'p', 'p1', 'sa', 'l16')}
    a(f's_mov_b32 s28, 0'); a('s_mov_b32 s29, 0')
    a(f's_mul_i32 s30, s35, {cfg.PA*1024}')
    a(f's_mul_i32 s31, s35, {cfg.PW*1024}'); a(f's_add_u32 s31, s31, {cfg.A_BYTES}')
    n_main = cfg.NST - (cfg.S-1)
    def after_pro(a):
        a('s_lshl_b32 s66, s2, 2'); a('s_add_u32 s66, s66, s35')
        a(f'v_lshlrev_b32 v{X["l"]}, 6, v0'); a(f'v_mov_b32 v{X["z"]}, 0')
        srd_off(a, 72, 84, WS_FLG, 0x10000)
        srd(a, 68, 88, F*Dm*2)
        srd_off(a, 48, 84, WS_Z, ZB2); srd_off(a, 52, 84, WS_CS, 2*3584*4)
        a(f'v_and_b32 v{X["sa"]}, 1, v0'); a(f'v_mul_u32_u24 v{X["sa"]}, {ZP}, v{X["sa"]}')
        a(f'v_lshrrev_b32 v{X["l16"]}, 1, v0'); a(f'v_lshl_add_u32 v{X["sa"]}, v{X["l16"]}, 4, v{X["sa"]}')
        a(f'v_lshlrev_b32 v{X["l16"]}, 4, v0')
        srd_off(a, 96, 84, WS_PF, 4096); poll3_addr(a, X['p']); a(f'v_mov_b32 v{X["p1"]}, 0')
    CSS = 52
    def post_bar(a):
        a('s_cmp_lg_u32 s35, 0'); a(f's_cbranch_scc1 L_nop2_{tag}')
        a(f's_cmp_lg_u32 s32, {n_main-2}'); a(f's_cbranch_scc1 L_nop1_{tag}')
        a(f'buffer_load_dword v{X["p1"]}, v{X["p"]}, s[96:99], 0 offen sc1')
        a.label(f'L_nop1_{tag}')
        a(f's_cmp_lg_u32 s32, {n_main-1}'); a(f's_cbranch_scc1 L_nop2_{tag}')
        poll3_check(a, X['p'], tag)
        for lw in range(4):
            a('s_lshl_b32 s40, s76, 1'); a(f's_add_u32 s40, s40, {lw >> 1}')
            a('s_lshr_b32 s41, s40, 3'); a(f's_add_u32 s41, s41, {4*(lw & 1)}'); a('s_lshl_b32 s41, s41, 6')
            a('s_lshr_b32 s42, s40, 2'); a('s_and_b32 s42, s42, 1'); a('s_lshl_b32 s42, s42, 5'); a('s_add_u32 s41, s41, s42')
            a('s_lshl_b32 s41, s41, 4'); a('s_and_b32 s40, s40, 3'); a('s_lshl_b32 s40, s40, 2'); a('s_add_u32 s41, s41, s40')
            a(f's_add_u32 s41, s41, {513*ZP}')
            a(f's_mov_b32 m0, {STAT_LDS + 256*lw}'); a('s_nop 0')
            a(f'buffer_load_dword v{X["sa"]}, s[48:51], s41 offen sc1 lds')
        for kh in range(2):
            a('s_lshl_b32 s41, s77, 10'); a(f's_add_u32 s41, s41, {kh*3584*4}')
            a(f's_mov_b32 m0, {CS_LDS + 1024*kh}'); a('s_nop 0')
            a(f'buffer_load_dwordx4 v{X["l16"]}, s[{CSS}:{CSS+3}], s41 offen sc1 lds')
        a.label(f'L_nop2_{tag}')
    def tail(a):
        a('s_lshl_b32 s40, s66, 13')
        a(f'buffer_load_dword v{X["d"]}, v{X["l"]}, s[68:71], s40 offen')
        a('s_add_u32 s40, s40, 4096')
        a(f'buffer_load_dword v{X["d"]}, v{X["l"]}, s[68:71], s40 offen')
        a('s_lshl_b32 s40, s66, 12')
        a(f'buffer_store_dword v{X["z"]}, v{X["l"]}, s[72:75], s40 offen')
        return 3
    emit_loader_loop(a, cfg, early.vA, early.vW, 4, 8, 28, 29, 30, 32, 33, 38, tag, tail, after_pro=after_pro, post_bar=post_bar, pro_done=1)
    a('s_endpgm')
    return 256

def gen_fused(a, stamp=False, hsc=' sc1', sigk=1, tsc=SC1, nocs=False, psleep=0, nosync=False, nocol=False):
    global PSLEEP, NOSYNC
    PSLEEP = psleep; NOSYNC = nosync
    cfg = G16(S=3)
    top(a, stamp)
    a('s_cmp_ge_u32 s2, 224'); a('s_cbranch_scc1 L_col_role')
    a('s_cmp_ge_u32 s2, 128'); a('s_cbranch_scc1 L_wp_role')
    e1 = Early(cfg)
    n1 = row_part(a, 'rf', e1)
    a('s_branch L_g1_start')
    a.label('L_wp_role')
    e2 = Early(cfg)
    n2 = wp_part(a, 'wp', e2, False, nocs)
    assert e1.vA == e2.vA and e1.vW == e2.vW
    a.label('L_g1_start')
    g1_part(a, 'g1', cfg, e1, stamp, hsc, sigk, tsc)
    a.label('L_col_role')
    n3 = wp_part(a, 'wc', None, True, nocs)
    a('v_mov_b32 v65, 1')
    a('s_cmp_lg_u32 s20, 0'); a('s_cbranch_scc1 L_colnogate')
    gate_issue(a, 64)
    a.label('L_colnogate')
    save = fft.SC; fft.SC = tsc
    tile_store_phase(a, 0, 's20', 12, 28, 8, TILE0, 'wc')
    fft.SC = save
    a('s_waitcnt vmcnt(0)'); a('s_barrier')
    a('s_cmp_lg_u32 s20, 0'); a('s_cbranch_scc1 L_colnosig')
    signal(a, 64, 'col')
    a.label('L_colnosig')
    if stamp: a('s_memrealtime s[90:91]')
    if nocol: a('s_endpgm')
    a('s_mov_b32 s18, s84'); a('s_mov_b32 s19, s85')
    a('s_sub_u32 s3, s2, 224')
    def poll(a):
        a('s_cmp_lg_u32 s20, 0'); a('s_cbranch_scc1 L_colnopoll')
        poll_all(a, 5, 8, 'col')
        a.label('L_colnopoll')
        if stamp: a('s_memrealtime s[54:55]')
    def stamp_end(a):
        if stamp: stamp_rec(a, (52, 53, 90, 91, 54, 55, 56, 57), 3, 'L_colend', ws=84)
        a.label('L_colend')
    n4, l4 = gen_col(a, 'c', 's3', 32, inited=True, poll=poll, ldsc=SC1, stamp_end=stamp_end)
    return 256, FUSED_LDS
```

```python
import sys
from asm import *
from fft import *
from roles_gemm import *
import hazard, fft
from full import wrap, KN
def common(stamp, hsc=' sc1', sentinel='f', cprefetch=False, sc='', scy='', unroll=True):
    fft.SC = sc if sc != 'x' else ''; fft.SCX = ' sc1' if sc in ('x', ' sc1') else ''; fft.SCY = scy
    ks = []
    fft.STAMP = stamp
    a = Asm(); name = 'prep_kernel'
    a('s_cmp_ge_u32 s2, 256'); a(f's_cbranch_scc1 L_end_{name}')
    a('s_cmp_ge_u32 s2, 128'); a(f's_cbranch_scc1 L_wp_{name}')
    nv1, l1 = gen_row_fwd(a, 'rf')
    a.label(f'L_wp_{name}')
    nv2, l2 = gen_wprep(a, 'wp', tables=True)
    a.label(f'L_end_{name}'); a('s_endpgm')
    ks.append(wrap(name, a.text(), max(nv1,nv2), 256, 512, max(l1,l2,82944)))
    a = Asm(); name = 'g1col_kernel'
    a('s_cmp_ge_u32 s2, 256'); a(f's_cbranch_scc1 L_end_{name}')
    a('s_cmp_ge_u32 s2, 224'); a(f's_cbranch_scc1 L_col_role')
    nv1, l1 = gen_g1(a, 'g1', G16(S=3), stamp, sentinel=sentinel, hsc=hsc, prefetch_w2=(not cprefetch and sentinel not in ('l','f')), cprefetch=cprefetch, unroll=unroll)
    a.label('L_col_role')
    a('s_sub_u32 s3, s2, 224')
    nv2, l2 = gen_col(a, 'c', 's3', 32)
    a.label(f'L_end_{name}'); a('s_endpgm')
    ks.append(wrap(name, a.text(), max(nv1,nv2), 256, 512, max(l1,l2)))
    return ks
def g2k(name, stamp, opts={}, **kw):
    a = Asm()
    a('s_cmp_ge_u32 s2, 256'); a(f's_cbranch_scc1 L_end_{name}')
    d = dict(BM=128, BN=128, WM=2, WN=2, K=1792, S=4, NSUB=1, pitchA=HP.pitch, pitchW=2048, dbufA=True); d.update(kw)
    cfg2 = G16(**d)
    nv, l = gen_g2s(a, name, cfg2, stamp, **opts)
    a.label(f'L_end_{name}'); a('s_endpgm')
    return wrap(name, a.text(), nv, 256, 64*(cfg2.NC+cfg2.NL), l)
def finish(ks):
    hdr = open('cdna_kernels/' + KN + '.s.ref').read().split('; Override launch geometry')[0]
    txt = hdr + '\n'.join(k[0] for k in ks) + '\n.amdgcn_target "amdgcn-amd-amdhsa--gfx950"\n' + ''.join(k[1] for k in ks) + ''.join(k[2] for k in ks)
    txt, n = hazard.fix(txt, False)
    print('nops', n, 'bytes', len(txt))
    return txt
if __name__ == '__main__':
    if len(sys.argv) > 1: HP.off = 0x4000000; HP.pitch = int(sys.argv[1])
    S1 = dict(a0first=True, maxper0=2, bat=1)
    S2 = dict(a0first=True, maxper0=2, bat=0)
    S3 = dict(a0first=True, maxper0=1, bat=4)
    S4 = dict(a0first=True, maxper0=2, bat=2, maxperb=1)
    NN = dict(noload=True, nords=True, **S3)
    NM = dict(nomfma=True, **S3)
    NM = dict(nomfma=True, nords=True, **S3)
    FL = dict(flags=True); UF = dict(flags=True, unroll=True)
    V = {'base': (FL, S3), 'u3': (UF, S3), 'u1': (UF, S1), 'u4': (UF, S4), 'u0': (UF, {}),
         'u3nl': (UF, dict(noload=True, **S3)), 'u3nn': (UF, dict(noload=True, nords=True, **S3)), 'u3nm': (UF, dict(nomfma=True, **S3)),
         }
    def emit(fn, st, ckw={}, gopt=UF, gkw=S3):
        ks = common(st, **ckw); ks.append(g2k(KN + '_kernel', st, gopt, **gkw))
        open('exp/%s%s.s' % (fn, '_st' if st else ''),'w').write(finish(ks))
    for st in (False, True):
        emit('f4', st)
        emit('f4p', st, dict(hsc=''))
        emit('f4n', st, dict(unroll=False))
        emit('f4x', st, dict(sc='x'))
```

```python
from asm import *

class G16:
    def __init__(s, **kw):
        s.BM=128; s.BN=256; s.WM=1; s.WN=4; s.K=1024; s.S=3; s.NSUB=1; s.pitchA=2048; s.pitchW=7168
        s.NL=4; s.dbufA=False; s.prio=0; s.lds0=0
        s.noload=False; s.nomfma=False; s.a0first=False; s.maxper0=1; s.bat=None; s.maxperb=2; s.nords=False; s.kstatic=''; s.vmcut=0; s.nobar=False; s.unroll=1; s.noadv=False
        s.__dict__.update(kw)
        s.TM = s.BM//s.WM//16; s.TN = s.BN//s.WN//16
        s.NC = s.WM*s.WN
        s.RB = s.BN*2
        s.A_BYTES = s.BM*128; s.W_BYTES = 64*s.RB
        s.SUB = s.A_BYTES + s.W_BYTES
        s.STAGE = s.SUB*s.NSUB
        s.nA = s.A_BYTES//1024; s.nW = s.W_BYTES//1024
        assert s.nA % s.NL == 0 and s.nW % s.NL == 0, (s.nA, s.nW, s.NL)
        s.PA = s.nA//s.NL; s.PW = s.nW//s.NL; s.P = (s.PA+s.PW)*s.NSUB
        s.NST = s.K//(64*s.NSUB)
        assert s.NST*64*s.NSUB == s.K
        s.LDS = s.S*s.STAGE
        s.NSTEP = 2*s.NSUB

S_STG, S_NEG = 43, 44
def emit_consts(a, cfg):
    a(f's_mov_b32 s{S_STG}, {cfg.STAGE}')
    a(f's_mov_b32 s{S_NEG}, {hex((-(cfg.S-1)*cfg.STAGE) & 0xffffffff)}')

def w_mask_code(a, cfg, vk, dst, t):
    if cfg.RB >= 256:
        a(f'v_and_b32 v{dst}, 3, v{vk}')
        a(f'v_lshrrev_b32 v{t}, 1, v{vk}'); a(f'v_and_b32 v{t}, 4, v{t}')
        a(f'v_or_b32 v{dst}, v{dst}, v{t}')
        a(f'v_lshlrev_b32 v{dst}, 1, v{dst}')
    else:
        a(f'v_and_b32 v{dst}, 2, v{vk}')
        a(f'v_lshrrev_b32 v{t}, 1, v{vk}'); a(f'v_and_b32 v{t}, 4, v{t}')
        a(f'v_or_b32 v{dst}, v{dst}, v{t}')

def emit_loader_setup(a, cfg, R, vlane, s_lw, s_m0row_bytes, s_n0_bytes, tmp, s_rowxor=None):
    t0, t1, t2, t3 = tmp
    vA = [R.alloc(name=f'vA{i}') for i in range(cfg.PA)]
    vW = [R.alloc(name=f'vW{i}') for i in range(cfg.PW)]
    for i in range(cfg.PA):
        a(f's_mul_i32 s40, {s_lw}, {8*cfg.PA}')
        a(f's_add_u32 s40, s40, {8*i}')
        a(f'v_lshrrev_b32 v{t0}, 3, v{vlane}')
        a(f'v_add_u32 v{t0}, s40, v{t0}')
        a(f'v_lshrrev_b32 v{t1}, 1, v{t0}')
        a(f'v_xor_b32 v{t1}, v{t1}, v{vlane}')
        a(f'v_and_b32 v{t1}, 7, v{t1}')
        a(f'v_lshlrev_b32 v{t1}, 4, v{t1}')
        if s_rowxor: a(f'v_xor_b32 v{t0}, {s_rowxor}, v{t0}')
        a(f's_mov_b32 s41, {cfg.pitchA}')
        a(f'v_mul_lo_u32 v{t0}, v{t0}, s41')
        a(f'v_add3_u32 v{vA[i]}, v{t0}, v{t1}, {s_m0row_bytes}')
    cpr = cfg.RB//16; rpp = 64//cpr if cpr <= 64 else None
    sh = cpr.bit_length()-1
    for i in range(cfg.PW):
        a(f's_mul_i32 s40, {s_lw}, {rpp*cfg.PW}')
        a(f's_add_u32 s40, s40, {rpp*i}')
        a(f'v_lshrrev_b32 v{t0}, {sh}, v{vlane}')
        a(f'v_add_u32 v{t0}, s40, v{t0}')
        w_mask_code(a, cfg, t0, t1, t3)
        a(f'v_and_b32 v{t2}, {cpr-1}, v{vlane}')
        a(f'v_xor_b32 v{t1}, v{t1}, v{t2}')
        a(f'v_lshlrev_b32 v{t1}, 4, v{t1}')
        a(f's_mov_b32 s41, {cfg.pitchW}')
        a(f'v_mul_lo_u32 v{t0}, v{t0}, s41')
        a(f'v_add3_u32 v{vW[i]}, v{t0}, v{t1}, {s_n0_bytes}')
    return vA, vW

def stage_load_list(cfg, vA, vW, srdA, srdW, s_kA, s_kW, s_lds, s_tmp):
    out = []
    for sub in range(cfg.NSUB):
        sa, sw = s_kA, s_kW
        pre = []
        if sub:
            pre = [f's_add_u32 s{s_tmp}, s{s_kA}, {128*sub}', f's_add_u32 s{s_tmp+1}, s{s_kW}, {64*cfg.pitchW*sub}']
            sa, sw = s_tmp, s_tmp+1
        for i in range(cfg.PA):
            out.append(pre + [f's_add_u32 m0, s{s_lds}, {sub*cfg.SUB + i*1024}', 's_nop 0',
                        f'buffer_load_dwordx4 v{vA[i]}, s[{srdA}:{srdA+3}], s{sa} offen lds']); pre = []
        for i in range(cfg.PW):
            out.append([f's_add_u32 m0, s{s_lds+1}, {sub*cfg.SUB + i*1024}', 's_nop 0',
                        f'buffer_load_dwordx4 v{vW[i]}, s[{srdW}:{srdW+3}], s{sw} offen lds'])
    return out

def emit_loader_loop(a, cfg, vA, vW, srdA, srdW, s_kA, s_kW, s_lds, s_it, s_stage, s_tmp, tag, tail_loads=None, after_pro=None, post_bar=None, pre_last=None, extra=None, extra_pro=None, pro_done=0):
    def adv():
        if 'A' not in cfg.kstatic: a(f's_add_u32 s{s_kA}, s{s_kA}, {128*cfg.NSUB}')
        if 'W' not in cfg.kstatic: a(f's_add_u32 s{s_kW}, s{s_kW}, {64*cfg.pitchW*cfg.NSUB}')
        a(f's_add_u32 s{s_stage}, s{s_stage}, 1')
        a(f's_cmp_eq_u32 s{s_stage}, {cfg.S}')
        a(f's_cselect_b32 s42, s{S_NEG}, s{S_STG}')
        a(f's_cselect_b32 s{s_stage}, 0, s{s_stage}')
        a(f's_add_u32 s{s_lds}, s{s_lds}, s42'); a(f's_add_u32 s{s_lds+1}, s{s_lds+1}, s42')
    def loads(force=False):
        if cfg.noload and not force: return
        for g in stage_load_list(cfg, vA, vW, srdA, srdW, s_kA, s_kW, s_lds, s_tmp):
            for x in g: a(x)
    a(f's_mov_b32 s{s_stage}, 0')
    E = 1 if extra else 0
    npro = 0
    for i in range(cfg.S-1 + (1 if cfg.noload else 0)):
        if i >= pro_done: loads(True)
        adv()
    if extra_pro: npro = extra_pro(a)
    if cfg.noload: a('s_waitcnt vmcnt(0)')
    if after_pro: after_pro(a)
    n_main = cfg.NST - (cfg.S-1)
    a(f's_mov_b32 s{s_it}, 0')
    a(f'L_load_{tag}:')
    a(f's_waitcnt vmcnt({min(63,(cfg.S-2-cfg.vmcut)*cfg.P + (cfg.S-1)*E)})')
    if cfg.nobar:
        a(f's_cmp_lg_u32 s{s_it}, 0'); a(f's_cbranch_scc1 L_nb_{tag}'); a('s_barrier'); a(f'L_nb_{tag}:')
    else: a('s_barrier')
    if post_bar: post_bar(a)
    loads(); adv()
    if extra: extra(a)
    a(f's_add_u32 s{s_it}, s{s_it}, 1')
    a(f's_cmp_lt_u32 s{s_it}, {n_main}')
    a(f's_cbranch_scc1 L_load_{tag}')
    nx = 0
    if tail_loads: nx = tail_loads(a)
    for i in range(cfg.S-1):
        a(f's_waitcnt vmcnt({min(63,(cfg.S-2-i)*cfg.P + nx + (cfg.S-1-i)*E)})')
        if pre_last and i == cfg.S-2: pre_last(a)
        if not cfg.nobar: a('s_barrier')

def emit_consumer_addr(a, cfg, R, vlane, s_wm, s_wn, tmp):
    t0, t1, t2, t3 = tmp
    vRA = [R.alloc(name=f'vRA{ks}') for ks in range(2)]
    vRW = [R.alloc(name=f'vRW{t}') for t in range(cfg.TN)]
    a(f'v_and_b32 v{t0}, 15, v{vlane}')
    a(f's_mul_i32 s40, {s_wm}, {cfg.TM*16}')
    a(f'v_add_u32 v{t0}, s40, v{t0}')
    a(f'v_lshrrev_b32 v{t1}, 1, v{t0}')
    a(f'v_and_b32 v{t1}, 7, v{t1}')
    a(f'v_lshrrev_b32 v{t2}, 4, v{vlane}')
    a(f'v_xor_b32 v{t1}, v{t1}, v{t2}')
    a(f'v_lshlrev_b32 v{t0}, 7, v{t0}')
    if cfg.lds0: a(f'v_add_u32 v{t0}, {cfg.lds0}, v{t0}')
    for ks in range(2):
        a(f'v_xor_b32 v{t2}, {4*ks}, v{t1}')
        a(f'v_lshl_add_u32 v{vRA[ks]}, v{t2}, 4, v{t0}')
    a(f'v_lshrrev_b32 v{t0}, 2, v{vlane}'); a(f'v_and_b32 v{t0}, 3, v{t0}')
    a(f'v_lshrrev_b32 v{t2}, 4, v{vlane}'); a(f'v_lshl_add_u32 v{t0}, v{t2}, 3, v{t0}')
    w_mask_code(a, cfg, t0, t1, t3)
    a(f's_mov_b32 s41, {cfg.RB}'); a(f'v_mul_lo_u32 v{t0}, v{t0}, s41')
    a(f'v_and_b32 v{t2}, 1, v{vlane}'); a(f'v_lshl_add_u32 v{t0}, v{t2}, 3, v{t0}')
    a(f'v_add_u32 v{t0}, {cfg.A_BYTES + cfg.lds0}, v{t0}')
    a(f'v_lshrrev_b32 v{t2}, 1, v{vlane}'); a(f'v_and_b32 v{t2}, 1, v{t2}')
    for t in range(cfg.TN):
        a(f's_mul_i32 s40, {s_wn}, {2*cfg.TN}'); a(f's_add_u32 s40, s40, {2*t}')
        a(f'v_add_u32 v{t3}, s40, v{t2}')
        a(f'v_xor_b32 v{t3}, v{t3}, v{t1}')
        a(f'v_lshl_add_u32 v{vRW[t]}, v{t3}, 4, v{t0}')
    return vRA, vRW

class LgkmTracker:
    def __init__(s, a): s.a = a; s.p = []
    def issue(s, line, tag): s.a(line); s.p.append(tag)
    def need(s, tags):
        idx = -1
        for t in tags:
            if t in s.p: idx = max(idx, len(s.p)-1 - s.p[::-1].index(t))
        if idx < 0: return
        n = len(s.p)-idx-1
        n = min(n, 15)
        s.a(f's_waitcnt lgkmcnt({n})')
        s.p = s.p[len(s.p)-n:] if n else []
    def all(s):
        if s.p: s.a('s_waitcnt lgkmcnt(0)')
        s.p = []

def consumer_regs(cfg, R):
    F = {}
    F['W'] = [R.alloc(4*cfg.TN, 4), R.alloc(4*cfg.TN, 4)]
    if cfg.dbufA: F['A'] = [R.alloc(4*cfg.TM, 4), R.alloc(4*cfg.TM, 4)]
    else:
        x = R.alloc(4*cfg.TM, 4); F['A'] = [x, x]
    F['acc'] = R.alloc(4*cfg.TM*cfg.TN, 4)
    return F

def step_reads(cfg, F, vRA, vRW, step, par):
    sub, ks = step//2, step & 1
    out = []
    so = sub*cfg.SUB
    for t in range(cfg.TN):
        for j in range(2):
            r = F['W'][par] + 4*t + 2*j
            off = so + (32*ks + 4*j)*cfg.RB
            out.append((f'ds_read_b64_tr_b16 v[{r}:{r+1}], v{vRW[t]} offset:{off}', ('W', par, t, j), -1))
    for mt in range(cfg.TM):
        r = F['A'][par] + 4*mt
        e = -1 if cfg.dbufA else (mt+1)*cfg.TN - 1
        out.append((f'ds_read_b128 v[{r}:{r+3}], v{vRA[ks]} offset:{so + mt*2048}', ('A', par if cfg.dbufA else 0, mt), e))
    if cfg.a0first and cfg.dbufA:
        nw = 2*cfg.TN
        out = [out[nw]] + out[:nw] + out[nw+1:]
    if cfg.nords: out = []
    return out

def emit_step(a, cfg, T, F, par, reads, barrier_at=None, pre_barrier=None, extra=None, maxper=1):
    acc = F['acc']; pend = list(reads); idx = 0
    extra = list(extra or [])
    for mt in range(cfg.TM):
        for t in range(cfg.TN):
            if barrier_at is not None and idx == barrier_at:
                for x in extra: a(x)
                extra = []
                T.all()
                if pre_barrier:
                    for x in pre_barrier: a(x)
                if not cfg.nobar: a('s_barrier')
            T.need([('W', par, t, 0), ('W', par, t, 1), ('A', par if cfg.dbufA else 0, mt)])
            c = acc + 4*(mt*cfg.TN + t); w = F['W'][par] + 4*t; x = F['A'][par] + 4*mt
            if not cfg.nomfma:
                a(f'v_mfma_f32_16x16x32_bf16 v[{c}:{c+3}], v[{w}:{w+3}], v[{x}:{x+3}], v[{c}:{c+3}]')
            n = 0
            if barrier_at is None or idx >= barrier_at:
                k = 0
                while k < len(pend) and n < maxper:
                    if pend[k][2] <= idx:
                        T.issue(pend[k][0], pend[k][1]); pend.pop(k); n += 1
                    else: k += 1
            if n == 0 and extra: a(extra.pop(0))
            idx += 1
    for p in pend: T.issue(p[0], p[1])
    for x in extra: a(x)

def emit_consumer_loop(a, cfg, F, vRA, vRW, s_it, s_stage, s_delta, tag, pre_barrier=None, before_last=None, per_iter=None):
    NM = cfg.TM*cfg.TN
    T = LgkmTracker(a)
    a('s_barrier')
    if getattr(cfg,'stampfirst',False): a('s_memtime s[58:59]'); a('s_memrealtime s[52:53]'); a('s_waitcnt lgkmcnt(0)')
    if getattr(cfg,'stampb0',False): a('s_memtime s[58:59]'); a('s_memrealtime s[94:95]'); a('s_waitcnt lgkmcnt(0)')
    if getattr(cfg,'prio',0): a(f's_setprio {cfg.prio}')
    first = step_reads(cfg, F, vRA, vRW, 0, 0)
    for ln, tg, e in first: T.issue(ln, tg)
    entry = list(T.p)
    T.all()
    a(f's_mov_b32 s{s_it}, 0'); a(f's_mov_b32 s{s_stage}, 0')
    a(f'L_cons_{tag}:')
    if per_iter: per_iter(a)
    adv = [f'v_add_u32 v{r}, s{s_delta}, v{r}' for r in list(vRA)+list(vRW)] if not cfg.noadv else []
    def body(last):
        for step in range(cfg.NSTEP):
            par = step & 1
            if step < cfg.NSTEP-1:
                extra = []
                if step == 0 and not last:
                    extra = [f's_add_u32 s{s_stage}, s{s_stage}, 1', f's_cmp_eq_u32 s{s_stage}, {cfg.S}',
                             f's_cselect_b32 s{s_delta}, s{S_NEG}, s{S_STG}', f's_cselect_b32 s{s_stage}, 0, s{s_stage}']
                    for x in extra: a(x)
                emit_step(a, cfg, T, F, par, step_reads(cfg, F, vRA, vRW, step+1, par ^ 1), maxper=cfg.maxper0)
            elif last:
                emit_step(a, cfg, T, F, par, [])
            else:
                bat = NM//2 if not cfg.dbufA else max(1, NM//4)
                if cfg.bat is not None: bat = cfg.bat
                emit_step(a, cfg, T, F, par, step_reads(cfg, F, vRA, vRW, 0, par ^ 1), barrier_at=bat, extra=adv, maxper=cfg.maxperb, pre_barrier=pre_barrier)
    T.p = []
    start_state = None
    class Dry:
        def __call__(self, s): pass
    a_real = T.a
    T.a = Dry(); a_save = a
    def run(emit, last):
        nonlocal a
        a = emit; T.a = emit
        body(last)
    dry = Dry()
    T.p = []
    run(dry, False)
    st = list(T.p)
    run(dry, False)
    assert st == T.p, (st, T.p)
    T.p = list(st)
    run(a_save, False)
    a = a_save
    a(f's_add_u32 s{s_it}, s{s_it}, 1')
    a(f's_cmp_lt_u32 s{s_it}, {cfg.NST-1}')
    a(f's_cbranch_scc1 L_cons_{tag}')
    T.p = list(st)
    if before_last: before_last(a_save)
    run(a_save, True)

def stage_windows(cfg):
    win = []; bases = []
    for st in range(cfg.S):
        lo = st*cfg.STAGE
        if bases and lo + cfg.STAGE - bases[-1] <= 65536: win.append(len(bases)-1)
        else: bases.append(lo); win.append(len(bases)-1)
    return win, bases

def emit_consumer_addr2(a, cfg, R, vlane, s_wm, s_wn, tmp):
    vRA, vRW = emit_consumer_addr(a, cfg, R, vlane, s_wm, s_wn, tmp)
    win, bases = stage_windows(cfg)
    sets = [(vRA, vRW)]
    for b in bases[1:]:
        nA = [R.alloc() for _ in vRA]; nW = [R.alloc() for _ in vRW]
        for d, s_ in zip(nA + nW, list(vRA) + list(vRW)): a(f'v_add_u32 v{d}, {b}, v{s_}')
        sets.append((nA, nW))
    return sets

def step_reads2(cfg, F, sets, slot, step, par):
    win, bases = stage_windows(cfg)
    vRA, vRW = sets[win[slot]]
    base = slot*cfg.STAGE - bases[win[slot]]
    sub, ks = step//2, step & 1
    out = []
    so = base + sub*cfg.SUB
    for t in range(cfg.TN):
        for j in range(2):
            r = F['W'][par] + 4*t + 2*j
            off = so + (32*ks + 4*j)*cfg.RB
            assert off < 65536
            out.append((f'ds_read_b64_tr_b16 v[{r}:{r+1}], v{vRW[t]} offset:{off}', ('W', par, t, j), -1))
    for mt in range(cfg.TM):
        r = F['A'][par] + 4*mt
        e = -1 if cfg.dbufA else (mt+1)*cfg.TN - 1
        assert so + mt*2048 < 65536
        out.append((f'ds_read_b128 v[{r}:{r+3}], v{vRA[ks]} offset:{so + mt*2048}', ('A', par if cfg.dbufA else 0, mt), e))
    if cfg.a0first and cfg.dbufA:
        nw = 2*cfg.TN
        out = [out[nw]] + out[:nw] + out[nw+1:]
    if cfg.nords: out = []
    return out

def emit_consumer_loop2(a, cfg, F, sets, s_it, tag, nst=None, hooks=None):
    hooks = hooks or {}
    NST = nst or cfg.NST
    S = cfg.S; NM = cfg.TM*cfg.TN
    nloop = (NST-1)//S
    T = LgkmTracker(a)
    ool = []
    a('s_barrier')
    if getattr(cfg,'stampb0',False): a('s_memtime s[58:59]'); a('s_memrealtime s[94:95]'); a('s_waitcnt lgkmcnt(0)')
    if getattr(cfg,'prio',0): a(f's_setprio {cfg.prio}')
    for ln, tg, e in step_reads2(cfg, F, sets, 0, 0, 0): T.issue(ln, tg)
    if hooks.get('first'): hooks['first'](a)
    T.all()
    bat = NM//2 if not cfg.dbufA else max(1, NM//4)
    if cfg.bat is not None: bat = cfg.bat
    class Dry:
        def __call__(self, s): pass
    def stage(em, slot, last, pre=None, start=None):
        T.a = em
        if start: start(em)
        for step in range(cfg.NSTEP):
            par = step & 1
            if step < cfg.NSTEP-1:
                emit_step(em, cfg, T, F, par, step_reads2(cfg, F, sets, slot, step+1, par ^ 1), maxper=cfg.maxper0)
            elif last:
                emit_step(em, cfg, T, F, par, [])
            else:
                emit_step(em, cfg, T, F, par, step_reads2(cfg, F, sets, (slot+1) % S, 0, par ^ 1), barrier_at=bat, maxper=cfg.maxperb, pre_barrier=pre)
    T.p = []; stage(Dry(), 0, False); st = list(T.p); stage(Dry(), 1 % S, False); assert st == T.p
    pb = hooks.get('pre_bar', {}); ats = hooks.get('at_stage', {})
    if nloop:
        a(f's_mov_b32 s{s_it}, 0')
        a(f'L_cons_{tag}:')
        T.p = list(st)
        for slot in range(S):
            pre = None; start = None
            idx = [k for k in pb if k < nloop*S and k % S == slot]
            if idx:
                assert len(idx) == 1
                k = idx[0]
                pre = [f's_cmp_eq_u32 s{s_it}, {k//S}', f's_cbranch_scc1 L_ool{k}_{tag}', f'L_ret{k}_{tag}:']
                ool.append([f'L_ool{k}_{tag}:'] + list(pb[k]) + [f's_branch L_ret{k}_{tag}'])
            assert not [k for k in ats if k < nloop*S and k % S == slot]
            stage(a, slot, False, pre)
        a(f's_add_u32 s{s_it}, s{s_it}, 1')
        a(f's_cmp_lt_u32 s{s_it}, {nloop}')
        a(f's_cbranch_scc1 L_cons_{tag}')
    T.p = list(st)
    for k in range(nloop*S, NST):
        stage(a, k % S, k == NST-1, pb.get(k), ats.get(k))
    return ool
```

```python
from asm import *
from gemm16 import *
from fft import WS_XN, WS_H, WS_S, WS_DBG, WS_XCH, WS_TAB, WS_FLG, WS_Y, ZP, ZBYTES, MF, cmul_pack
M=2048; F=3584; Dm=1024
class HP:
    off = WS_H; pitch = F*2

def silu4(a, c, t, pk=True):
    a(f'v_pk_mul_f32 v[{t}:{t+1}], v[{c}:{c+1}], s[46:47]')
    a(f'v_pk_mul_f32 v[{t+2}:{t+3}], v[{c+2}:{c+3}], s[46:47]')
    for j in range(4): a(f'v_exp_f32 v{t+j}, v{t+j}')
    a(f'v_pk_add_f32 v[{t}:{t+1}], v[{t}:{t+1}], s[48:49]')
    a(f'v_pk_add_f32 v[{t+2}:{t+3}], v[{t+2}:{t+3}], s[48:49]')
    for j in range(4): a(f'v_rcp_f32 v{t+j}, v{t+j}')
    a(f'v_pk_mul_f32 v[{t}:{t+1}], v[{c}:{c+1}], v[{t}:{t+1}]')
    a(f'v_pk_mul_f32 v[{t+2}:{t+3}], v[{c+2}:{c+3}], v[{t+2}:{t+3}]')

def silu_consts(a):
    a('s_mov_b32 s46, 0xbfb8aa3b'); a('s_mov_b32 s47, 0xbfb8aa3b'); a('s_mov_b32 s48, 1.0'); a('s_mov_b32 s49, 1.0')

def stamp_begin(a):
    a('s_memrealtime s[52:53]'); a('s_memtime s[58:59]')
def stamp_mid(a):
    a('s_memrealtime s[54:55]'); a('s_memtime s[60:61]')
def stamp_out(a, endlabel, ws_pair=18, slot=0):
    a('s_waitcnt vmcnt(0)')
    a('s_memrealtime s[56:57]')
    a('s_waitcnt lgkmcnt(0)')
    a('s_cmp_lg_u32 s20, 0'); a(f's_cbranch_scc1 {endlabel}')
    srd_off(a, 12, ws_pair, WS_DBG + slot*0x4000, 0x4000)
    a('v_mov_b32 v10, s52'); a('v_mov_b32 v11, s53'); a('v_mov_b32 v12, s54'); a('v_mov_b32 v13, s55')
    a('s_lshl_b32 s40, s2, 5')
    a('s_sub_u32 s60, s60, s58'); a('v_mov_b32 v18, s60'); a('v_mov_b32 v19, 0'); a('v_mov_b32 v17, s57'); a('v_mov_b32 v16, s56'); a('v_mov_b32 v20, s40')
    a('v_cmp_eq_u32 vcc, 0, v0'); a('s_and_saveexec_b64 s[62:63], vcc')
    a('buffer_store_dwordx4 v[10:13], v20, s[12:15], 0 offen')
    a('buffer_store_dwordx4 v[16:19], v20, s[12:15], 0 offen offset:16')

def loader_part(a, cfg, tag, tmp, tail_loads=None, s_rowxor=None, pre=None, **kw):
    a(f's_sub_u32 s35, s20, {cfg.NC}')
    Rl = Regs(5, 256)
    if pre: pre(a, Rl)
    vA, vW = emit_loader_setup(a, cfg, Rl, 0, 's35', 's26', 's27', tmp, s_rowxor)
    a('s_mov_b32 s28, 0'); a('s_mov_b32 s29, 0')
    a(f's_mul_i32 s30, s35, {cfg.PA*1024}')
    a(f's_mul_i32 s31, s35, {cfg.PW*1024}'); a(f's_add_u32 s31, s31, {cfg.A_BYTES}')
    emit_loader_loop(a, cfg, vA, vW, 4, 8, 28, 29, 30, 32, 33, 38, tag, tail_loads, **kw)
    a('s_endpgm')

def gen_g1(a, tag, cfg, stamp=False, prefetch_w2=True, sentinel=False, hsc='', cprefetch=False, unroll=False):
    a('s_load_dwordx2 s[16:17], s[0:1], 32')
    a('s_load_dwordx2 s[18:19], s[0:1], 64')
    if stamp: stamp_begin(a)
    a('v_lshrrev_b32 v1, 6, v0'); a('v_and_b32 v0, 63, v0'); a('v_readfirstlane_b32 s20, v1')
    a('s_and_b32 s21, s2, 7'); a('s_lshr_b32 s22, s2, 3')
    a('s_and_b32 s23, s21, 3'); a('s_lshl_b32 s23, s23, 2'); a('s_and_b32 s24, s22, 3'); a('s_add_u32 s23, s23, s24')
    a('s_lshr_b32 s24, s21, 2'); a('s_mul_i32 s24, s24, 7'); a('s_lshr_b32 s25, s22, 2'); a('s_add_u32 s24, s24, s25')
    a(f's_mul_i32 s26, s23, {cfg.BM*cfg.pitchA}')
    a(f's_mul_i32 s27, s24, {cfg.BN*2}')
    a('s_waitcnt lgkmcnt(0)')
    srd_off(a, 4, 18, WS_XN, M*Dm*2)
    srd(a, 8, 16, Dm*F*2)
    emit_consts(a, cfg)
    tmp = [1,2,3,4]
    a(f's_cmp_ge_u32 s20, {cfg.NC}')
    a(f's_cbranch_scc1 L_loader_{tag}')
    srd_off(a, 12, 18, HP.off, M*HP.pitch)
    a(f's_and_b32 s37, s20, {cfg.WN-1}')
    a(f's_lshr_b32 s36, s20, {cfg.WN.bit_length()-1}')
    Rc = Regs(5, 256)
    per_iter = None
    if cprefetch or sentinel == 'c':
        vD = Rc.alloc(); vL = Rc.alloc()
        a('s_lshl_b32 s66, s2, 2'); a('s_add_u32 s66, s66, s20')
    if cprefetch:
        a('s_load_dwordx2 s[64:65], s[0:1], 40')
        a(f'v_lshlrev_b32 v{vL}, 6, v0'); a('s_lshl_b32 s40, s66, 13')
        a('s_waitcnt lgkmcnt(0)')
        srd(a, 68, 64, F*Dm*2)
        a(f'buffer_load_dword v{vD}, v{vL}, s[68:71], s40 offen')
        a('s_add_u32 s40, s40, 4096')
        a(f'buffer_load_dword v{vD}, v{vL}, s[68:71], s40 offen')
    if sentinel == 'c':
        SE = Rc.alloc(4, 4)
        srd_off(a, 72, 18, WS_XCH, 0x800000)
        for i in range(4): a(f'v_mov_b32 v{SE+i}, -1')
        a(f'v_lshlrev_b32 v{vL}, 4, v0'); a('s_lshl_b32 s67, s66, 10')
        def per_iter(a):
            a(f'buffer_store_dwordx4 v[{SE}:{SE+3}], v{vL}, s[72:75], s67 offen sc1')
            a(f's_add_u32 s67, s67, {896*1024}')
    if unroll: sets = emit_consumer_addr2(a, cfg, Rc, 0, 's36', 's37', tmp)
    else: vRA, vRW = emit_consumer_addr(a, cfg, Rc, 0, 's36', 's37', tmp)
    Fr = consumer_regs(cfg, Rc)
    acc = Fr['acc']
    for i in range(4*cfg.TM*cfg.TN): a(f'v_mov_b32 v{acc+i}, 0')
    if unroll: emit_consumer_loop2(a, cfg, Fr, sets, 32, tag)
    else: emit_consumer_loop(a, cfg, Fr, vRA, vRW, 32, 33, 34, tag, per_iter=per_iter)
    if stamp: stamp_mid(a)
    vO = tmp[0]
    silu_consts(a)
    a(f'v_and_b32 v{tmp[1]}, 15, v0')
    a(f's_mul_i32 s40, s23, {cfg.BM}'); a(f's_mul_i32 s41, s36, {cfg.TM*16}'); a('s_add_u32 s40, s40, s41')
    a(f'v_add_u32 v{tmp[1]}, s40, v{tmp[1]}')
    a(f's_mov_b32 s41, {HP.pitch}')
    a(f'v_mul_lo_u32 v{vO}, v{tmp[1]}, s41')
    a(f'v_lshrrev_b32 v{tmp[1]}, 4, v0'); a(f'v_and_b32 v{tmp[2]}, 1, v{tmp[1]}'); a(f'v_lshl_add_u32 v{vO}, v{tmp[2]}, 5, v{vO}')
    a(f'v_lshrrev_b32 v{tmp[1]}, 5, v0'); a(f'v_lshl_add_u32 v{vO}, v{tmp[1]}, 4, v{vO}')
    a(f's_mul_i32 s40, s37, {cfg.TN*32}'); a('s_add_u32 s40, s40, s27')
    a(f'v_add_u32 v{vO}, s40, v{vO}')
    st = Fr['W'][0]; k = 0; ndst = 3; tb = st + 4*ndst
    for mt in range(cfg.TM):
        for tp in range(cfg.TN//2):
            d = st + (k % ndst)*4; tt = tb + (k % 2)*8; k += 1
            c0 = acc + 4*(mt*cfg.TN + 2*tp); c1 = c0 + 4
            silu4(a, c0, tt); silu4(a, c1, tt+4)
            for j in range(4): a(f'v_cvt_pk_bf16_f32 v{d+j}, v{tt+2*j}, v{tt+2*j+1}')
            a(f'v_permlane16_swap_b32 v{d}, v{d+2}')
            a(f'v_permlane16_swap_b32 v{d+1}, v{d+3}')
            a(f's_mov_b32 s40, {mt*16*HP.pitch}')
            a(f'buffer_store_dwordx4 v[{d}:{d+3}], v{vO}, s[12:15], s40 offen offset:{tp*64}{hsc}')
    if stamp: stamp_out(a, f'L_g1end_{tag}', 18, 0)
    a.label(f'L_g1end_{tag}')
    a('s_endpgm')
    a.label(f'L_loader_{tag}')
    def pf(a):
        a('s_load_dwordx2 s[64:65], s[0:1], 40')
        a('s_lshl_b32 s40, s2, 2'); a('s_add_u32 s40, s40, s35'); a('s_lshl_b32 s40, s40, 13')
        a(f's_lshl_b32 s41, s35, 10'); a(f's_add_u32 m0, s41, {cfg.LDS}')
        a('v_lshlrev_b32 v1, 4, v0')
        a('s_waitcnt lgkmcnt(0)')
        srd(a, 68, 64, F*Dm*2)
        for i in range(8):
            a(f'buffer_load_dwordx4 v1, s[68:71], s40 offen offset:{1024*(i & 3)} lds')
            if i == 3: a('s_add_u32 s40, s40, 4096')
        if sentinel is not True: return 8
        srd_off(a, 72, 18, WS_XCH, 0x800000)
        for i in range(4): a(f'v_mov_b32 v{8+i}, -1')
        a('s_lshl_b32 s40, s2, 2'); a('s_add_u32 s40, s40, s35'); a('s_mul_i32 s40, s40, 10240')
        for i in range(10):
            a(f'buffer_store_dwordx4 v[8:11], v1, s[72:75], s40 offen offset:{1024*(i & 3)} sc1')
            if i & 3 == 3: a('s_add_u32 s40, s40, 4096')
        return 18
    if sentinel == 'f':
        X = {}
        def pre(a, Rl):
            X['d'] = Rl.alloc(); X['l'] = Rl.alloc(); X['z'] = Rl.alloc()
            a('s_load_dwordx2 s[64:65], s[0:1], 40')
            a('s_lshl_b32 s66, s2, 2'); a('s_add_u32 s66, s66, s35')
            a(f'v_lshlrev_b32 v{X["l"]}, 6, v0'); a(f'v_mov_b32 v{X["z"]}, 0')
            srd_off(a, 72, 18, WS_FLG, 0x10000)
            a('s_waitcnt lgkmcnt(0)')
            srd(a, 68, 64, F*Dm*2)
        def tail(a):
            a('s_lshl_b32 s40, s66, 13')
            a(f'buffer_load_dword v{X["d"]}, v{X["l"]}, s[68:71], s40 offen')
            a('s_add_u32 s40, s40, 4096')
            a(f'buffer_load_dword v{X["d"]}, v{X["l"]}, s[68:71], s40 offen')
            a('s_lshl_b32 s40, s66, 12')
            a(f'buffer_store_dword v{X["z"]}, v{X["l"]}, s[72:75], s40 offen')
            return 3
        loader_part(a, cfg, tag, tmp, tail, pre=pre)
    elif sentinel == 'l':
        X = {}
        def pre(a, Rl):
            X['d'] = Rl.alloc(); X['l'] = Rl.alloc(); X['m'] = Rl.alloc(); X['se'] = Rl.alloc(4, 4)
            a('s_load_dwordx2 s[64:65], s[0:1], 40')
            a('s_lshl_b32 s66, s2, 2'); a('s_add_u32 s66, s66, s35')
            a(f'v_lshlrev_b32 v{X["l"]}, 6, v0'); a(f'v_lshlrev_b32 v{X["m"]}, 4, v0')
            for i in range(4): a(f'v_mov_b32 v{X["se"]+i}, -1')
            srd_off(a, 72, 18, WS_XCH, 0x800000)
            a('s_lshl_b32 s67, s66, 10')
            a('s_waitcnt lgkmcnt(0)')
            srd(a, 68, 64, F*Dm*2)
        def extra_pro(a):
            a('s_lshl_b32 s40, s66, 13')
            a(f'buffer_load_dword v{X["d"]}, v{X["l"]}, s[68:71], s40 offen')
            a('s_add_u32 s40, s40, 4096')
            a(f'buffer_load_dword v{X["d"]}, v{X["l"]}, s[68:71], s40 offen')
            return 2
        def extra(a):
            a(f'buffer_store_dwordx4 v[{X["se"]}:{X["se"]+3}], v{X["m"]}, s[72:75], s67 offen sc1')
            a(f's_add_u32 s67, s67, {896*1024}')
        loader_part(a, cfg, tag, tmp, None, pre=pre, extra=extra, extra_pro=extra_pro)
    else:
        loader_part(a, cfg, tag, tmp, pf if prefetch_w2 else None)
    return Rc.p, cfg.LDS + (8192 if prefetch_w2 and sentinel not in ('l','f') else 0)

def gen_g2(a, tag, cfg, stamp=False):
    a('s_load_dwordx4 s[16:19], s[0:1], 40')
    a('s_load_dwordx2 s[64:65], s[0:1], 64')
    a('s_load_dwordx2 s[66:67], s[0:1], 0')
    if stamp: stamp_begin(a)
    a('v_lshrrev_b32 v1, 6, v0'); a('v_and_b32 v0, 63, v0'); a('v_readfirstlane_b32 s20, v1')
    a('s_and_b32 s21, s2, 7'); a('s_lshr_b32 s22, s2, 3')
    a('s_and_b32 s23, s21, 3'); a('s_lshl_b32 s23, s23, 2'); a('s_and_b32 s24, s22, 3'); a('s_add_u32 s23, s23, s24')
    a('s_lshr_b32 s24, s21, 2'); a('s_lshl_b32 s24, s24, 3'); a('s_lshr_b32 s25, s22, 2'); a('s_add_u32 s24, s24, s25')
    a(f's_mul_i32 s26, s23, {cfg.BM*cfg.pitchA}')
    a(f's_mul_i32 s27, s24, {cfg.BN*2}')
    a('s_waitcnt lgkmcnt(0)')
    srd_off(a, 4, 64, HP.off, M*HP.pitch)
    srd(a, 8, 16, F*Dm*2)
    emit_consts(a, cfg)
    tmp = [1,2,3,4]
    a(f's_cmp_ge_u32 s20, {cfg.NC}')
    a(f's_cbranch_scc1 L_loader_{tag}')
    srd(a, 12, 18, M*Dm*2)
    srd(a, 68, 66, M*Dm*2)
    srd_off(a, 72, 64, WS_S, M*Dm*2)
    a(f's_and_b32 s37, s20, {cfg.WN-1}')
    a(f's_lshr_b32 s36, s20, {cfg.WN.bit_length()-1}')
    Rc = Regs(5, 256)
    vO = Rc.alloc()
    a(f'v_and_b32 v{tmp[1]}, 15, v0')
    a(f's_mul_i32 s40, s23, {cfg.BM}'); a(f's_mul_i32 s41, s36, {cfg.TM*16}'); a('s_add_u32 s40, s40, s41')
    a(f'v_add_u32 v{tmp[1]}, s40, v{tmp[1]}')
    a(f'v_lshlrev_b32 v{vO}, 11, v{tmp[1]}')
    a(f'v_lshrrev_b32 v{tmp[1]}, 4, v0'); a(f'v_and_b32 v{tmp[2]}, 1, v{tmp[1]}'); a(f'v_lshl_add_u32 v{vO}, v{tmp[2]}, 5, v{vO}')
    a(f'v_lshrrev_b32 v{tmp[1]}, 5, v0'); a(f'v_lshl_add_u32 v{vO}, v{tmp[1]}, 4, v{vO}')
    a(f's_mul_i32 s40, s37, {cfg.TN*32}'); a('s_add_u32 s40, s40, s27')
    a(f'v_add_u32 v{vO}, s40, v{vO}')
    NP = cfg.TM*(cfg.TN//2)
    XR = Rc.alloc(4*NP, 4); SR = Rc.alloc(4*NP, 4)
    k = 0
    for mt in range(cfg.TM):
        for tp in range(cfg.TN//2):
            a(f's_mov_b32 s40, {mt*16*2048}')
            a(f'buffer_load_dwordx4 v[{XR+4*k}:{XR+4*k+3}], v{vO}, s[68:71], s40 offen offset:{tp*64}')
            a(f'buffer_load_dwordx4 v[{SR+4*k}:{SR+4*k+3}], v{vO}, s[72:75], s40 offen offset:{tp*64}')
            k += 1
    vRA, vRW = emit_consumer_addr(a, cfg, Rc, 0, 's36', 's37', tmp)
    Fr = consumer_regs(cfg, Rc)
    acc = Fr['acc']
    for i in range(4*cfg.TM*cfg.TN): a(f'v_mov_b32 v{acc+i}, 0')
    emit_consumer_loop(a, cfg, Fr, vRA, vRW, 32, 33, 34, tag)
    if stamp: stamp_mid(a)
    silu_consts(a)
    T = Rc.alloc(16, 4)
    a('s_waitcnt vmcnt(0)')
    k = 0
    for mt in range(cfg.TM):
        for tp in range(cfg.TN//2):
            x = XR + 4*k; s = SR + 4*k; k += 1
            a(f'v_permlane16_swap_b32 v{x}, v{x+2}'); a(f'v_permlane16_swap_b32 v{x+1}, v{x+3}')
            a(f'v_permlane16_swap_b32 v{s}, v{s+2}'); a(f'v_permlane16_swap_b32 v{s+1}, v{s+3}')
            for tt in range(2):
                c = acc + 4*(mt*cfg.TN + 2*tp + tt); g = T + 4*tt; u = T + 8
                silu4(a, c, g)
                for j in range(2):
                    a(f'v_lshlrev_b32 v{u+2*j}, 16, v{s+2*tt+j}'); a(f'v_and_b32 v{u+2*j+1}, 0xffff0000, v{s+2*tt+j}')
                    a(f'v_lshlrev_b32 v{u+4+2*j}, 16, v{x+2*tt+j}'); a(f'v_and_b32 v{u+4+2*j+1}, 0xffff0000, v{x+2*tt+j}')
                for j in range(2):
                    a(f'v_pk_fma_f32 v[{g+2*j}:{g+2*j+1}], v[{u+2*j}:{u+2*j+1}], v[{g+2*j}:{g+2*j+1}], v[{u+4+2*j}:{u+4+2*j+1}]')
                for j in range(2):
                    a(f'v_cvt_pk_bf16_f32 v{x+2*tt+j}, v{g+2*j}, v{g+2*j+1}')
            a(f'v_permlane16_swap_b32 v{x}, v{x+2}'); a(f'v_permlane16_swap_b32 v{x+1}, v{x+3}')
            a(f's_mov_b32 s40, {mt*16*2048}')
            a(f'buffer_store_dwordx4 v[{x}:{x+3}], v{vO}, s[12:15], s40 offen offset:{tp*64}')
    if stamp: stamp_out(a, f'L_g2end_{tag}', 64, 1)
    a.label(f'L_g2end_{tag}')
    a('s_endpgm')
    a.label(f'L_loader_{tag}')
    loader_part(a, cfg, tag, tmp)
    return Rc.p, cfg.LDS


def gen_g2s(a, tag, cfg, stamp=False, l2pf=0, SIG=18, mark=False, nopre=False, unroll=False, flags=False):
    assert cfg.BM == 128 and cfg.BN == 128 and cfg.WM == 2 and cfg.WN == 2 and cfg.S == 4 and cfg.NSUB == 1
    TILE = 3*cfg.STAGE; TAB = TILE + 16384; NYQ = cfg.LDS
    a('s_load_dwordx4 s[16:19], s[0:1], 40')
    a('s_load_dwordx4 s[84:87], s[0:1], 56')
    a('s_load_dwordx2 s[66:67], s[0:1], 0')
    if stamp: a('s_memrealtime s[52:53]'); cfg.stampb0 = True
    a('v_lshrrev_b32 v1, 6, v0'); a('v_and_b32 v0, 63, v0'); a('v_readfirstlane_b32 s20, v1')
    a('s_and_b32 s21, s2, 7'); a('s_lshr_b32 s22, s2, 3')
    a('s_lshr_b32 s25, s21, 2')
    a('s_and_b32 s23, s21, 3'); a('s_lshl_b32 s23, s23, 2'); a('s_and_b32 s24, s22, 3'); a('s_add_u32 s23, s23, s24')
    a('s_lshr_b32 s24, s22, 2')
    a(f's_mul_i32 s26, s23, {cfg.BM*cfg.pitchA}'); a(f's_mul_i32 s40, s25, {cfg.K*2}'); a('s_add_u32 s26, s26, s40')
    a(f's_mul_i32 s27, s24, {cfg.BN*2}'); a(f's_mul_i32 s40, s25, {cfg.K*cfg.pitchW}'); a('s_add_u32 s27, s27, s40')
    a('s_lshr_b32 s88, s23, 1')
    a('s_lshl_b32 s89, s25, 4'); a('s_and_b32 s40, s23, 1'); a('s_lshl_b32 s40, s40, 3'); a('s_add_u32 s89, s89, s40'); a('s_add_u32 s89, s89, s24')
    a('s_waitcnt lgkmcnt(0)')
    a('s_mov_b32 s64, s86'); a('s_mov_b32 s65, s87')
    srd_off(a, 4, 64, HP.off, M*HP.pitch)
    srd(a, 8, 16, F*Dm*2)
    emit_consts(a, cfg)
    srd(a, 80, 84, 256)
    tmp = [1,2,3,4]
    a(f's_cmp_ge_u32 s20, {cfg.NC}')
    a(f's_cbranch_scc1 L_loader_{tag}')
    srd(a, 12, 18, M*Dm*2)
    srd(a, 68, 66, M*Dm*2)
    srd_off(a, 72, 64, WS_S, M*Dm*2)
    srd_off(a, 76, 64, WS_XCH, 0x800000)
    a(f's_and_b32 s37, s20, {cfg.WN-1}')
    a(f's_lshr_b32 s36, s20, {cfg.WN.bit_length()-1}')
    Rc = Regs(5, 256)
    vO = Rc.alloc(); vL16 = Rc.alloc()
    a(f'v_lshlrev_b32 v{vL16}, 4, v0')
    a(f'v_and_b32 v{tmp[1]}, 15, v0')
    a(f's_mul_i32 s40, s23, {cfg.BM}'); a(f's_mul_i32 s41, s36, {cfg.TM*16}'); a('s_add_u32 s40, s40, s41')
    a('s_lshl_b32 s41, s25, 5'); a('s_add_u32 s40, s40, s41')
    a(f'v_add_u32 v{tmp[1]}, s40, v{tmp[1]}')
    a(f'v_lshlrev_b32 v{vO}, 11, v{tmp[1]}')
    a(f'v_lshrrev_b32 v{tmp[1]}, 4, v0'); a(f'v_and_b32 v{tmp[2]}, 1, v{tmp[1]}'); a(f'v_lshl_add_u32 v{vO}, v{tmp[2]}, 5, v{vO}')
    a(f'v_lshrrev_b32 v{tmp[1]}, 5, v0'); a(f'v_lshl_add_u32 v{vO}, v{tmp[1]}, 4, v{vO}')
    a(f's_mul_i32 s40, s37, {cfg.TN*32}'); a(f's_mul_i32 s41, s24, {cfg.BN*2}'); a('s_add_u32 s40, s40, s41')
    a(f'v_add_u32 v{vO}, s40, v{vO}')
    if unroll: sets = emit_consumer_addr2(a, cfg, Rc, 0, 's36', 's37', tmp)
    else: vRA, vRW = emit_consumer_addr(a, cfg, Rc, 0, 's36', 's37', tmp)
    acc = Rc.alloc(4*cfg.TM*cfg.TN, 4)
    for i in range(4*cfg.TM*cfg.TN): a(f'v_mov_b32 v{acc+i}, 0')
    U = Rc.p
    Fr = {'acc': acc, 'W': [Rc.alloc(16, 4), Rc.alloc(16, 4)], 'A': [Rc.alloc(16, 4), Rc.alloc(16, 4)]}
    NP = 4
    XR = Rc.alloc(4*NP, 4); SR = Rc.alloc(4*NP, 4); T = Rc.alloc(16, 4)
    vPF = Rc.alloc(); vPD = Rc.alloc()
    Rr = Regs(U, 256)
    G = Rr.alloc(16, 4); CS = Rr.alloc(16, 2); SN = Rr.alloc(16, 2); H = Rr.alloc(16, 4); TT = Rr.alloc(8, 4)
    V = [Rr.alloc(8, 4), Rr.alloc(8, 4)]; NQ = [Rr.alloc(), Rr.alloc()]; vSg = Rr.alloc(); vV = Rr.alloc(); vN = Rr.alloc(); vS = Rr.alloc()
    D1 = [[Rr.alloc(16, 4), Rr.alloc(16, 4)], [Rr.alloc(16, 4), Rr.alloc(16, 4)]]
    top = max(Rr.p, Rc.p)
    a('s_lshl_b32 s40, s88, 2'); a('s_add_u32 s40, s40, s20'); a('s_lshl_b32 s40, s40, 6'); a('s_lshl_b32 s41, s89, 1'); a('s_add_u32 s40, s40, s41')
    a('s_lshl_b32 s90, s40, 11'); a('s_add_u32 s91, s90, 2048')
    a(f'v_and_b32 v{vV}, 31, v0'); a(f'v_lshrrev_b32 v{vN}, 5, v0'); a(f'v_lshl_add_u32 v{vV}, v{vN}, 7, v{vV}')
    a(f'v_lshlrev_b32 v{vV}, 5, v{vV}'); a('s_lshl_b32 s40, s20, 2'); a(f's_add_u32 s41, s40, {TILE}'); a(f'v_add_u32 v{vV}, s41, v{vV}')
    a(f's_add_u32 s41, s40, {NYQ}'); a(f'v_mov_b32 v{vN}, s41')
    a(f'v_lshlrev_b32 v{vS}, 6, v0'); a(f'v_and_b32 v{vS}, 0x7ff, v{vS}'); a(f'v_lshrrev_b32 v{TT}, 5, v0'); a(f'v_lshl_add_u32 v{vS}, v{TT}, 5, v{vS}')
    a(f'v_and_b32 v{TT}, 1, v0'); a(f'v_cvt_f32_u32 v{TT}, v{TT}'); a(f'v_fma_f32 v{vSg}, v{TT}, -2.0, 1.0')
    a('v_cmp_gt_u32 vcc, 32, v0'); a(f'v_cndmask_b32 v{vSg}, 0, v{vSg}, vcc')
    a(f'v_add_u32 v{TT+1}, {TAB}, v{vL16}')
    a('s_barrier')
    T_ = LgkmTracker(a)
    for c in range(4): T_.issue(f'ds_read_b128 v[{G+4*c}:{G+4*c+3}], v{TT+1} offset:{1024*c}', ('G', c))
    for z in range(2):
        for q in range(2):
            for jj in range(4):
                T_.issue(f'ds_read_b32 v{V[z]+4*q+jj}, v{vV} offset:{1024*(8*q+jj) + 16*z}', ('V', z))
        T_.issue(f'ds_read_b32 v{NQ[z]}, v{vN} offset:{16*z}', ('N', z))
        if z == 0:
            T_.need([('G', c) for c in range(4)])
    for z in range(2):
        T_.need([('V', z), ('N', z)])
        for sg in range(2):
            d = D1[z][sg]
            a(f'{MF} v[{d}:{d+15}], v[{V[z]}:{V[z]+3}], v[{G+8*sg}:{G+8*sg+3}], 0')
            a(f'{MF} v[{d}:{d+15}], v[{V[z]+4}:{V[z]+7}], v[{G+8*sg+4}:{G+8*sg+7}], v[{d}:{d+15}]')
        if z == 0:
            for c in range(4, 12): T_.issue(f'ds_read_b128 v[{G+4*c}:{G+4*c+3}], v{TT+1} offset:{1024*c}', ('C', c))
    for c in range(12, 16): T_.issue(f'ds_read_b128 v[{G+4*c}:{G+4*c+3}], v{TT+1} offset:{1024*c}', ('H', c))
    for z in range(2): a(f'v_lshlrev_b32 v{NQ[z]}, 16, v{NQ[z]}')
    T_.need([('C', c) for c in range(4, 12)])
    for z in range(2):
        a(f'v_fmac_f32 v{D1[z][0]}, v{NQ[z]}, v{vSg}')
        cmul_pack(a, D1[z][1], D1[z][0], D1[z][1], CS, SN, TT)
        if z == 0: T_.all()
        d2 = D1[z][0]; P = D1[z][1]
        for q in range(4):
            a(f'{MF} v[{d2}:{d2+15}], v[{P+4*q}:{P+4*q+3}], v[{H+4*q}:{H+4*q+3}], ' + ('0' if q == 0 else f'v[{d2}:{d2+15}]'))
    for z in range(2):
        d2 = D1[z][0]; o = D1[z][1]
        for u in range(8): a(f'v_cvt_pk_bf16_f32 v{o+u}, v{d2+2*u}, v{d2+2*u+1}')
        so = 's90' if z == 0 else 's91'
        a(f'buffer_store_dwordx4 v[{o}:{o+3}], v{vS}, s[72:75], {so} offen sc1')
        a(f'buffer_store_dwordx4 v[{o+4}:{o+7}], v{vS}, s[72:75], {so} offen offset:16 sc1')
    a('s_lshl_b32 s40, s23, 3'); a('s_add_u32 s40, s40, s24'); a('s_lshl_b32 s40, s40, 3'); a('s_add_u32 s40, s40, s20')
    a('s_lshl_b32 s41, s25, 2'); a('s_add_u32 s38, s40, s41'); a('s_lshl_b32 s38, s38, 13')
    a('s_xor_b32 s39, s38, 0x8000')
    pre_bar = [f's_cmp_lg_u32 s32, {SIG-1}', f's_cbranch_scc1 L_nw_{tag}', 's_waitcnt vmcnt(0)', f'L_nw_{tag}:']
    for i in range(4): a(f'v_mov_b32 v{XR+i}, -1')
    a('s_mov_b32 s96, s38')
    def per_iter(a):
        a('s_cmp_ge_u32 s32, 4'); a(f's_cbranch_scc1 L_nomark_{tag}')
        a(f'buffer_store_dwordx4 v[{XR}:{XR+3}], v{vL16}, s[76:79], s96 offen sc1')
        a(f'buffer_store_dwordx4 v[{XR}:{XR+3}], v{vL16}, s[76:79], s96 offen offset:1024 sc1')
        a('s_add_u32 s96, s96, 2048')
        a.label(f'L_nomark_{tag}')
    def before_last(a):
        k = 0
        for mt in range(2):
            for tp in range(2):
                a(f's_mov_b32 s40, {mt*16*2048}')
                a(f'buffer_load_dwordx4 v[{XR+4*k}:{XR+4*k+3}], v{vO}, s[68:71], s40 offen offset:{tp*64}')
                a(f'buffer_load_dwordx4 v[{SR+4*k}:{SR+4*k+3}], v{vO}, s[72:75], s40 offen offset:{tp*64} sc1')
                k += 1
    ool = []
    if unroll:
        ool = emit_consumer_loop2(a, cfg, Fr, sets, 32, tag, hooks={'pre_bar': {SIG-1: ['s_waitcnt vmcnt(0)']}, 'at_stage': {cfg.NST-1: before_last}})
    else:
        emit_consumer_loop(a, cfg, Fr, vRA, vRW, 32, 33, 34, tag, pre_barrier=None if nopre else pre_bar, before_last=before_last, per_iter=per_iter if mark else None)
    if stamp: stamp_mid(a)
    a('s_add_u32 s41, s39, 4096')
    for r in range(8):
        c = acc + 32 + 4*r
        a(f'buffer_store_dwordx4 v[{c}:{c+3}], v{vL16}, s[76:79], {"s39" if r < 4 else "s41"} offen offset:{1024*(r & 3)} sc1')
    RX = Fr['W'][0]
    assert Fr['W'][1] == RX+16 and Fr['A'][0] == RX+32
    silu_consts(a)
    q = RX + 32
    if flags:
        srd_off(a, 80, 64, WS_FLG, 0x10000)
        a('s_lshr_b32 s40, s39, 7'); a(f'v_mov_b32 v{q}, s40'); a(f'v_mov_b32 v{q+1}, 1')
        a('s_lshr_b32 s40, s38, 7'); a(f'v_mov_b32 v{q+2}, s40')
        a('s_waitcnt vmcnt(0)')
        a('s_mov_b64 exec, 1')
        a(f'buffer_store_dword v{q+1}, v{q}, s[80:83], 0 offen sc1')
        a('s_mov_b64 exec, -1')
        a('s_mov_b32 s42, 0')
        a.label(f'L_xch_{tag}')
        a(f'buffer_load_dword v{q+3}, v{q+2}, s[80:83], 0 offen sc1')
        a('s_add_u32 s42, s42, 1')
        a('s_waitcnt vmcnt(0)')
        a(f'v_readfirstlane_b32 s40, v{q+3}')
        a('s_cmp_eq_u32 s40, 1'); a(f's_cbranch_scc1 L_xok_{tag}')
        a('s_cmp_lt_u32 s42, 0x8000'); a(f's_cbranch_scc1 L_xch_{tag}')
        a.label(f'L_xok_{tag}')
        a('s_add_u32 s41, s38, 4096')
        for r in range(8):
            a(f'buffer_load_dwordx4 v[{RX+4*r}:{RX+4*r+3}], v{vL16}, s[76:79], {"s38" if r < 4 else "s41"} offen offset:{1024*(r & 3)} sc1')
        a('s_waitcnt vmcnt(0)')
    else:
        a('s_add_u32 s41, s38, 4096'); a('s_mov_b32 s42, 0')
        a.label(f'L_xch_{tag}')
        for r in range(8):
            a(f'buffer_load_dwordx4 v[{RX+4*r}:{RX+4*r+3}], v{vL16}, s[76:79], {"s38" if r < 4 else "s41"} offen offset:{1024*(r & 3)} sc1')
        a('s_add_u32 s42, s42, 1')
        a('s_waitcnt vmcnt(0)')
        a(f'v_max3_u32 v{q}, v{RX}, v{RX+1}, v{RX+2}'); a(f'v_max3_u32 v{q+1}, v{RX+3}, v{RX+4}, v{RX+5}')
        for i in range(6, 32, 4):
            a(f'v_max3_u32 v{q}, v{q}, v{RX+i}, v{RX+i+1}')
            if i+2 < 32: a(f'v_max3_u32 v{q+1}, v{q+1}, v{RX+i+2}, v{RX+i+3}')
        a(f'v_max_u32 v{q}, v{q}, v{q+1}')
        a(f'v_cmp_eq_u32 vcc, -1, v{q}')
        a(f's_cbranch_vccz L_xok_{tag}')
        a('s_cmp_lt_u32 s42, 0x4000'); a(f's_cbranch_scc1 L_xch_{tag}')
        a.label(f'L_xok_{tag}')
    if stamp: a('s_memrealtime s[92:93]')
    for i in range(0, 32, 2):
        a(f'v_pk_add_f32 v[{acc+i}:{acc+i+1}], v[{acc+i}:{acc+i+1}], v[{RX+i}:{RX+i+1}]')
    k = 0
    for mt in range(2):
        for tp in range(2):
            x = XR + 4*k; s = SR + 4*k; k += 1
            a(f'v_permlane16_swap_b32 v{x}, v{x+2}'); a(f'v_permlane16_swap_b32 v{x+1}, v{x+3}')
            a(f'v_permlane16_swap_b32 v{s}, v{s+2}'); a(f'v_permlane16_swap_b32 v{s+1}, v{s+3}')
            for tt in range(2):
                c = acc + 4*(mt*cfg.TN + 2*tp + tt); g = T + 4*tt; u = T + 8
                silu4(a, c, g)
                for j in range(2):
                    a(f'v_lshlrev_b32 v{u+2*j}, 16, v{s+2*tt+j}'); a(f'v_and_b32 v{u+2*j+1}, 0xffff0000, v{s+2*tt+j}')
                    a(f'v_lshlrev_b32 v{u+4+2*j}, 16, v{x+2*tt+j}'); a(f'v_and_b32 v{u+4+2*j+1}, 0xffff0000, v{x+2*tt+j}')
                for j in range(2):
                    a(f'v_pk_fma_f32 v[{g+2*j}:{g+2*j+1}], v[{u+2*j}:{u+2*j+1}], v[{g+2*j}:{g+2*j+1}], v[{u+4+2*j}:{u+4+2*j+1}]')
                for j in range(2):
                    a(f'v_cvt_pk_bf16_f32 v{x+2*tt+j}, v{g+2*j}, v{g+2*j+1}')
            a(f'v_permlane16_swap_b32 v{x}, v{x+2}'); a(f'v_permlane16_swap_b32 v{x+1}, v{x+3}')
            a(f's_mov_b32 s40, {mt*16*2048}')
            a(f'buffer_store_dwordx4 v[{x}:{x+3}], v{vO}, s[12:15], s40 offen offset:{tp*64}')
    if stamp:
        a('s_waitcnt lgkmcnt(0)')
        a('s_sub_u32 s60, s60, s58')
        a('s_waitcnt vmcnt(0)'); a('s_memrealtime s[56:57]'); a('s_waitcnt lgkmcnt(0)')
        a('s_cmp_lg_u32 s20, 0'); a(f's_cbranch_scc1 L_g2end_{tag}')
        srd_off(a, 12, 64, WS_DBG + 5*0x4000, 0x4000)
        for i, r in enumerate((52, 53, 94, 95, 54, 55, 92, 93, 56, 57, 60)): a(f'v_mov_b32 v{12+i}, s{r}')
        a('v_mov_b32 v23, 0')
        a('s_lshl_b32 s40, s2, 6'); a('v_mov_b32 v10, s40')
        a('v_cmp_eq_u32 vcc, 0, v0'); a('s_and_saveexec_b64 s[62:63], vcc')
        for i in range(3): a(f'buffer_store_dwordx4 v[{12+4*i}:{15+4*i}], v10, s[12:15], 0 offen offset:{16*i}')
    a.label(f'L_g2end_{tag}')
    a('s_endpgm')
    for blk in ool:
        for ln in blk: a(ln)
    a.label(f'L_loader_{tag}')
    def pre(a, Rl):
        vY = Rl.alloc(); vT = Rl.alloc()
        srd_off(a, 12, 64, WS_Y, ZBYTES); srd_off(a, 68, 64, WS_TAB, 16384)
        a(f'v_lshrrev_b32 v{vT}, 1, v0'); a(f's_mov_b32 s41, {ZP}'); a(f'v_mul_lo_u32 v{vY}, v{vT}, s41')
        a(f'v_and_b32 v{vT}, 1, v0'); a(f'v_lshl_add_u32 v{vY}, v{vT}, 4, v{vY}')
        a(f'v_lshlrev_b32 v{vT}, 4, v0')
        a('s_lshr_b32 s40, s89, 4'); a('s_lshl_b32 s40, s40, 2'); a('s_lshr_b32 s41, s88, 1'); a('s_add_u32 s40, s40, s41'); a('s_lshl_b32 s40, s40, 6')
        a('s_and_b32 s41, s88, 1'); a('s_lshl_b32 s41, s41, 5'); a('s_add_u32 s40, s40, s41')
        a('s_and_b32 s41, s89, 15'); a('s_lshl_b32 s41, s41, 1'); a('s_add_u32 s40, s40, s41'); a('s_lshl_b32 s90, s40, 4')
        a(f's_mul_i32 s40, s35, {4*32*ZP}'); a('s_add_u32 s40, s40, s90')
        a('s_lshl_b32 s41, s35, 12')
        for i in range(4):
            a(f's_add_u32 m0, s41, {TILE + 1024*i}'); a('s_nop 0')
            a(f'buffer_load_dwordx4 v{vY}, s[12:15], s40 offen lds')
            if i < 3: a(f's_add_u32 s40, s40, {32*ZP}')
        a(f's_add_u32 m0, s41, {TAB}'); a('s_nop 0')
        for i in range(4):
            a(f'buffer_load_dwordx4 v{vT}, s[68:71], s41 offen offset:{1024*i} lds')
        a('s_cmp_lg_u32 s35, 0'); a(f's_cbranch_scc1 L_nonyq_{tag}')
        a(f's_add_u32 s40, s90, {512*ZP}'); a(f's_mov_b32 m0, {NYQ}'); a('s_mov_b64 exec, 3')
        a(f'buffer_load_dwordx4 v{vY}, s[12:15], s40 offen lds')
        a('s_mov_b64 exec, -1')
        a.label(f'L_nonyq_{tag}')
    NPRO = (l2pf - (cfg.S-1)) if l2pf else 0
    assert NPRO == 0 or NPRO >= cfg.S-1
    def pf_setup(a, Rl):
        vP = Rl.alloc(); vD = Rl.alloc(); t = Rl.alloc()
        a('s_cmp_ge_u32 s35, 2'); a(f's_cbranch_scc1 L_pfw_{tag}')
        a('s_and_b32 s40, s21, 3'); a('s_lshl_b32 s40, s40, 9'); a('s_lshl_b32 s41, s22, 4'); a('s_add_u32 s40, s40, s41')
        a('s_lshl_b32 s41, s35, 3'); a('s_add_u32 s40, s40, s41')
        a(f'v_add_u32 v{vP}, s40, v0'); a(f's_mov_b32 s41, {cfg.pitchA}'); a(f'v_mul_lo_u32 v{vP}, v{vP}, s41')
        a(f's_mul_i32 s40, s25, {cfg.K*2}'); a(f'v_add_u32 v{vP}, s40, v{vP}')
        a(f'v_mov_b32 v{t}, 0x7f000000'); a('v_cmp_gt_u32 vcc, 8, v0'); a(f'v_cndmask_b32 v{vP}, v{t}, v{vP}, vcc')
        for i in range(4): a(f's_mov_b32 s{72+i}, s{4+i}')
        a('s_mov_b32 s97, 128')
        a(f's_branch L_pfx_{tag}')
        a.label(f'L_pfw_{tag}')
        a(f's_mul_i32 s40, s25, {cfg.K}'); a('s_lshl_b32 s41, s22, 1'); a('s_add_u32 s40, s40, s41'); a('s_add_u32 s40, s40, s35'); a('s_sub_u32 s40, s40, 2')
        a('s_lshl_b32 s40, s40, 11')
        a(f'v_lshlrev_b32 v{vP}, 7, v0'); a(f'v_add_u32 v{vP}, s40, v{vP}')
        a(f'v_mov_b32 v{t}, 0x7f000000'); a('v_cmp_gt_u32 vcc, 16, v0'); a(f'v_cndmask_b32 v{vP}, v{t}, v{vP}, vcc')
        for i in range(4): a(f's_mov_b32 s{72+i}, s{8+i}')
        a(f's_mov_b32 s97, {64*cfg.pitchW}')
        a.label(f'L_pfx_{tag}')
        a(f's_mul_i32 s98, s97, {cfg.S-1}')
        return vP, vD
    PFR = {}
    def pf_one(a):
        a(f'buffer_load_dword v{PFR["d"]}, v{PFR["p"]}, s[72:75], s98 offen')
        a('s_add_u32 s98, s98, s97')
    def pf_pro(a):
        for i in range(NPRO): pf_one(a)
        return NPRO
    def after_pro(a):
        a(f's_waitcnt vmcnt({(cfg.S-1)*cfg.P + NPRO})'); a('s_barrier')
    def post_bar(a):
        a(f's_cmp_lg_u32 s32, {SIG}'); a(f's_cbranch_scc1 L_nosig_{tag}')
        a('s_cmp_lg_u32 s35, 0'); a(f's_cbranch_scc1 L_nosig_{tag}')
        a('s_lshl_b32 s40, s88, 5'); a('v_mov_b32 v1, s40'); a('v_mov_b32 v2, 1'); a('s_mov_b64 exec, 1')
        a('buffer_atomic_add v2, v1, s[80:83], 0 offen sc1')
        a('s_mov_b64 exec, -1')
        a.label(f'L_nosig_{tag}')
    def tail(a):
        a('s_lshl_b32 s40, s88, 5'); a('v_mov_b32 v1, s40')
        a('buffer_load_dword v2, v1, s[80:83], 0 offen sc1')
        return 1
    def pre_last(a):
        a('s_mov_b32 s42, 0')
        a.label(f'L_poll_{tag}')
        a('s_waitcnt vmcnt(0)')
        a('v_readfirstlane_b32 s40, v2')
        a('s_cmp_ge_u32 s40, 32'); a(f's_cbranch_scc1 L_pollok_{tag}')
        a('buffer_load_dword v2, v1, s[80:83], 0 offen sc1')
        a('s_add_u32 s42, s42, 1'); a('s_cmp_lt_u32 s42, 0x8000'); a(f's_cbranch_scc1 L_poll_{tag}')
        a.label(f'L_pollok_{tag}')
    def pre2(a, R):
        a('s_lshl_b32 s92, s25, 5'); pre(a, R)
        if l2pf: PFR['p'], PFR['d'] = pf_setup(a, R)
    loader_part(a, cfg, tag, tmp, tail, s_rowxor='s92', pre=pre2, after_pro=after_pro, post_bar=post_bar, pre_last=pre_last,
                extra=pf_one if l2pf else None, extra_pro=pf_pro if l2pf else None)
    return top, cfg.LDS + 64
```

```python
import sys
from asm import *
from fft import *
from roles_gemm import *
import hazard, fft
from full import wrap, KN
from g2var import g2k, finish
from fused import gen_fused
UF = dict(flags=True, unroll=True)
S3 = dict(a0first=True, maxper0=1, bat=4)
def k1(stamp, **kw):
    fft.SC = ''; fft.SCX = ''; fft.SCY = ''; fft.STAMP = False
    a = Asm(); name = 'g1col_kernel'
    a('s_cmp_ge_u32 s2, 256'); a(f's_cbranch_scc1 L_end_{name}')
    nv, l = gen_fused(a, stamp, **kw)
    a.label(f'L_end_{name}'); a('s_endpgm')
    return wrap(name, a.text(), nv, 256, 512, l)
def emit(fn, st, kw={}, gopt=UF, gkw=S3):
    ks = [k1(st, **kw), g2k(KN + '_kernel', st, gopt, **gkw)]
    open('exp/%s%s.s' % (fn, '_st' if st else ''),'w').write(finish(ks))
if __name__ == '__main__':
    for st in (False, True):
        emit('f6', st, dict(psleep=16))
        emit('f6a', st, dict(psleep=0))
        emit('f6b', st, dict(psleep=32))
        emit('f6c', st, dict(psleep=8))
        emit('f6d', st, dict(psleep=0, nosync=True))
```

```python
from asm import *
from fft import *
import fft
from gemm16 import *
from roles_gemm import *
WS_PF = 0x2C30000
WS_CS = 0x2C20000
ZB2 = 515*ZP
ROWB = 49152; TILE0 = 98304; CSP = 137216
STAT_LDS = 147456; CS_LDS = STAT_LDS + 1024; SIGC_LDS = CS_LDS + 2048; FUSED_LDS = SIGC_LDS + 64
NLOG2E = 0xbfb8aa3b
SC1 = ' sc1'
PSLEEP = 0; NOSYNC = False

def top(a, stamp):
    a('s_load_dwordx2 s[80:81], s[0:1], 0')
    a('s_load_dwordx2 s[82:83], s[0:1], 32')
    a('s_load_dwordx2 s[84:85], s[0:1], 64')
    a('s_load_dwordx2 s[86:87], s[0:1], 56')
    a('s_load_dwordx2 s[88:89], s[0:1], 40')
    if stamp: stamp_begin(a)
    a('v_lshrrev_b32 v1, 6, v0'); a('v_and_b32 v0, 63, v0'); a('v_readfirstlane_b32 s20, v1')
    for r in range(240, 252): a(f'v_mov_b32 v{r}, 0')
    a('s_and_b32 s21, s2, 7'); a('s_lshr_b32 s22, s2, 3')
    a('s_and_b32 s76, s21, 3'); a('s_lshl_b32 s76, s76, 2'); a('s_and_b32 s24, s22, 3'); a('s_add_u32 s76, s76, s24')
    a('s_lshr_b32 s77, s21, 2'); a('s_mul_i32 s77, s77, 7'); a('s_lshr_b32 s25, s22, 2'); a('s_add_u32 s77, s77, s25')

class Early:
    def __init__(s, cfg): s.cfg = cfg; s.vA = None
    def emit(s, a, tag):
        cfg = s.cfg
        a('s_cmp_lt_u32 s20, 4'); a(f's_cbranch_scc1 L_noearly_{tag}')
        a('s_sub_u32 s64, s20, 4')
        a(f's_mul_i32 s65, s76, {cfg.BM*cfg.pitchA}'); a(f's_mul_i32 s66, s77, {cfg.BN*2}')
        srd(a, 68, 80, M*Dm*2); srd(a, 72, 82, Dm*F*2)
        R = Regs(240, 256)
        s.vA, s.vW = emit_loader_setup(a, cfg, R, 0, 's64', 's65', 's66', [236, 237, 238, 239])
        a(f's_mul_i32 s78, s64, {cfg.PA*1024}')
        a(f's_mul_i32 s79, s64, {cfg.PW*1024}'); a(f's_add_u32 s79, s79, {cfg.A_BYTES}')
        a('s_mov_b32 s67, 0')
        for g in stage_load_list(cfg, s.vA, s.vW, 68, 72, 67, 67, 78, 38):
            for x in g: a(x)
        a.label(f'L_noearly_{tag}')
        return cfg.P
    def wait(s, a, n, tag):
        a(f's_waitcnt vmcnt({n + s.cfg.P})')
        a('s_cmp_ge_u32 s20, 4'); a(f's_cbranch_scc1 L_w{tag}')
        a(f's_waitcnt vmcnt({n})')
        a.label(f'L_w{tag}')

def row_part(a, tag, early):
    wg = 's2'
    a(f's_and_b32 s21, {wg}, 7'); a(f's_lshr_b32 s22, {wg}, 3')
    a('s_lshr_b32 s23, s22, 1')
    a('s_and_b32 s24, s22, 1'); a('s_lshl_b32 s25, s21, 1'); a('s_add_u32 s24, s24, s25')
    a('s_lshl_b32 s25, s23, 2'); a('s_and_b32 s26, s20, 3'); a('s_add_u32 s25, s25, s26'); a('s_lshl_b32 s25, s25, 6')
    a('s_lshl_b32 s26, s24, 2'); a('s_add_u32 s25, s25, s26'); a('s_lshr_b32 s26, s20, 2'); a('s_add_u32 s25, s25, s26')
    a('s_lshl_b32 s26, s25, 11'); a('s_add_u32 s27, s26, 4096')
    a('s_lshr_b32 s28, s24, 3'); a('s_lshl_b32 s28, s28, 2'); a('s_lshr_b32 s29, s23, 1'); a('s_add_u32 s28, s28, s29'); a('s_lshl_b32 s28, s28, 6')
    a('s_and_b32 s29, s23, 1'); a('s_lshl_b32 s29, s29, 5'); a('s_add_u32 s28, s28, s29')
    a('s_and_b32 s29, s24, 7'); a('s_lshl_b32 s29, s29, 2'); a('s_add_u32 s28, s28, s29'); a('s_lshl_b32 s28, s28, 4')
    a('v_lshlrev_b32 v1, 5, v0')
    a('s_waitcnt lgkmcnt(0)')
    srd(a, 4, 80, 2048*2048)
    R = Regs(8, 236)
    X = [R.alloc(8, 4), R.alloc(8, 4)]
    a(f'buffer_load_dwordx4 v[{X[0]}:{X[0]+3}], v1, s[4:7], s26 offen')
    a(f'buffer_load_dwordx4 v[{X[0]+4}:{X[0]+7}], v1, s[4:7], s26 offen offset:16')
    a(f'buffer_load_dwordx4 v[{X[1]}:{X[1]+3}], v1, s[4:7], s27 offen')
    a(f'buffer_load_dwordx4 v[{X[1]+4}:{X[1]+7}], v1, s[4:7], s27 offen offset:16')
    if early: early.emit(a, tag)
    srd_off(a, 12, 84, WS_Z, ZB2)
    B1 = R.alloc(16, 4); CS = R.alloc(16, 2); SN = R.alloc(16, 2); A2 = R.alloc(16, 4)
    T = R.alloc(8, 4)
    fC32, fC1k, fH, fD, fPh = 2, 3, 4, 5, 6
    a('v_and_b32 v7, 31, v0'); a('v_cvt_f32_u32 v7, v7')
    a(f'v_mul_f32 v{fC32}, {f32(1/32)}, v7'); a(f'v_mul_f32 v{fC1k}, {f32(1/1024)}, v7')
    a(f'v_lshrrev_b32 v{fH}, 5, v0'); a(f'v_cvt_f32_u32 v{fH}, v{fH}')
    a(f'v_mul_f32 v7, {f32(8.0)}, v{fH}')
    for q in range(2):
        for jj in range(4):
            for e in range(2):
                aa = 16*q + 2*jj + e
                a(f'v_add_f32 v{T}, {f32(float(aa))}, v7')
                a(f'v_mul_f32 v{T}, v{T}, v{fC32}'); a(f'v_fract_f32 v{T}, v{T}')
                a(f'v_cos_f32 v{T+1+e}, v{T}'); a(f'v_sin_f32 v{T+3+e}, v{T}')
            a('s_nop 0')
            a(f'v_cvt_pk_bf16_f32 v{B1+4*q+jj}, v{T+1}, v{T+2}')
            a(f'v_cvt_pk_bf16_f32 v{B1+8+4*q+jj}, -v{T+3}, -v{T+4}')
    a(f'v_mul_f32 v7, {f32(4.0)}, v{fH}')
    for r in range(16):
        emit_cs(a, CS+r, SN+r, 7, (r & 3) + 8*(r >> 2), fC1k, None, T)
    a(f'v_and_b32 v{fD}, 31, v0'); a(f'v_lshrrev_b32 v{fD}, 1, v{fD}'); a(f'v_cvt_f32_u32 v{fD}, v{fD}'); a(f'v_mul_f32 v{fD}, {f32(1/32)}, v{fD}')
    a(f'v_and_b32 v{fPh}, 1, v0'); a(f'v_cvt_f32_u32 v{fPh}, v{fPh}'); a(f'v_mul_f32 v{fPh}, {f32(0.25)}, v{fPh}')
    for q in range(4): emit_img(a, A2+4*q, 7, 8*q, fD, f'v{fPh}', T)
    vRB = 2; vTR, vTW = 3, 4
    a(f's_lshl_b32 s30, s20, 12'); a(f's_add_u32 s30, s30, {ROWB}')
    a(f'v_add_u32 v{vRB}, s30, v1')
    a(f'v_lshrrev_b32 v5, 5, v0'); a(f'v_lshlrev_b32 v5, 3, v5'); a(f'v_lshrrev_b32 v6, 2, v0'); a(f'v_and_b32 v6, 3, v6'); a('v_add_u32 v5, v5, v6')
    a('v_lshlrev_b32 v5, 6, v5'); a('v_lshrrev_b32 v6, 4, v0'); a('v_and_b32 v6, 1, v6'); a('v_lshl_add_u32 v5, v6, 5, v5')
    a('v_and_b32 v6, 3, v0'); a('v_lshl_add_u32 v5, v6, 3, v5'); a(f'v_add_u32 v{vTR}, s30, v5')
    a('v_and_b32 v5, 31, v0'); a('v_lshrrev_b32 v6, 5, v0'); a('v_lshl_add_u32 v5, v6, 6, v5')
    a('v_lshrrev_b32 v6, 3, v5'); a('v_mul_u32_u24 v5, 72, v5'); a('v_lshl_add_u32 v5, v6, 3, v5')
    a('s_lshl_b32 s31, s20, 2'); a(f's_add_u32 s31, s31, {TILE0}'); a(f'v_add_u32 v{vTW}, s31, v5')
    a('v_mov_b32 v5, s31')
    XF = [R.alloc(16, 2), R.alloc(16, 2)]
    S = [R.alloc(4, 2), R.alloc(4, 2)]
    if early: early.wait(a, 0, tag)
    else: a('s_waitcnt vmcnt(0)')
    for z in range(2):
        for j in range(8):
            a(f'v_lshlrev_b32 v{XF[z]+2*j}, 16, v{X[z]+j}')
            a(f'v_and_b32 v{XF[z]+2*j+1}, 0xffff0000, v{X[z]+j}')
    for z in range(2):
        a(f'v_pk_add_f32 v[{S[z]}:{S[z]+1}], v[{XF[z]}:{XF[z]+1}], v[{XF[z]+2}:{XF[z]+3}]')
    for j in range(2, 8):
        for z in range(2):
            a(f'v_pk_add_f32 v[{S[z]}:{S[z]+1}], v[{S[z]}:{S[z]+1}], v[{XF[z]+2*j}:{XF[z]+2*j+1}]')
    for z in range(2): a(f'v_add_f32 v{S[z]}, v{S[z]}, v{S[z]+1}')
    allreduce2(a, S[0], S[0]+2, S[1], S[1]+2)
    Mn = [R.alloc(2, 2), R.alloc(2, 2)]
    ST = R.alloc(4, 2)
    for z in range(2):
        a(f'v_mul_f32 v{Mn[z]}, {f32(-1/1024)}, v{S[z]}'); a(f'v_mov_b32 v{Mn[z]+1}, v{Mn[z]}')
    for z in range(2):
        for j in range(8):
            a(f'v_pk_add_f32 v[{T+2*z}:{T+2*z+1}], v[{XF[z]+2*j}:{XF[z]+2*j+1}], v[{Mn[z]}:{Mn[z]+1}]')
            if j == 0: a(f'v_pk_mul_f32 v[{S[z]}:{S[z]+1}], v[{T+2*z}:{T+2*z+1}], v[{T+2*z}:{T+2*z+1}]')
            else: a(f'v_pk_fma_f32 v[{S[z]}:{S[z]+1}], v[{T+2*z}:{T+2*z+1}], v[{T+2*z}:{T+2*z+1}], v[{S[z]}:{S[z]+1}]')
    for z in range(2): a(f'v_add_f32 v{S[z]}, v{S[z]}, v{S[z]+1}')
    allreduce2(a, S[0], S[0]+2, S[1], S[1]+2)
    for z in range(2):
        s = S[z]
        a(f'v_mul_f32 v{s}, {f32(1/1024)}, v{s}')
        a(f'v_cvt_pk_bf16_f32 v{s}, v{s}, v{s}'); a(f'v_lshlrev_b32 v{s}, 16, v{s}')
        a(f'v_add_f32 v{s}, {f32(1e-5)}, v{s}')
        a(f'v_cvt_pk_bf16_f32 v{s}, v{s}, v{s}'); a(f'v_lshlrev_b32 v{s}, 16, v{s}')
        a(f'v_sqrt_f32 v{s}, v{s}'); a('s_nop 0')
        a(f'v_cvt_pk_bf16_f32 v{s}, v{s}, v{s}'); a(f'v_lshlrev_b32 v{s}, 16, v{s}')
        a(f'v_rcp_f32 v{s}, v{s}'); a('s_nop 0'); a(f'v_mov_b32 v{s+1}, v{s}')
        m = Mn[z]
        a(f'v_cvt_pk_bf16_f32 v{m}, v{m}, v{m}'); a(f'v_lshlrev_b32 v{m}, 16, v{m}'); a(f'v_mov_b32 v{m+1}, v{m}')
        a(f'v_mul_f32 v{ST+2*z}, {hex(NLOG2E)}, v{s}'); a(f'v_mul_f32 v{ST+2*z+1}, v{ST+2*z}, v{m}')
    a('s_mov_b64 exec, 1')
    for z in range(2):
        a(f'ds_write_b32 v5, v{ST+2*z} offset:{72*513 + 8*64 + 32*z}')
        a(f'ds_write_b32 v5, v{ST+2*z+1} offset:{72*514 + 8*64 + 32*z}')
    a('s_mov_b64 exec, -1')
    for z in range(2):
        for j in range(8):
            u = T + 2*((j & 1) + 2*z)
            a(f'v_pk_add_f32 v[{u}:{u+1}], v[{XF[z]+2*j}:{XF[z]+2*j+1}], v[{Mn[z]}:{Mn[z]+1}]')
            a(f'v_pk_mul_f32 v[{u}:{u+1}], v[{u}:{u+1}], v[{S[z]}:{S[z]+1}]')
            a(f'v_cvt_pk_bf16_f32 v{X[z]+j}, v{u}, v{u+1}')
    for z in range(2):
        a(f'ds_write_b128 v{vRB}, v[{X[z]}:{X[z]+3}] offset:{2048*z}')
        a(f'ds_write_b128 v{vRB}, v[{X[z]+4}:{X[z]+7}] offset:{2048*z+16}')
    AD = [R.alloc(8, 4), R.alloc(8, 4)]
    D1 = [[R.alloc(16, 4), R.alloc(16, 4)], [R.alloc(16, 4), R.alloc(16, 4)]]
    a('s_waitcnt lgkmcnt(0)')
    for z in range(2):
        for q in range(2):
            for jj in range(2):
                a(f'ds_read_b64_tr_b16 v[{AD[z]+4*q+2*jj}:{AD[z]+4*q+2*jj+1}], v{vTR} offset:{2048*z + 1024*q + 256*jj}')
    for z in range(2):
        a(f's_waitcnt lgkmcnt({4*(1-z)})')
        for sg in range(2):
            d = D1[z][sg]
            a(f'{MF} v[{d}:{d+15}], v[{AD[z]}:{AD[z]+3}], v[{B1+8*sg}:{B1+8*sg+3}], 0')
            a(f'{MF} v[{d}:{d+15}], v[{AD[z]+4}:{AD[z]+7}], v[{B1+8*sg+4}:{B1+8*sg+7}], v[{d}:{d+15}]')
    P = XF; ALT = S
    for z in range(2):
        d = D1[z][0]
        a(f'v_pk_add_f32 v[{ALT[z]}:{ALT[z]+1}], v[{d}:{d+1}], v[{d+2}:{d+3}]')
        for j in range(2, 8): a(f'v_pk_add_f32 v[{ALT[z]}:{ALT[z]+1}], v[{ALT[z]}:{ALT[z]+1}], v[{d+2*j}:{d+2*j+1}]')
        a(f'v_sub_f32 v{ALT[z]}, v{ALT[z]}, v{ALT[z]+1}')
        a(f'v_mov_b32 v{ALT[z]+1}, v{ALT[z]}'); a(f'v_permlane32_swap_b32 v{ALT[z]}, v{ALT[z]+1}'); a(f'v_add_f32 v{ALT[z]}, v{ALT[z]}, v{ALT[z]+1}')
        a(f'v_mov_b32 v{ALT[z]+1}, 0'); a(f'v_cvt_pk_bf16_f32 v{ALT[z]}, v{ALT[z]}, v{ALT[z]+1}')
        cmul_pack(a, P[z], D1[z][0], D1[z][1], CS, SN, T)
        d2 = D1[z][0]
        for q in range(4):
            a(f'{MF} v[{d2}:{d2+15}], v[{A2+4*q}:{A2+4*q+3}], v[{P[z]+4*q}:{P[z]+4*q+3}], ' + ('0' if q == 0 else f'v[{d2}:{d2+15}]'))
    for z in range(2):
        d2 = D1[z][0]; o = D1[z][1]
        for u in range(8):
            a(f'v_cvt_pk_bf16_f32 v{o+u}, v{d2+2*u}, v{d2+2*u+1}')
            du = 32*(u & 1) + 128*(u >> 1)
            a(f'ds_write_b32 v{vTW}, v{o+u} offset:{73*du + 32*z}')
    a('s_mov_b64 exec, 1')
    for z in range(2): a(f'ds_write_b32 v5, v{ALT[z]} offset:{72*512 + 8*64 + 32*z}')
    a('s_mov_b64 exec, -1')
    a('s_waitcnt lgkmcnt(0)'); a('s_barrier')
    return R.p

def wp_part(a, tag, early, tables, nocs=False):
    wg = 's2'
    a('s_load_dwordx4 s[16:19], s[0:1], 8')
    a(f's_and_b32 s21, {wg}, 7'); a(f's_lshr_b32 s22, {wg}, 3'); a('s_and_b32 s22, s22, 15')
    a('s_and_b32 s24, s21, 3'); a('s_lshl_b32 s24, s24, 1'); a('s_and_b32 s25, s22, 1'); a('s_add_u32 s24, s24, s25')
    a('s_lshr_b32 s23, s21, 2'); a('s_lshl_b32 s23, s23, 3'); a('s_lshr_b32 s25, s22, 1'); a('s_add_u32 s23, s23, s25')
    a('s_lshl_b32 s25, s23, 2'); a('s_and_b32 s26, s20, 3'); a('s_add_u32 s25, s25, s26'); a('s_lshl_b32 s25, s25, 5')
    a('s_lshl_b32 s26, s24, 2'); a('s_add_u32 s25, s25, s26'); a('s_lshr_b32 s26, s20, 2'); a('s_add_u32 s25, s25, s26')
    a('s_mul_i32 s26, s25, 1026'); a('s_add_u32 s27, s26, 2052')
    a('s_lshr_b32 s28, s23, 1'); a('s_lshl_b32 s28, s28, 6'); a('s_and_b32 s29, s23, 1'); a('s_lshl_b32 s29, s29, 5'); a('s_add_u32 s28, s28, s29')
    a('s_lshl_b32 s29, s24, 2'); a('s_add_u32 s28, s28, s29'); a('s_lshl_b32 s28, s28, 4')
    a('v_lshlrev_b32 v1, 4, v0'); a('v_mov_b32 v3, 1024')
    a('s_and_b32 s34, s2, 127')
    a('s_waitcnt lgkmcnt(0)')
    srd(a, 4, 16, 2048*1026); srd(a, 8, 18, 2048*1026)
    R = Regs(8, 236)
    if tables:
        ZV = R.alloc(4, 4); ZA_ = R.alloc(2)
        for i in range(4): a(f'v_mov_b32 v{ZV+i}, 0')
        all_addr(a, ZA_)
        srd_off(a, 96, 84, WS_PF, 4096); srd(a, 92, 86, 256)
        a('s_cmp_lg_u32 s2, 240'); a(f's_cbranch_scc1 L_noclr_{tag}'); a('s_cmp_lg_u32 s20, 7'); a(f's_cbranch_scc1 L_noclr_{tag}')
        a(f'buffer_store_dwordx4 v[{ZV}:{ZV+3}], v{ZA_}, s[96:99], 0 offen sc1')
        a.label(f'L_noclr_{tag}')
    WR = [R.alloc(4, 4), R.alloc(4, 4)]; WI = [R.alloc(4, 4), R.alloc(4, 4)]; NY = [R.alloc(2), R.alloc(2)]
    for z, so in enumerate(('s26', 's27')):
        a(f'buffer_load_dwordx4 v[{WR[z]}:{WR[z]+3}], v1, s[4:7], {so} offen')
        a(f'buffer_load_dwordx4 v[{WI[z]}:{WI[z]+3}], v1, s[8:11], {so} offen')
        a(f'buffer_load_ushort v{NY[z]}, v3, s[4:7], {so} offen')
        a(f'buffer_load_ushort v{NY[z]+1}, v3, s[8:11], {so} offen')
    PF = R.alloc(32, 4)
    srd(a, 36, 82, 1024*7168)
    a('v_lshrrev_b32 v2, 3, v0'); a('s_lshl_b32 s40, s20, 3'); a('v_add_u32 v2, s40, v2'); a('s_mov_b32 s41, 7168'); a('v_mul_lo_u32 v2, v2, s41')
    a('v_and_b32 v6, 7, v0'); a('v_lshl_add_u32 v2, v6, 4, v2')
    a('s_and_b32 s40, s34, 1'); a(f's_mul_i32 s40, s40, {512*7168}'); a('s_lshr_b32 s41, s34, 1'); a('s_lshl_b32 s41, s41, 7'); a('s_add_u32 s40, s40, s41')
    a('s_cmp_lt_u32 s34, %d' % (0 if nocs else 112)); a(f's_cselect_b32 s40, s40, {hex(0x7000000)}')
    for i in range(8):
        a(f'buffer_load_dwordx4 v[{PF+4*i}:{PF+4*i+3}], v2, s[36:39], s40 offen')
        a(f's_add_u32 s40, s40, {64*7168}')
    if early: early.emit(a, tag)
    srd_off(a, 12, 84, WS_WP, ZBYTES)
    O = R.alloc(16, 4)
    a('v_mul_u32_u24 v4, 584, v0'); a('s_lshl_b32 s31, s20, 2'); a(f's_add_u32 s31, s31, {TILE0}'); a('v_add_u32 v4, s31, v4')
    a('s_mov_b32 s29, 0x05040100'); a('s_mov_b32 s30, 0x07060302')
    if tables:
        a(f's_cmp_lg_u32 s2, 255'); a(f's_cbranch_scc1 L_notab_{tag}'); a('s_cmp_lg_u32 s20, 7'); a(f's_cbranch_scc1 L_notab_{tag}')
        gen_rinv_tables(a, R, 84, 44)
        a('s_waitcnt vmcnt(0)')
        a.label(f'L_notab_{tag}')
    if early: early.wait(a, 8, tag + 'a')
    else: a('s_waitcnt vmcnt(8)')
    if tables:
        a('s_cmp_lg_u32 s2, 240'); a(f's_cbranch_scc1 L_noopen_{tag}'); a('s_cmp_lg_u32 s20, 7'); a(f's_cbranch_scc1 L_noopen_{tag}')
        a(f'v_mov_b32 v{ZA_}, 0'); a(f'v_mov_b32 v{ZA_+1}, 1'); a('s_mov_b64 exec, 1')
        a(f'buffer_store_dword v{ZA_+1}, v{ZA_}, s[92:95], 0 offen sc1')
        a('s_mov_b64 exec, -1')
        a.label(f'L_noopen_{tag}')
    for z in range(2):
        for j in range(4):
            a(f'v_perm_b32 v{O+8*z+2*j}, v{WI[z]+j}, v{WR[z]+j}, s29')
            a(f'v_perm_b32 v{O+8*z+2*j+1}, v{WI[z]+j}, v{WR[z]+j}, s30')
        for e in range(8):
            a(f'ds_write_b32 v4, v{O+8*z+e} offset:{72*e + 32*z}')
    for z in range(2): a(f'v_lshl_or_b32 v{NY[z]}, v{NY[z]+1}, 16, v{NY[z]}')
    a('s_mov_b64 exec, 1')
    a('v_mov_b32 v5, s31')
    for z in range(2): a(f'ds_write_b32 v5, v{NY[z]} offset:{72*512 + 8*64 + 32*z}')
    a('s_mov_b64 exec, -1')
    AC = R.alloc(8, 4); U = R.alloc(8, 2)
    if early: early.wait(a, 0, tag + 'b')
    else: a('s_waitcnt vmcnt(0)')
    for i in range(8):
        for d in range(4):
            u = U + 2*(d & 3)
            dst = AC + 2*d if i == 0 else u
            a(f'v_lshlrev_b32 v{dst}, 16, v{PF+4*i+d}'); a(f'v_and_b32 v{dst+1}, 0xffff0000, v{PF+4*i+d}')
        if i:
            for d in range(4):
                u = U + 2*d
                a(f'v_pk_add_f32 v[{AC+2*d}:{AC+2*d+1}], v[{AC+2*d}:{AC+2*d+1}], v[{u}:{u+1}]')
    for r in range(8): a(f'v_add_f32_dpp v{AC+r}, v{AC+r}, v{AC+r} row_ror:8 row_mask:0xf bank_mask:0xf')
    for op in ('v_permlane16_swap_b32', 'v_permlane32_swap_b32'):
        for r in range(8): a(f'v_mov_b32 v{U+r}, v{AC+r}')
        for r in range(8): a(f'{op} v{AC+r}, v{U+r}')
        for r in range(8): a(f'v_add_f32 v{AC+r}, v{AC+r}, v{U+r}')
    a('v_lshlrev_b32 v6, 5, v0'); a('s_lshl_b32 s40, s20, 8'); a(f's_add_u32 s40, s40, {CSP}'); a('v_add_u32 v6, s40, v6')
    a('s_mov_b64 exec, 0xff')
    a(f'ds_write_b128 v6, v[{AC}:{AC+3}]'); a(f'ds_write_b128 v6, v[{AC+4}:{AC+7}] offset:16')
    a('s_mov_b64 exec, -1')
    a('s_waitcnt lgkmcnt(0)'); a('s_barrier')
    a('s_cmp_lg_u32 s20, 0'); a(f's_cbranch_scc1 L_nocs_{tag}')
    a('s_cmp_ge_u32 s34, 112'); a(f's_cbranch_scc1 L_nocs_{tag}')
    a(f'v_lshlrev_b32 v6, 2, v0'); a(f'v_add_u32 v7, {CSP}, v6')
    for w in range(8): a(f'ds_read_b32 v{U+w}, v7 offset:{256*w}')
    srd_off(a, 36, 84, WS_CS, 2*3584*4)
    a('s_and_b32 s40, s34, 1'); a(f's_mul_i32 s40, s40, {3584*4}'); a('s_lshr_b32 s41, s34, 1'); a('s_lshl_b32 s41, s41, 8'); a('s_add_u32 s40, s40, s41')
    a('s_waitcnt lgkmcnt(0)')
    for h in (4, 2, 1):
        for w in range(h): a(f'v_add_f32 v{U+w}, v{U+w}, v{U+w+h}')
    a(f'buffer_store_dword v{U}, v6, s[36:39], s40 offen sc1')
    a.label(f'L_nocs_{tag}')
    return R.p

def gate_issue(a, vt):
    srd(a, 92, 86, 256)
    a(f'v_mov_b32 v{vt}, 0')
    a(f'buffer_load_dword v{vt+1}, v{vt}, s[92:95], 0 offen sc1')
def signal(a, vt, tag):
    srd(a, 92, 86, 256)
    a('s_mov_b32 s42, 0')
    a.label(f'L_gate_{tag}')
    a(f'v_readfirstlane_b32 s40, v{vt+1}'); a('s_cmp_eq_u32 s40, 1'); a(f's_cbranch_scc1 L_gateok_{tag}')
    if PSLEEP: a(f's_sleep {PSLEEP}')
    a(f'buffer_load_dword v{vt+1}, v{vt}, s[92:95], 0 offen sc1')
    a('s_waitcnt vmcnt(0)')
    a('s_add_u32 s42, s42, 1'); a('s_cmp_lt_u32 s42, 0x8000'); a(f's_cbranch_scc1 L_gate_{tag}')
    a.label(f'L_gateok_{tag}')
    srd_off(a, 96, 84, WS_PF, 4096)
    a('s_lshr_b32 s40, s2, 3'); a('s_lshl_b32 s40, s40, 7'); a('s_and_b32 s41, s2, 7'); a('s_lshl_b32 s41, s41, 2'); a('s_add_u32 s40, s40, s41')
    a(f'v_mov_b32 v{vt}, s40'); a(f'v_mov_b32 v{vt+1}, 1'); a('s_mov_b64 exec, 1')
    if not NOSYNC: a(f'buffer_store_dword v{vt+1}, v{vt}, s[96:99], 0 offen sc1')
    a('s_mov_b64 exec, -1')

def all_addr(a, vt):
    a(f'v_lshrrev_b32 v{vt}, 1, v0'); a(f'v_lshlrev_b32 v{vt}, 7, v{vt}'); a(f'v_and_b32 v{vt+1}, 1, v0'); a(f'v_lshl_add_u32 v{vt}, v{vt+1}, 4, v{vt}')
def poll_all(a, vt, vd, tag):
    srd_off(a, 96, 84, WS_PF, 4096)
    all_addr(a, vt)
    a('s_mov_b32 s42, 0')
    a.label(f'L_poll_{tag}')
    a(f'buffer_load_dwordx4 v[{vd}:{vd+3}], v{vt}, s[96:99], 0 offen sc1')
    a('s_waitcnt vmcnt(0)')
    for i in range(4):
        a(f'v_cmp_eq_u32 vcc, 1, v{vd+i}')
        if i == 0: a('s_mov_b64 s[40:41], vcc')
        else: a('s_and_b64 s[40:41], s[40:41], vcc')
    a('s_cmp_eq_u64 s[40:41], -1'); a(f's_cbranch_scc1 L_pollok_{tag}')
    if NOSYNC: a(f's_branch L_pollok_{tag}')
    if PSLEEP: a(f's_sleep {PSLEEP}')
    a('s_add_u32 s42, s42, 1'); a('s_cmp_lt_u32 s42, 0x8000'); a(f's_cbranch_scc1 L_poll_{tag}')
    a.label(f'L_pollok_{tag}')
def poll3_addr(a, vt):
    a('s_lshr_b32 s40, s76, 1'); a('s_lshl_b32 s40, s40, 1'); a('s_add_u32 s41, s77, 16')
    a(f'v_lshrrev_b32 v{vt}, 3, v0'); a(f'v_add_u32 v{vt}, s40, v{vt}'); a(f'v_mov_b32 v{vt+1}, s41')
    a('v_cmp_gt_u32 vcc, 16, v0'); a(f'v_cndmask_b32 v{vt}, v{vt+1}, v{vt}, vcc')
    a(f'v_lshlrev_b32 v{vt}, 7, v{vt}'); a(f'v_and_b32 v{vt+1}, 7, v0'); a(f'v_lshl_add_u32 v{vt}, v{vt+1}, 2, v{vt}')
def poll3_check(a, vt, tag):
    a('s_mov_b32 s42, 0'); a(f's_branch L_pc_{tag}')
    a.label(f'L_poll_{tag}')
    if PSLEEP: a(f's_sleep {PSLEEP}')
    a(f'buffer_load_dword v{vt+1}, v{vt}, s[96:99], 0 offen sc1')
    a('s_waitcnt vmcnt(0)')
    a.label(f'L_pc_{tag}')
    a(f'v_cmp_eq_u32 vcc, 1, v{vt+1}')
    a('s_cmp_eq_u64 vcc, -1'); a(f's_cbranch_scc1 L_pollok_{tag}')
    if NOSYNC: a(f's_branch L_pollok_{tag}')
    a('s_add_u32 s42, s42, 1'); a('s_cmp_lt_u32 s42, 0x8000'); a(f's_cbranch_scc1 L_poll_{tag}')
    a.label(f'L_pollok_{tag}')

def stamp_rec(a, regs, slot, endlabel, ws=84):
    a('s_waitcnt vmcnt(0)'); a('s_memrealtime s[56:57]'); a('s_waitcnt lgkmcnt(0)')
    a('s_cmp_lg_u32 s20, 0'); a(f's_cbranch_scc1 {endlabel}')
    srd_off(a, 12, ws, WS_DBG + slot*0x4000, 0x4000)
    for i, r in enumerate(regs): a(f'v_mov_b32 v{12+i}, s{r}')
    a('s_lshl_b32 s40, s2, 6'); a('v_mov_b32 v10, s40')
    a('v_cmp_eq_u32 vcc, 0, v0'); a('s_and_saveexec_b64 s[62:63], vcc')
    for i in range((len(regs)+3)//4): a(f'buffer_store_dwordx4 v[{12+4*i}:{15+4*i}], v10, s[12:15], 0 offen offset:{16*i}')

def g1_part(a, tag, cfg, early, stamp, hsc, sigk, tsc=SC1, fltest=False):
    tmp = [1, 2, 3, 4]
    if stamp: a('s_memrealtime s[90:91]')
    a('s_mov_b32 s23, s76'); a('s_mov_b32 s24, s77')
    a(f's_mul_i32 s26, s23, {cfg.BM*cfg.pitchA}'); a(f's_mul_i32 s27, s24, {cfg.BN*2}')
    emit_consts(a, cfg)
    a(f's_cmp_ge_u32 s20, {cfg.NC}'); a(f's_cbranch_scc1 L_loader_{tag}')
    a('v_mov_b32 v65, 1')
    a('s_cmp_lg_u32 s20, 0'); a(f's_cbranch_scc1 L_nogate_{tag}')
    gate_issue(a, 64)
    a.label(f'L_nogate_{tag}')
    save = fft.SC; fft.SC = tsc
    tile_store_phase(a, 0, 's20', 12, 28, 8, TILE0, tag + 'a')
    a('s_add_u32 s21, s20, 4')
    tile_store_phase(a, 0, 's21', 12, 28, 40, TILE0, tag + 'b')
    fft.SC = save
    srd_off(a, 12, 84, HP.off, M*HP.pitch)
    a(f's_and_b32 s37, s20, {cfg.WN-1}')
    a(f's_lshr_b32 s36, s20, {cfg.WN.bit_length()-1}')
    Rc = Regs(72, 256)
    sets = emit_consumer_addr2(a, cfg, Rc, 0, 's36', 's37', tmp)
    vO = 5; vST = 6; vCS = 7
    Fr = consumer_regs(cfg, Regs(8, 256))
    Fr['acc'] = Rc.alloc(4*cfg.TM*cfg.TN, 4)
    acc = Fr['acc']
    for i in range(4*cfg.TM*cfg.TN): a(f'v_mov_b32 v{acc+i}, 0')
    a('s_waitcnt lgkmcnt(0)')
    a('s_waitcnt vmcnt(0)')
    a('v_mov_b32 v3, v65'); a('v_mov_b32 v2, 0')
    if stamp: a('s_memrealtime s[64:65]'); a('s_waitcnt lgkmcnt(0)')
    def first(a):
        a('s_cmp_lg_u32 s20, 0'); a(f's_cbranch_scc1 L_nosig_{tag}')
        signal(a, 2, tag)
        a.label(f'L_nosig_{tag}')
    ool = emit_consumer_loop2(a, cfg, Fr, sets, 32, tag, hooks={'first': first, 'pre_bar': dict([(5, ['s_memrealtime s[66:67]', 's_waitcnt lgkmcnt(0)']), (9, ['s_memrealtime s[68:69]', 's_waitcnt lgkmcnt(0)'])] if stamp else [])})
    if stamp: stamp_mid(a)
    STv = Fr['A'][0]; CSv = STv + 16
    a(f'v_and_b32 v{tmp[1]}, 15, v0'); a(f'v_lshlrev_b32 v{vST}, 3, v{tmp[1]}'); a(f'v_add_u32 v{vST}, {STAT_LDS}, v{vST}')
    a(f'v_lshrrev_b32 v{vCS}, 4, v0'); a(f'v_lshlrev_b32 v{vCS}, 4, v{vCS}'); a(f's_mul_i32 s40, s37, {cfg.TN*64}'); a(f's_add_u32 s40, s40, {CS_LDS}'); a(f'v_add_u32 v{vCS}, s40, v{vCS}')
    st = Fr['W'][0]; ndst = 3; tb = st + 4*ndst
    for t in range(cfg.TN): a(f'ds_read_b128 v[{CSv+4*t}:{CSv+4*t+3}], v{vCS} offset:{64*t}')
    for t in range(cfg.TN): a(f'ds_read_b128 v[{st+4*t}:{st+4*t+3}], v{vCS} offset:{1024+64*t}')
    for mt in range(cfg.TM): a(f'ds_read_b64 v[{STv+2*mt}:{STv+2*mt+1}], v{vST} offset:{128*mt}')
    a('s_mov_b32 s46, 0xbfb8aa3b'); a('s_mov_b32 s47, 0xbfb8aa3b')
    a(f's_mul_i32 s40, s23, {cfg.BM}'); a(f's_mul_i32 s41, s36, {cfg.TM*16}'); a('s_add_u32 s40, s40, s41')
    a(f'v_add_u32 v{tmp[1]}, s40, v{tmp[1]}')
    a(f's_mov_b32 s41, {HP.pitch}')
    a(f'v_mul_lo_u32 v{vO}, v{tmp[1]}, s41')
    a(f'v_lshrrev_b32 v{tmp[1]}, 4, v0'); a(f'v_and_b32 v{tmp[2]}, 1, v{tmp[1]}'); a(f'v_lshl_add_u32 v{vO}, v{tmp[2]}, 5, v{vO}')
    a(f'v_lshrrev_b32 v{tmp[1]}, 5, v0'); a(f'v_lshl_add_u32 v{vO}, v{tmp[1]}, 4, v{vO}')
    a(f's_mul_i32 s40, s37, {cfg.TN*32}'); a('s_add_u32 s40, s40, s27')
    a(f'v_add_u32 v{vO}, s40, v{vO}')
    if fltest:
        a(f'v_and_b32 v{tmp[1]}, 7, v0'); a(f's_mul_i32 s40, s23, {cfg.BM}'); a(f'v_add_u32 v{tmp[1]}, s40, v{tmp[1]}')
        a(f'v_mul_lo_u32 v{vO}, v{tmp[1]}, s41'); a(f'v_lshrrev_b32 v{tmp[1]}, 3, v0'); a(f'v_lshl_add_u32 v{vO}, v{tmp[1]}, 4, v{vO}')
        a(f's_mul_i32 s40, s37, {cfg.TN*32}'); a('s_add_u32 s40, s40, s27'); a(f'v_add_u32 v{vO}, s40, v{vO}')
    a(f's_waitcnt lgkmcnt({cfg.TM})')
    for i in range(0, 4*cfg.TN, 2): a(f'v_pk_add_f32 v[{CSv+i}:{CSv+i+1}], v[{CSv+i}:{CSv+i+1}], v[{st+i}:{st+i+1}]')
    a('s_waitcnt lgkmcnt(0)')
    def act4(c, t, cs, sp):
        for j in (0, 2): a(f'v_pk_mul_f32 v[{t+j}:{t+j+1}], v[{cs+j}:{cs+j+1}], v[{sp}:{sp+1}] op_sel:[0,1] op_sel_hi:[1,1]')
        for j in (0, 2): a(f'v_pk_fma_f32 v[{c+j}:{c+j+1}], v[{c+j}:{c+j+1}], v[{sp}:{sp+1}], v[{t+j}:{t+j+1}] op_sel:[0,0,0] op_sel_hi:[1,0,1]')
        for j in range(4): a(f'v_exp_f32 v{t+j}, v{c+j}')
        for j in (0, 2): a(f'v_pk_fma_f32 v[{t+j}:{t+j+1}], v[{t+j}:{t+j+1}], s[46:47], s[46:47]')
        for j in range(4): a(f'v_rcp_f32 v{t+j}, v{t+j}')
        for j in (0, 2): a(f'v_pk_mul_f32 v[{t+j}:{t+j+1}], v[{c+j}:{c+j+1}], v[{t+j}:{t+j+1}]')
    k = 0
    for mt in range(cfg.TM):
        for tp in range(cfg.TN//2):
            d = st + (k % ndst)*4; tt = tb + (k % 2)*8; k += 1
            c0 = acc + 4*(mt*cfg.TN + 2*tp); c1 = c0 + 4
            act4(c0, tt, CSv + 8*tp, STv + 2*mt); act4(c1, tt+4, CSv + 8*tp + 4, STv + 2*mt)
            for j in range(4): a(f'v_cvt_pk_bf16_f32 v{d+j}, v{tt+2*j}, v{tt+2*j+1}')
            a(f'v_permlane16_swap_b32 v{d}, v{d+2}')
            a(f'v_permlane16_swap_b32 v{d+1}, v{d+3}')
            if fltest:
                a(f's_mov_b32 s40, {(mt*16+8*tp)*HP.pitch}')
                a(f'buffer_store_dwordx4 v[{d}:{d+3}], v{vO}, s[12:15], s40 offen{hsc}')
            else:
                a(f's_mov_b32 s40, {mt*16*HP.pitch}')
                a(f'buffer_store_dwordx4 v[{d}:{d+3}], v{vO}, s[12:15], s40 offen offset:{tp*64}{hsc}')
    if stamp:
        a('s_waitcnt lgkmcnt(0)'); a('s_sub_u32 s60, s60, s58')
        stamp_rec(a, (52, 53, 90, 91, 54, 55, 56, 57, 64, 65, 66, 67, 68, 69, 68, 69), 0, f'L_g1end_{tag}')
    a.label(f'L_g1end_{tag}')
    a('s_endpgm')
    for blk in ool:
        for ln in blk: a(ln)
    a.label(f'L_loader_{tag}')
    a(f's_sub_u32 s35, s20, {cfg.NC}')
    srd(a, 4, 80, M*Dm*2); srd(a, 8, 82, Dm*F*2)
    Rl = Regs(5, 236)
    X = {k: Rl.alloc() for k in ('d', 'l', 'z', 'p', 'p1', 'sa', 'l16')}
    a(f's_mov_b32 s28, 0'); a('s_mov_b32 s29, 0')
    a(f's_mul_i32 s30, s35, {cfg.PA*1024}')
    a(f's_mul_i32 s31, s35, {cfg.PW*1024}'); a(f's_add_u32 s31, s31, {cfg.A_BYTES}')
    n_main = cfg.NST - (cfg.S-1)
    def after_pro(a):
        a('s_lshl_b32 s66, s2, 2'); a('s_add_u32 s66, s66, s35')
        a(f'v_lshlrev_b32 v{X["l"]}, 6, v0'); a(f'v_mov_b32 v{X["z"]}, 0')
        srd_off(a, 72, 84, WS_FLG, 0x10000)
        srd(a, 68, 88, F*Dm*2)
        srd_off(a, 48, 84, WS_Z, ZB2); srd_off(a, 52, 84, WS_CS, 2*3584*4)
        a(f'v_and_b32 v{X["sa"]}, 1, v0'); a(f'v_mul_u32_u24 v{X["sa"]}, {ZP}, v{X["sa"]}')
        a(f'v_lshrrev_b32 v{X["l16"]}, 1, v0'); a(f'v_lshl_add_u32 v{X["sa"]}, v{X["l16"]}, 4, v{X["sa"]}')
        a(f'v_lshlrev_b32 v{X["l16"]}, 4, v0')
        srd_off(a, 96, 84, WS_PF, 4096); poll3_addr(a, X['p']); a(f'v_mov_b32 v{X["p1"]}, 0')
    CSS = 52
    def post_bar(a):
        a('s_cmp_lg_u32 s35, 0'); a(f's_cbranch_scc1 L_nop2_{tag}')
        a(f's_cmp_lg_u32 s32, {n_main-2}'); a(f's_cbranch_scc1 L_nop1_{tag}')
        a(f'buffer_load_dword v{X["p1"]}, v{X["p"]}, s[96:99], 0 offen sc1')
        a.label(f'L_nop1_{tag}')
        a(f's_cmp_lg_u32 s32, {n_main-1}'); a(f's_cbranch_scc1 L_nop2_{tag}')
        poll3_check(a, X['p'], tag)
        for lw in range(4):
            a('s_lshl_b32 s40, s76, 1'); a(f's_add_u32 s40, s40, {lw >> 1}')
            a('s_lshr_b32 s41, s40, 3'); a(f's_add_u32 s41, s41, {4*(lw & 1)}'); a('s_lshl_b32 s41, s41, 6')
            a('s_lshr_b32 s42, s40, 2'); a('s_and_b32 s42, s42, 1'); a('s_lshl_b32 s42, s42, 5'); a('s_add_u32 s41, s41, s42')
            a('s_lshl_b32 s41, s41, 4'); a('s_and_b32 s40, s40, 3'); a('s_lshl_b32 s40, s40, 2'); a('s_add_u32 s41, s41, s40')
            a(f's_add_u32 s41, s41, {513*ZP}')
            a(f's_mov_b32 m0, {STAT_LDS + 256*lw}'); a('s_nop 0')
            a(f'buffer_load_dword v{X["sa"]}, s[48:51], s41 offen sc1 lds')
        for kh in range(2):
            a('s_lshl_b32 s41, s77, 10'); a(f's_add_u32 s41, s41, {kh*3584*4}')
            a(f's_mov_b32 m0, {CS_LDS + 1024*kh}'); a('s_nop 0')
            a(f'buffer_load_dwordx4 v{X["l16"]}, s[{CSS}:{CSS+3}], s41 offen sc1 lds')
        a.label(f'L_nop2_{tag}')
    def tail(a):
        a('s_lshl_b32 s40, s66, 13')
        a(f'buffer_load_dword v{X["d"]}, v{X["l"]}, s[68:71], s40 offen')
        a('s_add_u32 s40, s40, 4096')
        a(f'buffer_load_dword v{X["d"]}, v{X["l"]}, s[68:71], s40 offen')
        a('s_lshl_b32 s40, s66, 12')
        a(f'buffer_store_dword v{X["z"]}, v{X["l"]}, s[72:75], s40 offen')
        return 3
    emit_loader_loop(a, cfg, early.vA, early.vW, 4, 8, 28, 29, 30, 32, 33, 38, tag, tail, after_pro=after_pro, post_bar=post_bar, pro_done=1)
    a('s_endpgm')
    return 256

def gen_fused(a, stamp=False, hsc=' sc1', sigk=1, tsc=SC1, nocs=False, psleep=0, nosync=False, nocol=False, fltest=False):
    global PSLEEP, NOSYNC
    PSLEEP = psleep; NOSYNC = nosync
    cfg = G16(S=3)
    top(a, stamp)
    a('s_cmp_ge_u32 s2, 224'); a('s_cbranch_scc1 L_col_role')
    a('s_cmp_ge_u32 s2, 128'); a('s_cbranch_scc1 L_wp_role')
    e1 = Early(cfg)
    n1 = row_part(a, 'rf', e1)
    a('s_branch L_g1_start')
    a.label('L_wp_role')
    e2 = Early(cfg)
    n2 = wp_part(a, 'wp', e2, False, nocs)
    assert e1.vA == e2.vA and e1.vW == e2.vW
    a.label('L_g1_start')
    g1_part(a, 'g1', cfg, e1, stamp, hsc, sigk, tsc, fltest)
    a.label('L_col_role')
    n3 = wp_part(a, 'wc', None, True, nocs)
    a('v_mov_b32 v65, 1')
    a('s_cmp_lg_u32 s20, 0'); a('s_cbranch_scc1 L_colnogate')
    gate_issue(a, 64)
    a.label('L_colnogate')
    save = fft.SC; fft.SC = tsc
    tile_store_phase(a, 0, 's20', 12, 28, 8, TILE0, 'wc')
    fft.SC = save
    a('s_waitcnt vmcnt(0)'); a('s_barrier')
    a('s_cmp_lg_u32 s20, 0'); a('s_cbranch_scc1 L_colnosig')
    signal(a, 64, 'col')
    a.label('L_colnosig')
    if stamp: a('s_memrealtime s[90:91]')
    if nocol: a('s_endpgm')
    a('s_mov_b32 s18, s84'); a('s_mov_b32 s19, s85')
    a('s_sub_u32 s3, s2, 224')
    def poll(a):
        a('s_cmp_lg_u32 s20, 0'); a('s_cbranch_scc1 L_colnopoll')
        poll_all(a, 5, 8, 'col')
        a.label('L_colnopoll')
        if stamp: a('s_memrealtime s[54:55]')
    def stamp_end(a):
        if stamp: stamp_rec(a, (52, 53, 90, 91, 54, 55, 56, 57), 3, 'L_colend', ws=84)
        a.label('L_colend')
    n4, l4 = gen_col(a, 'c', 's3', 32, inited=True, poll=poll, ldsc=SC1, stamp_end=stamp_end)
    return 256, FUSED_LDS
```

```python
import sys
from asm import *
from fft import *
from roles_gemm import *
import hazard, fft
from full import wrap, KN
from g2var import g2k, finish
from fused import gen_fused
UF = dict(flags=True, unroll=True)
S3 = dict(a0first=True, maxper0=1, bat=4)
def k1(stamp, **kw):
    fft.SC = ''; fft.SCX = ''; fft.SCY = ''; fft.STAMP = False
    a = Asm(); name = 'g1col_kernel'
    a('s_cmp_ge_u32 s2, 256'); a(f's_cbranch_scc1 L_end_{name}')
    nv, l = gen_fused(a, stamp, **kw)
    a.label(f'L_end_{name}'); a('s_endpgm')
    return wrap(name, a.text(), nv, 256, 512, l)
def emit(fn, st, kw={}, gopt=UF, gkw=S3):
    ks = [k1(st, **kw), g2k(KN + '_kernel', st, gopt, **gkw)]
    open('exp/%s%s.s' % (fn, '_st' if st else ''),'w').write(finish(ks))
if __name__ == '__main__':
    for st in (False, True):
        emit('f6', st, dict(psleep=16))
        emit('f6a', st, dict(psleep=16, fltest=True))
        emit('f6b', st, dict(psleep=16, fltest=True, hsc=''))
        emit('f6c', st, dict(psleep=16, hsc=''))
```

```python
from asm import *

WS_XN = 0x0000000
WS_H  = 0x0400000
WS_Z  = 0x1200000
WS_WP = 0x1680000
WS_Y  = 0x1B00000
WS_S  = 0x2000000
WS_XCH= 0x2400000
WS_TAB= 0x2C00000
WS_FLG= 0x2C10000
WS_DBG= 0x3000000
ZP = 8448
ZBYTES = 513*ZP
TILE_BYTES = 72*528 + 8*66 + 64
MF = 'v_mfma_f32_32x32x16_bf16'

STAMP = False
SCY = ''
SCX = ''
SC = ''
def st_begin(a):
    if STAMP: a('s_memrealtime s[90:91]')
def st_end(a, slot, tag, ws=18, wave='s20'):
    if not STAMP: return
    a('s_waitcnt vmcnt(0) lgkmcnt(0)')
    a('s_memrealtime s[92:93]'); a('s_waitcnt lgkmcnt(0)')
    a(f's_cmp_lg_u32 {wave}, 0'); a(f's_cbranch_scc1 L_stx_{tag}')
    srd_off(a, 12, ws, WS_DBG + slot*0x4000, 0x4000)
    a('v_mov_b32 v10, s90'); a('v_mov_b32 v11, s91'); a('v_mov_b32 v12, s92'); a('v_mov_b32 v13, s93')
    a('v_mov_b32 v14, s92'); a('v_mov_b32 v15, s93'); a('v_mov_b32 v16, 0'); a('v_mov_b32 v17, 0')
    a('s_lshl_b32 s40, s2, 5'); a('v_mov_b32 v20, s40')
    a('v_cmp_eq_u32 vcc, 0, v0'); a('s_and_saveexec_b64 s[62:63], vcc')
    a('buffer_store_dwordx4 v[10:13], v20, s[12:15], 0 offen')
    a('buffer_store_dwordx4 v[14:17], v20, s[12:15], 0 offen offset:16')
    a.label(f'L_stx_{tag}')

def allreduce(a, v, t):
    for r in (8, 4, 2, 1):
        a(f'v_add_f32_dpp v{v}, v{v}, v{v} row_ror:{r} row_mask:0xf bank_mask:0xf')
    a(f'v_mov_b32 v{t}, v{v}'); a(f'v_permlane16_swap_b32 v{v}, v{t}'); a(f'v_add_f32 v{v}, v{v}, v{t}')
    a(f'v_mov_b32 v{t}, v{v}'); a(f'v_permlane32_swap_b32 v{v}, v{t}'); a(f'v_add_f32 v{v}, v{v}, v{t}')

def allreduce2(a, v0, t0, v1, t1):
    for r in (8, 4, 2, 1):
        a(f'v_add_f32_dpp v{v0}, v{v0}, v{v0} row_ror:{r} row_mask:0xf bank_mask:0xf')
        a(f'v_add_f32_dpp v{v1}, v{v1}, v{v1} row_ror:{r} row_mask:0xf bank_mask:0xf')
    for op in ('v_permlane16_swap_b32', 'v_permlane32_swap_b32'):
        a(f'v_mov_b32 v{t0}, v{v0}'); a(f'v_mov_b32 v{t1}, v{v1}')
        a(f'{op} v{v0}, v{t0}'); a(f'{op} v{v1}, v{t1}')
        a(f'v_add_f32 v{v0}, v{v0}, v{t0}'); a(f'v_add_f32 v{v1}, v{v1}, v{t1}')

def f32(x):
    import struct
    return hex(struct.unpack('<I', struct.pack('<f', x))[0])

def emit_cs(a, dc, ds, fE, eadd, fF, phase_reg, t):
    if eadd: a(f'v_add_f32 v{t}, {f32(float(eadd))}, v{fE}'); src = t
    else: src = fE
    if phase_reg is None: a(f'v_mul_f32 v{t}, v{src}, v{fF}')
    else: a(f'v_fma_f32 v{t}, v{src}, v{fF}, {phase_reg}')
    a(f'v_fract_f32 v{t}, v{t}')
    if ds is not None: a(f'v_sin_f32 v{ds}, v{t}')
    if dc is not None: a(f'v_cos_f32 v{dc}, v{t}')

def emit_img(a, dst, fE, e0, fF, phase, t):
    for jj in range(4):
        emit_cs(a, t+1, t+2, fE, e0+jj, fF, phase, t)
        a('s_nop 0')
        a(f'v_cvt_pk_bf16_f32 v{dst+jj}, v{t+1}, v{t+2}')

def cmul_pack(a, dst, re, im, cs, sn, t, n=16):
    for r in range(0, n, 2):
        u = t + 4*((r >> 1) & 1)
        a(f'v_pk_mul_f32 v[{u}:{u+1}], v[{re+r}:{re+r+1}], v[{cs+r}:{cs+r+1}]')
        a(f'v_pk_mul_f32 v[{u+2}:{u+3}], v[{im+r}:{im+r+1}], v[{cs+r}:{cs+r+1}]')
        a(f'v_pk_fma_f32 v[{u}:{u+1}], v[{im+r}:{im+r+1}], v[{sn+r}:{sn+r+1}], v[{u}:{u+1}]')
        a(f'v_pk_fma_f32 v[{u+2}:{u+3}], v[{re+r}:{re+r+1}], v[{sn+r}:{sn+r+1}], v[{u+2}:{u+3}] neg_lo:[1,0,0] neg_hi:[1,0,0]')
        a(f'v_cvt_pk_bf16_f32 v{dst+r}, v{u}, v{u+2}')
        a(f'v_cvt_pk_bf16_f32 v{dst+r+1}, v{u+1}, v{u+3}')

def tile_store_phase(a, vlane, s_w, srd_out, s_pos0, t, tile0, tag):
    vA, vG = t, t+1
    d = t+4
    a(f'v_lshrrev_b32 v{t+2}, 2, v{vlane}'); a(f'v_and_b32 v{t+3}, 3, v{vlane}')
    a(f'v_mul_u32_u24 v{vA}, 72, v{t+2}')
    a(f'v_lshrrev_b32 v{vG}, 3, v{t+2}'); a(f'v_lshl_add_u32 v{vA}, v{vG}, 3, v{vA}')
    a(f'v_lshl_add_u32 v{vA}, v{t+3}, 4, v{vA}')
    a(f's_mul_i32 s40, {s_w}, 1168'); a(f's_add_u32 s40, s40, {tile0}')
    a(f'v_add_u32 v{vA}, s40, v{vA}')
    a(f's_lshl_b32 s40, {s_w}, 4'); a(f'v_add_u32 v{vG}, s40, v{t+2}')
    a(f's_mov_b32 s41, {ZP}'); a(f'v_mul_lo_u32 v{vG}, v{vG}, s41'); a(f'v_lshl_add_u32 v{vG}, v{t+3}, 4, v{vG}')
    for it in range(4):
        a(f'ds_read_b64 v[{d+4*it}:{d+4*it+1}], v{vA} offset:{9344*it}')
        a(f'ds_read_b64 v[{d+4*it+2}:{d+4*it+3}], v{vA} offset:{9344*it+8}')
    a(f's_cmp_lg_u32 {s_w}, 0'); a(f's_cbranch_scc1 L_no5_{tag}')
    a(f'ds_read_b64 v[{d+16}:{d+17}], v{vA} offset:{9344*4}')
    a(f'ds_read_b64 v[{d+18}:{d+19}], v{vA} offset:{9344*4+8}')
    a(f's_add_u32 s41, s{s_pos0}, {4*128*ZP}')
    a('s_waitcnt lgkmcnt(0)')
    a(f'buffer_store_dwordx4 v[{d+16}:{d+19}], v{vG}, s[{srd_out}:{srd_out+3}], s41 offen{SC}')
    a.label(f'L_no5_{tag}')
    for it in range(4):
        a(f's_add_u32 s41, s{s_pos0}, {it*128*ZP}')
        a(f's_waitcnt lgkmcnt({2*(3-it)})')
        a(f'buffer_store_dwordx4 v[{d+4*it}:{d+4*it+3}], v{vG}, s[{srd_out}:{srd_out+3}], s41 offen{SC}')

def gen_row_fwd(a, tag, wg='s2'):
    ROWB = (TILE_BYTES + 255)//256*256
    st_begin(a)
    a('s_load_dwordx2 s[16:17], s[0:1], 0')
    a('s_load_dwordx2 s[18:19], s[0:1], 64')
    a('v_lshrrev_b32 v1, 6, v0'); a('v_and_b32 v0, 63, v0'); a('v_readfirstlane_b32 s20, v1')
    a(f's_and_b32 s21, {wg}, 7'); a(f's_lshr_b32 s22, {wg}, 3')
    a('s_lshr_b32 s23, s22, 1')
    a('s_and_b32 s24, s22, 1'); a('s_lshl_b32 s25, s21, 1'); a('s_add_u32 s24, s24, s25')
    a('s_lshl_b32 s25, s23, 2'); a('s_and_b32 s26, s20, 3'); a('s_add_u32 s25, s25, s26'); a('s_lshl_b32 s25, s25, 6')
    a('s_lshl_b32 s26, s24, 2'); a('s_add_u32 s25, s25, s26'); a('s_lshr_b32 s26, s20, 2'); a('s_add_u32 s25, s25, s26')
    a('s_lshl_b32 s26, s25, 11'); a('s_add_u32 s27, s26, 4096')
    a('s_lshr_b32 s28, s24, 3'); a('s_lshl_b32 s28, s28, 2'); a('s_lshr_b32 s29, s23, 1'); a('s_add_u32 s28, s28, s29'); a('s_lshl_b32 s28, s28, 6')
    a('s_and_b32 s29, s23, 1'); a('s_lshl_b32 s29, s29, 5'); a('s_add_u32 s28, s28, s29')
    a('s_and_b32 s29, s24, 7'); a('s_lshl_b32 s29, s29, 2'); a('s_add_u32 s28, s28, s29'); a('s_lshl_b32 s28, s28, 4')
    a('v_lshlrev_b32 v1, 5, v0')
    a('s_waitcnt lgkmcnt(0)')
    srd(a, 4, 16, 2048*2048)
    R = Regs(8, 256)
    X = [R.alloc(8, 4), R.alloc(8, 4)]
    a(f'buffer_load_dwordx4 v[{X[0]}:{X[0]+3}], v1, s[4:7], s26 offen')
    a(f'buffer_load_dwordx4 v[{X[0]+4}:{X[0]+7}], v1, s[4:7], s26 offen offset:16')
    a(f'buffer_load_dwordx4 v[{X[1]}:{X[1]+3}], v1, s[4:7], s27 offen')
    a(f'buffer_load_dwordx4 v[{X[1]+4}:{X[1]+7}], v1, s[4:7], s27 offen offset:16')
    srd_off(a, 8, 18, WS_XN, 2048*2048)
    srd_off(a, 12, 18, WS_Z, ZBYTES)
    B1 = R.alloc(16, 4); CS = R.alloc(16, 2); SN = R.alloc(16, 2); A2 = R.alloc(16, 4)
    T = R.alloc(8, 4)
    fC32, fC1k, fH, fD, fPh = 2, 3, 4, 5, 6
    a('v_and_b32 v7, 31, v0'); a('v_cvt_f32_u32 v7, v7')
    a(f'v_mul_f32 v{fC32}, {f32(1/32)}, v7'); a(f'v_mul_f32 v{fC1k}, {f32(1/1024)}, v7')
    a(f'v_lshrrev_b32 v{fH}, 5, v0'); a(f'v_cvt_f32_u32 v{fH}, v{fH}')
    a(f'v_mul_f32 v7, {f32(8.0)}, v{fH}')
    for q in range(2):
        for jj in range(4):
            for e in range(2):
                aa = 16*q + 2*jj + e
                a(f'v_add_f32 v{T}, {f32(float(aa))}, v7')
                a(f'v_mul_f32 v{T}, v{T}, v{fC32}'); a(f'v_fract_f32 v{T}, v{T}')
                a(f'v_cos_f32 v{T+1+e}, v{T}'); a(f'v_sin_f32 v{T+3+e}, v{T}')
            a('s_nop 0')
            a(f'v_cvt_pk_bf16_f32 v{B1+4*q+jj}, v{T+1}, v{T+2}')
            a(f'v_cvt_pk_bf16_f32 v{B1+8+4*q+jj}, -v{T+3}, -v{T+4}')
    a(f'v_mul_f32 v7, {f32(4.0)}, v{fH}')
    for r in range(16):
        emit_cs(a, CS+r, SN+r, 7, (r & 3) + 8*(r >> 2), fC1k, None, T)
    a(f'v_and_b32 v{fD}, 31, v0'); a(f'v_lshrrev_b32 v{fD}, 1, v{fD}'); a(f'v_cvt_f32_u32 v{fD}, v{fD}'); a(f'v_mul_f32 v{fD}, {f32(1/32)}, v{fD}')
    a(f'v_and_b32 v{fPh}, 1, v0'); a(f'v_cvt_f32_u32 v{fPh}, v{fPh}'); a(f'v_mul_f32 v{fPh}, {f32(0.25)}, v{fPh}')
    for q in range(4): emit_img(a, A2+4*q, 7, 8*q, fD, f'v{fPh}', T)
    vRB = 2
    vTR, vTW = 3, 4
    a(f's_lshl_b32 s30, s20, 12'); a(f's_add_u32 s30, s30, {ROWB}')
    a(f'v_add_u32 v{vRB}, s30, v1')
    a(f'v_lshrrev_b32 v5, 5, v0'); a(f'v_lshlrev_b32 v5, 3, v5'); a(f'v_lshrrev_b32 v6, 2, v0'); a(f'v_and_b32 v6, 3, v6'); a('v_add_u32 v5, v5, v6')
    a('v_lshlrev_b32 v5, 6, v5'); a('v_lshrrev_b32 v6, 4, v0'); a('v_and_b32 v6, 1, v6'); a('v_lshl_add_u32 v5, v6, 5, v5')
    a('v_and_b32 v6, 3, v0'); a('v_lshl_add_u32 v5, v6, 3, v5'); a(f'v_add_u32 v{vTR}, s30, v5')
    a('v_and_b32 v5, 31, v0'); a('v_lshrrev_b32 v6, 5, v0'); a('v_lshl_add_u32 v5, v6, 6, v5')
    a('v_lshrrev_b32 v6, 3, v5'); a('v_mul_u32_u24 v5, 72, v5'); a('v_lshl_add_u32 v5, v6, 3, v5')
    a('s_lshl_b32 s31, s20, 2'); a(f'v_add_u32 v{vTW}, s31, v5')
    XF = [R.alloc(16, 2), R.alloc(16, 2)]
    S = [R.alloc(4, 2), R.alloc(4, 2)]
    a('s_waitcnt vmcnt(0)')
    for z in range(2):
        for j in range(8):
            a(f'v_lshlrev_b32 v{XF[z]+2*j}, 16, v{X[z]+j}')
            a(f'v_and_b32 v{XF[z]+2*j+1}, 0xffff0000, v{X[z]+j}')
    for z in range(2):
        a(f'v_pk_add_f32 v[{S[z]}:{S[z]+1}], v[{XF[z]}:{XF[z]+1}], v[{XF[z]+2}:{XF[z]+3}]')
    for j in range(2, 8):
        for z in range(2):
            a(f'v_pk_add_f32 v[{S[z]}:{S[z]+1}], v[{S[z]}:{S[z]+1}], v[{XF[z]+2*j}:{XF[z]+2*j+1}]')
    for z in range(2): a(f'v_add_f32 v{S[z]}, v{S[z]}, v{S[z]+1}')
    allreduce2(a, S[0], S[0]+2, S[1], S[1]+2)
    M = [R.alloc(2, 2), R.alloc(2, 2)]
    for z in range(2):
        a(f'v_mul_f32 v{M[z]}, {f32(-1/1024)}, v{S[z]}'); a(f'v_mov_b32 v{M[z]+1}, v{M[z]}')
    for z in range(2):
        for j in range(8):
            a(f'v_pk_add_f32 v[{T+2*z}:{T+2*z+1}], v[{XF[z]+2*j}:{XF[z]+2*j+1}], v[{M[z]}:{M[z]+1}]')
            if j == 0: a(f'v_pk_mul_f32 v[{S[z]}:{S[z]+1}], v[{T+2*z}:{T+2*z+1}], v[{T+2*z}:{T+2*z+1}]')
            else: a(f'v_pk_fma_f32 v[{S[z]}:{S[z]+1}], v[{T+2*z}:{T+2*z+1}], v[{T+2*z}:{T+2*z+1}], v[{S[z]}:{S[z]+1}]')
    for z in range(2): a(f'v_add_f32 v{S[z]}, v{S[z]}, v{S[z]+1}')
    allreduce2(a, S[0], S[0]+2, S[1], S[1]+2)
    for z in range(2):
        s = S[z]
        a(f'v_mul_f32 v{s}, {f32(1/1024)}, v{s}')
        a(f'v_cvt_pk_bf16_f32 v{s}, v{s}, v{s}'); a(f'v_lshlrev_b32 v{s}, 16, v{s}')
        a(f'v_add_f32 v{s}, {f32(1e-5)}, v{s}')
        a(f'v_cvt_pk_bf16_f32 v{s}, v{s}, v{s}'); a(f'v_lshlrev_b32 v{s}, 16, v{s}')
        a(f'v_sqrt_f32 v{s}, v{s}'); a('s_nop 0')
        a(f'v_cvt_pk_bf16_f32 v{s}, v{s}, v{s}'); a(f'v_lshlrev_b32 v{s}, 16, v{s}')
        a(f'v_rcp_f32 v{s}, v{s}'); a('s_nop 0'); a(f'v_mov_b32 v{s+1}, v{s}')
        m = M[z]
        a(f'v_cvt_pk_bf16_f32 v{m}, v{m}, v{m}'); a(f'v_lshlrev_b32 v{m}, 16, v{m}'); a(f'v_mov_b32 v{m+1}, v{m}')
    for z in range(2):
        for j in range(8):
            u = T + 2*((j & 1) + 2*z)
            a(f'v_pk_add_f32 v[{u}:{u+1}], v[{XF[z]+2*j}:{XF[z]+2*j+1}], v[{M[z]}:{M[z]+1}]')
            a(f'v_pk_mul_f32 v[{u}:{u+1}], v[{u}:{u+1}], v[{S[z]}:{S[z]+1}]')
            a(f'v_cvt_pk_bf16_f32 v{X[z]+j}, v{u}, v{u+1}')
    for z in range(2):
        so = 's26' if z == 0 else 's27'
        a(f'ds_write_b128 v{vRB}, v[{X[z]}:{X[z]+3}] offset:{2048*z}')
        a(f'ds_write_b128 v{vRB}, v[{X[z]+4}:{X[z]+7}] offset:{2048*z+16}')
        a(f'buffer_store_dwordx4 v[{X[z]}:{X[z]+3}], v1, s[8:11], {so} offen{SCX}')
        a(f'buffer_store_dwordx4 v[{X[z]+4}:{X[z]+7}], v1, s[8:11], {so} offen offset:16{SCX}')
    AD = [R.alloc(8, 4), R.alloc(8, 4)]
    D1 = [[R.alloc(16, 4), R.alloc(16, 4)], [R.alloc(16, 4), R.alloc(16, 4)]]
    a('s_waitcnt lgkmcnt(0)')
    for z in range(2):
        for q in range(2):
            for jj in range(2):
                a(f'ds_read_b64_tr_b16 v[{AD[z]+4*q+2*jj}:{AD[z]+4*q+2*jj+1}], v{vTR} offset:{2048*z + 1024*q + 256*jj}')
    for z in range(2):
        a(f's_waitcnt lgkmcnt({4*(1-z)})')
        for sg in range(2):
            d = D1[z][sg]
            a(f'{MF} v[{d}:{d+15}], v[{AD[z]}:{AD[z]+3}], v[{B1+8*sg}:{B1+8*sg+3}], 0')
            a(f'{MF} v[{d}:{d+15}], v[{AD[z]+4}:{AD[z]+7}], v[{B1+8*sg+4}:{B1+8*sg+7}], v[{d}:{d+15}]')
    P = XF
    ALT = S
    for z in range(2):
        d = D1[z][0]
        a(f'v_pk_add_f32 v[{ALT[z]}:{ALT[z]+1}], v[{d}:{d+1}], v[{d+2}:{d+3}]')
        for j in range(2, 8): a(f'v_pk_add_f32 v[{ALT[z]}:{ALT[z]+1}], v[{ALT[z]}:{ALT[z]+1}], v[{d+2*j}:{d+2*j+1}]')
        a(f'v_sub_f32 v{ALT[z]}, v{ALT[z]}, v{ALT[z]+1}')
        a(f'v_mov_b32 v{ALT[z]+1}, v{ALT[z]}'); a(f'v_permlane32_swap_b32 v{ALT[z]}, v{ALT[z]+1}'); a(f'v_add_f32 v{ALT[z]}, v{ALT[z]}, v{ALT[z]+1}')
        a(f'v_mov_b32 v{ALT[z]+1}, 0'); a(f'v_cvt_pk_bf16_f32 v{ALT[z]}, v{ALT[z]}, v{ALT[z]+1}')
        cmul_pack(a, P[z], D1[z][0], D1[z][1], CS, SN, T)
        d2 = D1[z][0]
        for q in range(4):
            a(f'{MF} v[{d2}:{d2+15}], v[{A2+4*q}:{A2+4*q+3}], v[{P[z]+4*q}:{P[z]+4*q+3}], ' + ('0' if q == 0 else f'v[{d2}:{d2+15}]'))
    for z in range(2):
        d2 = D1[z][0]; o = D1[z][1]
        for u in range(8):
            a(f'v_cvt_pk_bf16_f32 v{o+u}, v{d2+2*u}, v{d2+2*u+1}')
            du = 32*(u & 1) + 128*(u >> 1)
            a(f'ds_write_b32 v{vTW}, v{o+u} offset:{73*du + 32*z}')
    a('s_mov_b64 exec, 1')
    a(f'v_mov_b32 v5, s31')
    for z in range(2): a(f'ds_write_b32 v5, v{ALT[z]} offset:{72*512 + 8*64 + 32*z}')
    a('s_mov_b64 exec, -1')
    a('s_waitcnt lgkmcnt(0)'); a('s_barrier')
    tile_store_phase(a, 0, 's20', 12, 28, D1[0][0], 0, tag)
    st_end(a, 2, tag)
    a('s_endpgm')
    return R.p, ROWB + 8*4096

def gen_rinv_tables(a, R, ws_pair, srd_base, sc=''):
    G = R.alloc(16, 4); CS = R.alloc(16, 2); SN = R.alloc(16, 2); H = R.alloc(16, 4); T = R.alloc(8, 4)
    fC32 = R.alloc(); fC1k = R.alloc(); fH4 = R.alloc(); fPh = R.alloc(); vA = R.alloc()
    assert CS == G+16 and SN == CS+16 and H == SN+16
    a(f'v_and_b32 v{T}, 31, v0')
    a(f'v_lshrrev_b32 v{T+1}, 2, v{T}'); a(f'v_and_b32 v{T+1}, 1, v{T+1}'); a(f'v_lshlrev_b32 v{T+1}, 4, v{T+1}')
    a(f'v_lshrrev_b32 v{T+2}, 3, v{T}'); a(f'v_lshl_add_u32 v{T+1}, v{T+2}, 2, v{T+1}')
    a(f'v_and_b32 v{T+2}, 3, v{T}'); a(f'v_add_u32 v{T+1}, v{T+1}, v{T+2}'); a(f'v_cvt_f32_u32 v{T+1}, v{T+1}')
    a(f'v_mul_f32 v{fC32}, {f32(1/32)}, v{T+1}'); a(f'v_mul_f32 v{fC1k}, {f32(1/1024)}, v{T+1}')
    a(f'v_lshrrev_b32 v{fH4}, 5, v0'); a(f'v_cvt_f32_u32 v{fH4}, v{fH4}'); a(f'v_mul_f32 v{fH4}, {f32(4.0)}, v{fH4}')
    for sg in range(2):
        a(f'v_mov_b32 v{fPh}, {f32(0.25*sg)}')
        for q in range(2): emit_img(a, G+8*sg+4*q, fH4, 8*q, fC32, f'v{fPh}', T)
    for r in range(16): emit_cs(a, CS+r, SN+r, fH4, (r & 3) + 8*(r >> 2), fC1k, None, T)
    a(f'v_and_b32 v{T}, 31, v0'); a(f'v_cvt_f32_u32 v{T}, v{T}'); a(f'v_mul_f32 v{fC32}, {f32(1/32)}, v{T}')
    for q in range(4): emit_img(a, H+4*q, fH4, 8*q, fC32, None, T)
    srd_off(a, srd_base, ws_pair, WS_TAB, 16384)
    a(f'v_lshlrev_b32 v{vA}, 4, v0')
    a('s_mov_b32 s40, 0')
    for c in range(16):
        if c and c % 4 == 0: a('s_add_u32 s40, s40, 4096')
        a(f'buffer_store_dwordx4 v[{G+4*c}:{G+4*c+3}], v{vA}, s[{srd_base}:{srd_base+3}], s40 offen offset:{1024*(c & 3)}{sc}')
    return 16

def gen_wprep(a, tag, wg='s2', prefetch_w1=True, tables=False):
    st_begin(a)
    a('s_load_dwordx4 s[16:19], s[0:1], 8')
    a('s_load_dwordx2 s[32:33], s[0:1], 32')
    a('s_load_dwordx2 s[34:35], s[0:1], 64')
    a('v_lshrrev_b32 v1, 6, v0'); a('v_mov_b32 v2, v0'); a('v_and_b32 v0, 63, v0'); a('v_readfirstlane_b32 s20, v1')
    a(f's_and_b32 s21, {wg}, 7'); a(f's_lshr_b32 s22, {wg}, 3'); a('s_and_b32 s22, s22, 15')
    a('s_and_b32 s24, s21, 3'); a('s_lshl_b32 s24, s24, 1'); a('s_and_b32 s25, s22, 1'); a('s_add_u32 s24, s24, s25')
    a('s_lshr_b32 s23, s21, 2'); a('s_lshl_b32 s23, s23, 3'); a('s_lshr_b32 s25, s22, 1'); a('s_add_u32 s23, s23, s25')
    a('s_lshl_b32 s25, s23, 2'); a('s_and_b32 s26, s20, 3'); a('s_add_u32 s25, s25, s26'); a('s_lshl_b32 s25, s25, 5')
    a('s_lshl_b32 s26, s24, 2'); a('s_add_u32 s25, s25, s26'); a('s_lshr_b32 s26, s20, 2'); a('s_add_u32 s25, s25, s26')
    a('s_mul_i32 s26, s25, 1026'); a('s_add_u32 s27, s26, 2052')
    a('s_lshr_b32 s28, s23, 1'); a('s_lshl_b32 s28, s28, 6'); a('s_and_b32 s29, s23, 1'); a('s_lshl_b32 s29, s29, 5'); a('s_add_u32 s28, s28, s29')
    a('s_lshl_b32 s29, s24, 2'); a('s_add_u32 s28, s28, s29'); a('s_lshl_b32 s28, s28, 4')
    a('v_lshlrev_b32 v1, 4, v0'); a('v_mov_b32 v3, 1024')
    a('s_waitcnt lgkmcnt(0)')
    srd(a, 4, 16, 2048*1026); srd(a, 8, 18, 2048*1026)
    R = Regs(8, 256)
    WR = [R.alloc(4, 4), R.alloc(4, 4)]; WI = [R.alloc(4, 4), R.alloc(4, 4)]; NY = [R.alloc(2), R.alloc(2)]
    for z, so in enumerate(('s26', 's27')):
        a(f'buffer_load_dwordx4 v[{WR[z]}:{WR[z]+3}], v1, s[4:7], {so} offen')
        a(f'buffer_load_dwordx4 v[{WI[z]}:{WI[z]+3}], v1, s[8:11], {so} offen')
        a(f'buffer_load_ushort v{NY[z]}, v3, s[4:7], {so} offen')
        a(f'buffer_load_ushort v{NY[z]+1}, v3, s[8:11], {so} offen')
    srd_off(a, 12, 34, WS_WP, ZBYTES)
    npf = 0
    if prefetch_w1:
        srd(a, 36, 32, 1024*7168)
        PF = R.alloc(28, 4)
        a(f's_and_b32 s40, {wg}, 127'); a('s_mul_i32 s40, s40, 57344'); a('v_lshlrev_b32 v2, 4, v2')
        for i in range(7):
            a(f'buffer_load_dwordx4 v[{PF+4*i}:{PF+4*i+3}], v2, s[36:39], s40 offen')
            a('s_add_u32 s40, s40, 8192')
        npf = 7
    O = R.alloc(16, 4)
    a('v_mul_u32_u24 v4, 584, v0'); a('s_lshl_b32 s31, s20, 2'); a('v_add_u32 v4, s31, v4')
    a('s_mov_b32 s29, 0x05040100'); a('s_mov_b32 s30, 0x07060302')
    if tables:
        a(f's_and_b32 s40, {wg}, 127'); a('s_or_b32 s40, s40, s20'); a('s_cmp_lg_u32 s40, 0'); a(f's_cbranch_scc1 L_notab_{tag}')
        gen_rinv_tables(a, R, 34, 44)
        a('s_waitcnt vmcnt(0)')
        a.label(f'L_notab_{tag}')
    a(f's_waitcnt vmcnt({npf})')
    for z in range(2):
        for j in range(4):
            a(f'v_perm_b32 v{O+8*z+2*j}, v{WI[z]+j}, v{WR[z]+j}, s29')
            a(f'v_perm_b32 v{O+8*z+2*j+1}, v{WI[z]+j}, v{WR[z]+j}, s30')
        for e in range(8):
            a(f'ds_write_b32 v4, v{O+8*z+e} offset:{72*e + 32*z}')
    for z in range(2): a(f'v_lshl_or_b32 v{NY[z]}, v{NY[z]+1}, 16, v{NY[z]}')
    a('s_mov_b64 exec, 1')
    a('v_mov_b32 v5, s31')
    for z in range(2): a(f'ds_write_b32 v5, v{NY[z]} offset:{72*512 + 8*64 + 32*z}')
    a('s_mov_b64 exec, -1')
    a('s_waitcnt lgkmcnt(0)'); a('s_barrier')
    t = R.alloc(24, 4)
    tile_store_phase(a, 0, 's20', 12, 28, t, 0, tag)
    st_end(a, 2, tag, ws=34)
    a('s_endpgm')
    return R.p, TILE_BYTES


COL_F32 = 0
COL_F64 = 8192
COL_TWB = 40960
COL_TWF = 0
COL_TWI = 16384
COL_LDS = COL_TWB + 32768

def gen_col(a, tag, s_idx, nwg=32, extra_prefetch=None, inited=False, poll=None, ldsc='', stamp_end=None, end_branch=None):
    NWV = 8*nwg
    if not inited:
        st_begin(a)
        a('s_load_dwordx2 s[18:19], s[0:1], 64')
        a('v_lshrrev_b32 v1, 6, v0'); a('v_and_b32 v0, 63, v0'); a('v_readfirstlane_b32 s20, v1')
    a(f's_lshl_b32 s21, {s_idx}, 3'); a('s_add_u32 s21, s21, s20')
    a('v_lshlrev_b32 v1, 4, v0')
    a('s_waitcnt lgkmcnt(0)')
    srd_off(a, 4, 18, WS_Z, ZBYTES); srd_off(a, 8, 18, WS_WP, ZBYTES); srd_off(a, 12, 18, WS_Y, ZBYTES)
    R = Regs(8, 256)
    ZA = R.alloc(32, 4); WC = R.alloc(32, 4)
    def load_col(dst, srd_, s_col):
        a(f's_mul_i32 s40, {s_col}, {ZP}')
        for g in range(8):
            if g == 4: a('s_add_u32 s40, s40, 4096')
            a(f'buffer_load_dwordx4 v[{dst+4*g}:{dst+4*g+3}], v1, s[{srd_}:{srd_+3}], s40 offen offset:{1024*(g & 3)}{ldsc}')
    if not poll:
        load_col(ZA, 4, 's21'); load_col(WC, 8, 's21')
    F32 = R.alloc(32, 4)
    T = R.alloc(16, 4); TWS = R.alloc(8, 4); FB0 = R.alloc(16, 4)
    fF, fH4, fPh = 2, 3, 4
    a('v_and_b32 v5, 31, v0'); a('v_cvt_f32_u32 v5, v5')
    a(f'v_lshrrev_b32 v{fH4}, 5, v0'); a(f'v_cvt_f32_u32 v{fH4}, v{fH4}'); a(f'v_mul_f32 v{fH4}, {f32(4.0)}, v{fH4}')
    a('s_and_b32 s22, s20, 1'); a('s_lshr_b32 s23, s20, 1'); a('s_and_b32 s23, s23, 1'); a('s_lshr_b32 s24, s20, 2')
    a('s_lshl_b32 s25, s23, 5'); a('v_cvt_f32_u32 v6, s25'); a('v_add_f32 v6, v6, v5'); a(f'v_mul_f32 v{fF}, {f32(1/64)}, v6')
    a('v_cvt_f32_u32 v6, s22'); a(f'v_mul_f32 v{fPh}, {f32(0.25)}, v6')
    a('s_lshl_b32 s25, s24, 5'); a('v_cvt_f32_u32 v6, s25'); a(f'v_add_f32 v6, v6, v{fH4}')
    a('s_lshl_b32 s25, s22, 1'); a('s_add_u32 s25, s25, s23'); a('s_lshl_b32 s25, s25, 3'); a('s_lshl_b32 s26, s24, 2'); a('s_add_u32 s25, s25, s26'); a('s_lshl_b32 s25, s25, 10')
    a('v_add_u32 v7, s25, v1')
    for q in range(4):
        emit_img(a, T+4+4*(q & 1), 6, 8*q, fF, f'v{fPh}', T)
        a(f'ds_write_b128 v7, v[{T+4+4*(q & 1)}:{T+7+4*(q & 1)}] offset:{COL_F64 + 1024*q}')
    a(f'v_mul_f32 v{fF}, {f32(1/32)}, v5')
    a('s_lshr_b32 s25, s20, 1'); a('s_lshl_b32 s26, s25, 3'); a('v_cvt_f32_u32 v6, s26'); a(f'v_add_f32 v6, v6, v{fH4}')
    a('s_lshl_b32 s26, s22, 2'); a('s_add_u32 s26, s26, s25'); a('s_lshl_b32 s26, s26, 10'); a('v_add_u32 v7, s26, v1')
    emit_img(a, T+4, 6, 0, fF, f'v{fPh}', T)
    a(f'ds_write_b128 v7, v[{T+4}:{T+7}] offset:{COL_F32}')
    a('s_and_b32 s25, s20, 3'); a('s_lshl_b32 s26, s25, 3'); a('v_cvt_f32_u32 v6, s26'); a(f'v_add_f32 v6, v6, v{fH4}')
    a('s_lshr_b32 s27, s20, 2'); a('s_lshl_b32 s28, s27, 5'); a('v_cvt_f32_u32 v7, s28')
    a('s_lshl_b32 s28, s27, 3'); a('s_lshl_b32 s29, s25, 1'); a('s_add_u32 s28, s28, s29'); a('s_lshl_b32 s28, s28, 10'); a(f's_add_u32 s28, s28, {COL_TWB}'); a('v_add_u32 v2, s28, v1')
    a(f'v_add_f32 v4, v6, v7'); a(f'v_mul_f32 v{T+15}, {f32(1/2048)}, v5')
    for pr in range(2):
        for e in range(2):
            emit_cs(a, T+4+e, T+6+e, 4, 2*pr+e, T+15, None, T)
        a('s_nop 0')
        a(f'ds_write_b128 v2, v[{T+4}:{T+7}] offset:{COL_TWF + 1024*pr}')
        a('s_nop 1')
    a(f'v_add_f32 v4, v5, v7'); a(f'v_mul_f32 v{T+15}, {f32(1/2048)}, v4')
    for pr in range(2):
        for e in range(2):
            emit_cs(a, T+8+e, T+10+e, 6, 2*pr+e, T+15, None, T)
        a('s_nop 0')
        for e in range(4): a(f'v_mul_f32 v{T+8+e}, {f32(2.0**-20)}, v{T+8+e}')
        a(f'ds_write_b128 v2, v[{T+8}:{T+11}] offset:{COL_TWI + 1024*pr}')
        a('s_nop 1')
    a(f'v_add_u32 v2, {COL_TWB}, v1')
    if poll: poll(a)
    a('s_waitcnt lgkmcnt(0)'); a('s_barrier')
    if poll:
        load_col(ZA, 4, 's21'); load_col(WC, 8, 's21')
    for i in range(8): a(f'ds_read_b128 v[{F32+4*i}:{F32+4*i+3}], v1 offset:{COL_F32 + 1024*i}')
    D = [[R.alloc(16, 4), R.alloc(16, 4)], [R.alloc(16, 4), R.alloc(16, 4)]]
    P = R.alloc(32, 4)
    NTW = 4
    def twiddle(dst, base):
        seq = [(blk, pr) for blk in range(2) for pr in range(8)]
        slot = lambda n: T + 8 + 4*(n % NTW)
        for n in range(NTW-1): a(f'ds_read_b128 v[{slot(n)}:{slot(n)+3}], v2 offset:{base + 1024*n}')
        for n, (blk, pr) in enumerate(seq):
            cur = slot(n)
            if n+NTW-1 < len(seq):
                nx = slot(n+NTW-1)
                a(f'ds_read_b128 v[{nx}:{nx+3}], v2 offset:{base + 1024*(n+NTW-1)}')
            a(f's_waitcnt lgkmcnt({min(NTW-1, len(seq)-1-n)})')
            r = 2*pr; re = D[0][blk]+r; im = D[1][blk]+r; u = T + 4*(n & 1)
            a(f'v_pk_mul_f32 v[{u}:{u+1}], v[{re}:{re+1}], v[{cur}:{cur+1}]')
            a(f'v_pk_mul_f32 v[{u+2}:{u+3}], v[{im}:{im+1}], v[{cur}:{cur+1}]')
            a(f'v_pk_fma_f32 v[{u}:{u+1}], v[{im}:{im+1}], v[{cur+2}:{cur+3}], v[{u}:{u+1}]')
            a(f'v_pk_fma_f32 v[{u+2}:{u+3}], v[{re}:{re+1}], v[{cur+2}:{cur+3}], v[{u+2}:{u+3}] neg_lo:[1,0,0] neg_hi:[1,0,0]')
            a(f'v_cvt_pk_bf16_f32 v{dst+16*blk+r}, v{u}, v{u+2}')
            a(f'v_cvt_pk_bf16_f32 v{dst+16*blk+r+1}, v{u+1}, v{u+3}')
    NFB = 8
    def f64_stage(data, data_is_A):
        seq = [(sg, blk, q) for blk in range(2) for sg in range(2) for q in range(8)]
        def img(n): sg, blk, q = seq[n]; return COL_F64 + ((sg*2 + blk)*8 + q)*1024
        slot = lambda n: T + 4*(n % NFB)
        for n in range(NFB-1): a(f'ds_read_b128 v[{slot(n)}:{slot(n)+3}], v1 offset:{img(n)}')
        for n, (sg, blk, q) in enumerate(seq):
            if n+NFB-1 < len(seq):
                sl = slot(n+NFB-1)
                a(f'ds_read_b128 v[{sl}:{sl+3}], v1 offset:{img(n+NFB-1)}')
            a(f's_waitcnt lgkmcnt({min(NFB-1, len(seq)-1-n)})')
            f = slot(n); d = D[sg][blk]; x = data + 4*q
            c = '0' if q == 0 else f'v[{d}:{d+15}]'
            if data_is_A: a(f'{MF} v[{d}:{d+15}], v[{x}:{x+3}], v[{f}:{f+3}], {c}')
            else: a(f'{MF} v[{d}:{d+15}], v[{f}:{f+3}], v[{x}:{x+3}], {c}')
    a.label(f'L_col_{tag}')
    a('s_waitcnt vmcnt(8) lgkmcnt(0)')
    for blk in range(2):
        for sg in range(2):
            d = D[sg][blk]
            for q in range(4):
                x = ZA + 16*blk + 4*q; f = F32 + 16*sg + 4*q
                a(f'{MF} v[{d}:{d+15}], v[{x}:{x+3}], v[{f}:{f+3}], ' + ('0' if q == 0 else f'v[{d}:{d+15}]'))
    a(f's_add_u32 s22, s21, {NWV}')
    a(f's_cmp_lt_u32 s22, 513'); a(f's_cselect_b32 s23, s22, s21')
    twiddle(P, COL_TWF)
    load_col(ZA, 4, 's23')
    f64_stage(P, False)
    a('s_waitcnt vmcnt(8)')
    for blk in range(2):
        for r in range(0, 16, 2):
            w = WC + 16*blk + r; u = T + 8*((r >> 1) & 1); xr = D[0][blk]+r; xi = D[1][blk]+r
            a(f'v_lshlrev_b32 v{u}, 16, v{w}'); a(f'v_lshlrev_b32 v{u+1}, 16, v{w+1}')
            a(f'v_and_b32 v{u+2}, 0xffff0000, v{w}'); a(f'v_and_b32 v{u+3}, 0xffff0000, v{w+1}')
            a(f'v_pk_mul_f32 v[{u+4}:{u+5}], v[{xr}:{xr+1}], v[{u}:{u+1}]')
            a(f'v_pk_mul_f32 v[{u+6}:{u+7}], v[{xr}:{xr+1}], v[{u+2}:{u+3}]')
            a(f'v_pk_fma_f32 v[{u+4}:{u+5}], v[{xi}:{xi+1}], v[{u+2}:{u+3}], v[{u+4}:{u+5}] neg_lo:[1,0,0] neg_hi:[1,0,0]')
            a(f'v_pk_fma_f32 v[{u+6}:{u+7}], v[{xi}:{xi+1}], v[{u}:{u+1}], v[{u+6}:{u+7}]')
            a(f'v_cvt_pk_bf16_f32 v{P+16*blk+r}, v{u+4}, -v{u+6}')
            a(f'v_cvt_pk_bf16_f32 v{P+16*blk+r+1}, v{u+5}, -v{u+7}')
    load_col(WC, 8, 's23')
    f64_stage(P, True)
    twiddle(P, COL_TWI)
    for blk in range(2):
        for sg in range(2):
            d = D[sg][blk]
            for q in range(4):
                x = P + 16*blk + 4*q; f = F32 + 16*sg + 4*q
                a(f'{MF} v[{d}:{d+15}], v[{f}:{f+3}], v[{x}:{x+3}], ' + ('0' if q == 0 else f'v[{d}:{d+15}]'))
    a('s_and_b32 s40, s21, 511'); a('s_cmp_lg_u32 s40, 0'); a(f's_cbranch_scc1 L_nosp_{tag}')
    a('s_mov_b32 s40, 0.5'); a('s_mov_b32 s41, 0.5')
    for sg in range(2):
        for blk in range(2):
            for r in range(0, 16, 2):
                d = D[sg][blk]+r
                a(f'v_pk_mul_f32 v[{d}:{d+1}], v[{d}:{d+1}], s[40:41]')
    a.label(f'L_nosp_{tag}')
    a(f's_mul_i32 s40, s21, {ZP}')
    for blk in range(2):
        for q in range(4):
            o = P + 16*blk + 4*q
            for i in range(4):
                a(f'v_cvt_pk_bf16_f32 v{o+i}, v{D[0][blk]+4*q+i}, v{D[1][blk]+4*q+i}')
            g = 4*blk + q
            if g == 4: a('s_add_u32 s40, s40, 4096')
            a(f'buffer_store_dwordx4 v[{o}:{o+3}], v1, s[12:15], s40 offen offset:{1024*(g & 3)}{SCY}')
    a(f's_add_u32 s21, s21, {NWV}')
    a('s_cmp_lt_u32 s21, 513'); a(f's_cbranch_scc1 L_col_{tag}')
    if stamp_end: stamp_end(a)
    else: st_end(a, 3, tag)
    a(f's_branch {end_branch}' if end_branch else 's_endpgm')
    return R.p, COL_LDS

def gen_row_inv(a, tag, wg='s2'):
    st_begin(a)
    a('s_load_dwordx2 s[18:19], s[0:1], 64')
    a('v_lshrrev_b32 v1, 6, v0'); a('v_and_b32 v0, 63, v0'); a('v_readfirstlane_b32 s20, v1')
    a(f's_and_b32 s21, {wg}, 7'); a(f's_lshr_b32 s22, {wg}, 3')
    a('s_lshr_b32 s23, s22, 1')
    a('s_and_b32 s24, s22, 1'); a('s_lshl_b32 s25, s21, 1'); a('s_add_u32 s24, s24, s25')
    a('s_lshl_b32 s25, s23, 2'); a('s_and_b32 s26, s20, 3'); a('s_add_u32 s25, s25, s26'); a('s_lshl_b32 s25, s25, 6')
    a('s_lshl_b32 s26, s24, 2'); a('s_add_u32 s25, s25, s26'); a('s_lshr_b32 s26, s20, 2'); a('s_add_u32 s25, s25, s26')
    a('s_lshl_b32 s26, s25, 11'); a('s_add_u32 s27, s26, 4096')
    a('s_lshr_b32 s28, s24, 3'); a('s_lshl_b32 s28, s28, 2'); a('s_lshr_b32 s29, s23, 1'); a('s_add_u32 s28, s28, s29'); a('s_lshl_b32 s28, s28, 6')
    a('s_and_b32 s29, s23, 1'); a('s_lshl_b32 s29, s29, 5'); a('s_add_u32 s28, s28, s29')
    a('s_and_b32 s29, s24, 7'); a('s_lshl_b32 s29, s29, 2'); a('s_add_u32 s28, s28, s29'); a('s_lshl_b32 s28, s28, 4')
    a('s_waitcnt lgkmcnt(0)')
    srd_off(a, 4, 18, WS_Y, ZBYTES); srd_off(a, 8, 18, WS_S, 2048*2048)
    R = Regs(8, 256)
    L = R.alloc(20, 4)
    a('v_lshrrev_b32 v2, 2, v0'); a('v_and_b32 v3, 3, v0')
    a('v_mul_u32_u24 v4, 72, v2'); a('v_lshrrev_b32 v5, 3, v2'); a('v_lshl_add_u32 v4, v5, 3, v4'); a('v_lshl_add_u32 v4, v3, 4, v4')
    a('s_mul_i32 s40, s20, 1168'); a('v_add_u32 v4, s40, v4')
    a('s_lshl_b32 s40, s20, 4'); a('v_add_u32 v5, s40, v2'); a(f's_mov_b32 s41, {ZP}'); a('v_mul_lo_u32 v5, v5, s41'); a('v_lshl_add_u32 v5, v3, 4, v5')
    for it in range(5):
        a(f's_add_u32 s41, s28, {it*128*ZP}')
        a(f'buffer_load_dwordx4 v[{L+4*it}:{L+4*it+3}], v5, s[4:7], s41 offen')
    G = R.alloc(16, 4); CS = R.alloc(16, 2); SN = R.alloc(16, 2); H = R.alloc(16, 4); T = R.alloc(8, 4)
    fC32, fC1k, fH4, fPh, vSg = 2, 3, 6, 7, 1
    a(f'v_and_b32 v{T}, 31, v0')
    a(f'v_lshrrev_b32 v{T+1}, 2, v{T}'); a(f'v_and_b32 v{T+1}, 1, v{T+1}'); a(f'v_lshlrev_b32 v{T+1}, 4, v{T+1}')
    a(f'v_lshrrev_b32 v{T+2}, 3, v{T}'); a(f'v_lshl_add_u32 v{T+1}, v{T+2}, 2, v{T+1}')
    a(f'v_and_b32 v{T+2}, 3, v{T}'); a(f'v_add_u32 v{T+1}, v{T+1}, v{T+2}'); a(f'v_cvt_f32_u32 v{T+1}, v{T+1}')
    a(f'v_mul_f32 v{fC32}, {f32(1/32)}, v{T+1}'); a(f'v_mul_f32 v{fC1k}, {f32(1/1024)}, v{T+1}')
    a(f'v_lshrrev_b32 v{fH4}, 5, v0'); a(f'v_cvt_f32_u32 v{fH4}, v{fH4}'); a(f'v_mul_f32 v{fH4}, {f32(4.0)}, v{fH4}')
    for sg in range(2):
        a(f'v_mov_b32 v{fPh}, {f32(0.25*sg)}')
        for q in range(2): emit_img(a, G+8*sg+4*q, fH4, 8*q, fC32, f'v{fPh}', T)
    for r in range(16): emit_cs(a, CS+r, SN+r, fH4, (r & 3) + 8*(r >> 2), fC1k, None, T)
    a(f'v_and_b32 v{T}, 31, v0'); a(f'v_cvt_f32_u32 v{T}, v{T}'); a(f'v_mul_f32 v{fC32}, {f32(1/32)}, v{T}')
    for q in range(4): emit_img(a, H+4*q, fH4, 8*q, fC32, None, T)
    a(f'v_and_b32 v{T}, 1, v0'); a(f'v_cvt_f32_u32 v{T}, v{T}'); a(f'v_fma_f32 v{vSg}, v{T}, -2.0, 1.0')
    a('v_cmp_gt_u32 vcc, 32, v0'); a(f'v_cndmask_b32 v{vSg}, 0, v{vSg}, vcc')
    for it in range(4):
        a(f's_waitcnt vmcnt({4-it})')
        a(f'ds_write_b64 v4, v[{L+4*it}:{L+4*it+1}] offset:{9344*it}')
        a(f'ds_write_b64 v4, v[{L+4*it+2}:{L+4*it+3}] offset:{9344*it+8}')
    a('s_waitcnt vmcnt(0)')
    a('s_cmp_lg_u32 s20, 0'); a(f's_cbranch_scc1 L_no5_{tag}')
    a(f'ds_write_b64 v4, v[{L+16}:{L+17}] offset:{9344*4}')
    a(f'ds_write_b64 v4, v[{L+18}:{L+19}] offset:{9344*4+8}')
    a.label(f'L_no5_{tag}')
    a('s_waitcnt lgkmcnt(0)'); a('s_barrier')
    a('v_and_b32 v2, 31, v0'); a('v_lshrrev_b32 v3, 5, v0'); a('v_lshl_add_u32 v2, v3, 7, v2')
    a('v_lshrrev_b32 v3, 3, v2'); a('v_mul_u32_u24 v2, 72, v2'); a('v_lshl_add_u32 v2, v3, 3, v2')
    a('s_lshl_b32 s31, s20, 2'); a('v_add_u32 v2, s31, v2'); a('v_mov_b32 v3, s31')
    V = [R.alloc(8, 4), R.alloc(8, 4)]; NQ = [R.alloc(), R.alloc()]
    D1 = [[R.alloc(16, 4), R.alloc(16, 4)], [R.alloc(16, 4), R.alloc(16, 4)]]
    P = [R.alloc(16, 4), R.alloc(16, 4)]
    for z in range(2):
        for q in range(2):
            for jj in range(4):
                a(f'ds_read_b32 v{V[z]+4*q+jj}, v2 offset:{2336*(8*q+jj) + 32*z}')
        a(f'ds_read_b32 v{NQ[z]}, v3 offset:{72*512 + 8*64 + 32*z}')
    a('v_lshlrev_b32 v4, 6, v0'); a('v_and_b32 v4, 0x7ff, v4'); a('v_lshrrev_b32 v5, 5, v0'); a('v_lshl_add_u32 v4, v5, 5, v4')
    for z in range(2):
        a(f's_waitcnt lgkmcnt({9*(1-z)})')
        for sg in range(2):
            d = D1[z][sg]
            a(f'{MF} v[{d}:{d+15}], v[{V[z]}:{V[z]+3}], v[{G+8*sg}:{G+8*sg+3}], 0')
            a(f'{MF} v[{d}:{d+15}], v[{V[z]+4}:{V[z]+7}], v[{G+8*sg+4}:{G+8*sg+7}], v[{d}:{d+15}]')
        a(f'v_lshlrev_b32 v{NQ[z]}, 16, v{NQ[z]}')
    for z in range(2):
        a(f'v_fmac_f32 v{D1[z][0]}, v{NQ[z]}, v{vSg}')
        cmul_pack(a, P[z], D1[z][0], D1[z][1], CS, SN, T)
        d2 = D1[z][0]
        for q in range(4):
            a(f'{MF} v[{d2}:{d2+15}], v[{P[z]+4*q}:{P[z]+4*q+3}], v[{H+4*q}:{H+4*q+3}], ' + ('0' if q == 0 else f'v[{d2}:{d2+15}]'))
    for z in range(2):
        d2 = D1[z][0]; o = D1[z][1]
        for u in range(8): a(f'v_cvt_pk_bf16_f32 v{o+u}, v{d2+2*u}, v{d2+2*u+1}')
        so = 's26' if z == 0 else 's27'
        a(f'buffer_store_dwordx4 v[{o}:{o+3}], v4, s[8:11], {so} offen')
        a(f'buffer_store_dwordx4 v[{o+4}:{o+7}], v4, s[8:11], {so} offen offset:16')
    st_end(a, 4, tag)
    a('s_endpgm')
    return R.p, TILE_BYTES
```

```python
from asm import *
from fft import *
import fft
from gemm16 import *
import roles_gemm
from roles_gemm import *
WS_PF = 0x2C30000
WS_CP = 0x2C40000
CPB = 16*3584*4
ZB2 = 515*ZP
TILE0 = 98304; ROWB = TILE0; CSP = 137216
STAT_LDS = 147456; CS_LDS = STAT_LDS + 1024; FUSED_LDS = CS_LDS + 1024
NLOG2E = 0xbfb8aa3b
SC1 = ' sc1'
WNT = ''; PFNT = ''; FUSE2 = False; PFB = 8192; DSLEEP = 8; PSLEEP = 0; NOSYNC = False; EFIRST = False; WARM = False; NEARLY = 2

def top(a, stamp):
    a('s_load_dwordx2 s[80:81], s[0:1], 0')
    a('s_load_dwordx2 s[82:83], s[0:1], 32')
    a('s_load_dwordx2 s[84:85], s[0:1], 64')
    a('s_load_dwordx2 s[86:87], s[0:1], 56')
    a('s_load_dwordx2 s[88:89], s[0:1], 40')
    if stamp: stamp_begin(a)
    a('v_lshrrev_b32 v1, 6, v0'); a('v_and_b32 v0, 63, v0'); a('v_readfirstlane_b32 s20, v1')
    for r in range(240, 252): a(f'v_mov_b32 v{r}, 0')
    a('s_and_b32 s21, s2, 7'); a('s_lshr_b32 s22, s2, 3')
    a('s_and_b32 s76, s21, 3'); a('s_lshl_b32 s76, s76, 2'); a('s_and_b32 s24, s22, 3'); a('s_add_u32 s76, s76, s24')
    a('s_lshr_b32 s77, s21, 2'); a('s_mul_i32 s77, s77, 7'); a('s_lshr_b32 s25, s22, 2'); a('s_add_u32 s77, s77, s25')

class Early:
    def __init__(s, cfg): s.cfg = cfg; s.vA = None
    def setup(s, a, tag):
        cfg = s.cfg
        a('s_cmp_lt_u32 s20, 4'); a(f's_cbranch_scc1 L_noearly_{tag}')
        a('s_sub_u32 s64, s20, 4')
        a(f's_mul_i32 s65, s76, {cfg.BM*cfg.pitchA}'); a(f's_mul_i32 s66, s77, {cfg.BN*2}')
        R = Regs(240, 256)
        s.vA, s.vW = emit_loader_setup(a, cfg, R, 0, 's64', 's65', 's66', [236, 237, 238, 239])
        a.label(f'L_noearly_{tag}')
        a('s_sub_u32 s64, s20, 4')
        srd(a, 68, 80, M*Dm*2); srd(a, 72, 82, Dm*F*2)
        a(f's_mul_i32 s78, s64, {cfg.PA*1024}')
        a(f's_mul_i32 s79, s64, {cfg.PW*1024}'); a(f's_add_u32 s79, s79, {cfg.A_BYTES}')
        a('s_mov_b32 s67, 0')
    def issue(s, a, tag):
        cfg = s.cfg
        a('s_cmp_lt_u32 s20, 4'); a(f's_cbranch_scc1 L_noissue_{tag}')
        a('s_lshl_b32 s62, s76, 7'); a(f's_mul_i32 s63, s76, {64*cfg.pitchW}')
        for g in stage_load_list(cfg, s.vA, s.vW, 68, 72, 62, 63, 78, 38):
            for x in g: a(x)
        if NEARLY > 1:
            a('s_add_u32 s62, s76, 1'); a('s_and_b32 s62, s62, 15'); a(f's_mul_i32 s63, s62, {64*cfg.pitchW}'); a('s_lshl_b32 s62, s62, 7')
            a(f's_add_u32 s78, s78, {cfg.STAGE}'); a(f's_add_u32 s79, s79, {cfg.STAGE}')
            for g in stage_load_list(cfg, s.vA, s.vW, 68, 72, 62, 63, 78, 38):
                for x in g: a(x)
        a.label(f'L_noissue_{tag}')
    def wait(s, a, n, tag):
        a(f's_waitcnt vmcnt({n + s.cfg.P})')
        a('s_cmp_ge_u32 s20, 4'); a(f's_cbranch_scc1 L_w{tag}')
        a(f's_waitcnt vmcnt({n})')
        a.label(f'L_w{tag}')

def row_part(a, tag, early):
    wg = 's2'
    a(f's_and_b32 s21, {wg}, 7'); a(f's_lshr_b32 s22, {wg}, 3')
    a('s_lshr_b32 s23, s22, 1')
    a('s_and_b32 s24, s22, 1'); a('s_lshl_b32 s25, s21, 1'); a('s_add_u32 s24, s24, s25')
    a('s_lshl_b32 s25, s23, 2'); a('s_and_b32 s26, s20, 3'); a('s_add_u32 s25, s25, s26'); a('s_lshl_b32 s25, s25, 6')
    a('s_lshl_b32 s26, s24, 2'); a('s_add_u32 s25, s25, s26'); a('s_lshr_b32 s26, s20, 2'); a('s_add_u32 s25, s25, s26')
    a('s_lshl_b32 s26, s25, 11'); a('s_add_u32 s27, s26, 4096')
    a('s_lshr_b32 s28, s24, 3'); a('s_lshl_b32 s28, s28, 2'); a('s_lshr_b32 s29, s23, 1'); a('s_add_u32 s28, s28, s29'); a('s_lshl_b32 s28, s28, 6')
    a('s_and_b32 s29, s23, 1'); a('s_lshl_b32 s29, s29, 5'); a('s_add_u32 s28, s28, s29')
    a('s_and_b32 s29, s24, 7'); a('s_lshl_b32 s29, s29, 2'); a('s_add_u32 s28, s28, s29'); a('s_lshl_b32 s28, s28, 4')
    a('v_lshlrev_b32 v1, 5, v0')
    a('s_waitcnt lgkmcnt(0)')
    srd(a, 4, 80, 2048*2048)
    R = Regs(8, 236)
    X = [R.alloc(8, 4), R.alloc(8, 4)]
    a(f'buffer_load_dwordx4 v[{X[0]}:{X[0]+3}], v1, s[4:7], s26 offen')
    a(f'buffer_load_dwordx4 v[{X[0]+4}:{X[0]+7}], v1, s[4:7], s26 offen offset:16')
    a(f'buffer_load_dwordx4 v[{X[1]}:{X[1]+3}], v1, s[4:7], s27 offen')
    a(f'buffer_load_dwordx4 v[{X[1]+4}:{X[1]+7}], v1, s[4:7], s27 offen offset:16')
    if early: early.setup(a, tag)
    if early and EFIRST: early.issue(a, tag)
    srd_off(a, 12, 84, WS_Z, ZB2)
    B1 = R.alloc(16, 4); CS = R.alloc(16, 2); SN = R.alloc(16, 2); A2 = R.alloc(16, 4)
    T = R.alloc(8, 4)
    fC32, fC1k, fH, fD, fPh = 2, 3, 4, 5, 6
    a('v_and_b32 v7, 31, v0'); a('v_cvt_f32_u32 v7, v7')
    a(f'v_mul_f32 v{fC32}, {f32(1/32)}, v7'); a(f'v_mul_f32 v{fC1k}, {f32(1/1024)}, v7')
    a(f'v_lshrrev_b32 v{fH}, 5, v0'); a(f'v_cvt_f32_u32 v{fH}, v{fH}')
    a(f'v_mul_f32 v7, {f32(8.0)}, v{fH}')
    for q in range(2):
        for jj in range(4):
            for e in range(2):
                aa = 16*q + 2*jj + e
                a(f'v_add_f32 v{T}, {f32(float(aa))}, v7')
                a(f'v_mul_f32 v{T}, v{T}, v{fC32}'); a(f'v_fract_f32 v{T}, v{T}')
                a(f'v_cos_f32 v{T+1+e}, v{T}'); a(f'v_sin_f32 v{T+3+e}, v{T}')
            a('s_nop 0')
            a(f'v_cvt_pk_bf16_f32 v{B1+4*q+jj}, v{T+1}, v{T+2}')
            a(f'v_cvt_pk_bf16_f32 v{B1+8+4*q+jj}, -v{T+3}, -v{T+4}')
    a(f'v_mul_f32 v7, {f32(4.0)}, v{fH}')
    for r in range(16):
        emit_cs(a, CS+r, SN+r, 7, (r & 3) + 8*(r >> 2), fC1k, None, T)
    a(f'v_and_b32 v{fD}, 31, v0'); a(f'v_lshrrev_b32 v{fD}, 1, v{fD}'); a(f'v_cvt_f32_u32 v{fD}, v{fD}'); a(f'v_mul_f32 v{fD}, {f32(1/32)}, v{fD}')
    a(f'v_and_b32 v{fPh}, 1, v0'); a(f'v_cvt_f32_u32 v{fPh}, v{fPh}'); a(f'v_mul_f32 v{fPh}, {f32(0.25)}, v{fPh}')
    for q in range(4): emit_img(a, A2+4*q, 7, 8*q, fD, f'v{fPh}', T)
    vRB = 2; vTR, vTW = 3, 4
    a(f's_lshl_b32 s30, s20, 12'); a(f's_add_u32 s30, s30, {ROWB}')
    a(f'v_add_u32 v{vRB}, s30, v1')
    a(f'v_lshrrev_b32 v5, 5, v0'); a(f'v_lshlrev_b32 v5, 3, v5'); a(f'v_lshrrev_b32 v6, 2, v0'); a(f'v_and_b32 v6, 3, v6'); a('v_add_u32 v5, v5, v6')
    a('v_lshlrev_b32 v5, 6, v5'); a('v_lshrrev_b32 v6, 4, v0'); a('v_and_b32 v6, 1, v6'); a('v_lshl_add_u32 v5, v6, 5, v5')
    a('v_and_b32 v6, 3, v0'); a('v_lshl_add_u32 v5, v6, 3, v5'); a(f'v_add_u32 v{vTR}, s30, v5')
    a('v_and_b32 v5, 31, v0'); a('v_lshrrev_b32 v6, 5, v0'); a('v_lshl_add_u32 v5, v6, 6, v5')
    a('v_lshrrev_b32 v6, 3, v5'); a('v_mul_u32_u24 v5, 72, v5'); a('v_lshl_add_u32 v5, v6, 3, v5')
    a('s_lshl_b32 s31, s20, 2'); a(f's_add_u32 s31, s31, {TILE0}'); a(f'v_add_u32 v{vTW}, s31, v5')
    a('v_mov_b32 v5, s31')
    XF = [R.alloc(16, 2), R.alloc(16, 2)]
    S = [R.alloc(4, 2), R.alloc(4, 2)]
    if early and EFIRST: early.wait(a, 0, tag)
    else: a('s_waitcnt vmcnt(0)')
    if early and not EFIRST: early.issue(a, tag)
    for z in range(2):
        for j in range(8):
            a(f'v_lshlrev_b32 v{XF[z]+2*j}, 16, v{X[z]+j}')
            a(f'v_and_b32 v{XF[z]+2*j+1}, 0xffff0000, v{X[z]+j}')
    for z in range(2):
        a(f'v_pk_add_f32 v[{S[z]}:{S[z]+1}], v[{XF[z]}:{XF[z]+1}], v[{XF[z]+2}:{XF[z]+3}]')
    for j in range(2, 8):
        for z in range(2):
            a(f'v_pk_add_f32 v[{S[z]}:{S[z]+1}], v[{S[z]}:{S[z]+1}], v[{XF[z]+2*j}:{XF[z]+2*j+1}]')
    for z in range(2): a(f'v_add_f32 v{S[z]}, v{S[z]}, v{S[z]+1}')
    allreduce2(a, S[0], S[0]+2, S[1], S[1]+2)
    Mn = [R.alloc(2, 2), R.alloc(2, 2)]
    ST = R.alloc(4, 2)
    for z in range(2):
        a(f'v_mul_f32 v{Mn[z]}, {f32(-1/1024)}, v{S[z]}'); a(f'v_mov_b32 v{Mn[z]+1}, v{Mn[z]}')
    for z in range(2):
        for j in range(8):
            a(f'v_pk_add_f32 v[{T+2*z}:{T+2*z+1}], v[{XF[z]+2*j}:{XF[z]+2*j+1}], v[{Mn[z]}:{Mn[z]+1}]')
            if j == 0: a(f'v_pk_mul_f32 v[{S[z]}:{S[z]+1}], v[{T+2*z}:{T+2*z+1}], v[{T+2*z}:{T+2*z+1}]')
            else: a(f'v_pk_fma_f32 v[{S[z]}:{S[z]+1}], v[{T+2*z}:{T+2*z+1}], v[{T+2*z}:{T+2*z+1}], v[{S[z]}:{S[z]+1}]')
    for z in range(2): a(f'v_add_f32 v{S[z]}, v{S[z]}, v{S[z]+1}')
    allreduce2(a, S[0], S[0]+2, S[1], S[1]+2)
    for z in range(2):
        s = S[z]
        a(f'v_mul_f32 v{s}, {f32(1/1024)}, v{s}')
        a(f'v_cvt_pk_bf16_f32 v{s}, v{s}, v{s}'); a(f'v_lshlrev_b32 v{s}, 16, v{s}')
        a(f'v_add_f32 v{s}, {f32(1e-5)}, v{s}')
        a(f'v_cvt_pk_bf16_f32 v{s}, v{s}, v{s}'); a(f'v_lshlrev_b32 v{s}, 16, v{s}')
        a(f'v_sqrt_f32 v{s}, v{s}'); a('s_nop 0')
        a(f'v_cvt_pk_bf16_f32 v{s}, v{s}, v{s}'); a(f'v_lshlrev_b32 v{s}, 16, v{s}')
        a(f'v_rcp_f32 v{s}, v{s}'); a('s_nop 0'); a(f'v_mov_b32 v{s+1}, v{s}')
        m = Mn[z]
        a(f'v_cvt_pk_bf16_f32 v{m}, v{m}, v{m}'); a(f'v_lshlrev_b32 v{m}, 16, v{m}'); a(f'v_mov_b32 v{m+1}, v{m}')
        a(f'v_mul_f32 v{ST+2*z}, {hex(NLOG2E)}, v{s}'); a(f'v_mul_f32 v{ST+2*z+1}, v{ST+2*z}, v{m}')
    a('s_mov_b64 exec, 1')
    for z in range(2):
        a(f'ds_write_b32 v5, v{ST+2*z} offset:{72*513 + 8*64 + 32*z}')
        a(f'ds_write_b32 v5, v{ST+2*z+1} offset:{72*514 + 8*64 + 32*z}')
    a('s_mov_b64 exec, -1')
    for z in range(2):
        for j in range(8):
            u = T + 2*((j & 1) + 2*z)
            a(f'v_pk_add_f32 v[{u}:{u+1}], v[{XF[z]+2*j}:{XF[z]+2*j+1}], v[{Mn[z]}:{Mn[z]+1}]')
            a(f'v_pk_mul_f32 v[{u}:{u+1}], v[{u}:{u+1}], v[{S[z]}:{S[z]+1}]')
            a(f'v_cvt_pk_bf16_f32 v{X[z]+j}, v{u}, v{u+1}')
    for z in range(2):
        a(f'ds_write_b128 v{vRB}, v[{X[z]}:{X[z]+3}] offset:{2048*z}')
        a(f'ds_write_b128 v{vRB}, v[{X[z]+4}:{X[z]+7}] offset:{2048*z+16}')
    AD = [R.alloc(8, 4), R.alloc(8, 4)]
    D1 = [[R.alloc(16, 4), R.alloc(16, 4)], [R.alloc(16, 4), R.alloc(16, 4)]]
    a('s_waitcnt lgkmcnt(0)')
    for z in range(2):
        for q in range(2):
            for jj in range(2):
                a(f'ds_read_b64_tr_b16 v[{AD[z]+4*q+2*jj}:{AD[z]+4*q+2*jj+1}], v{vTR} offset:{2048*z + 1024*q + 256*jj}')
    for z in range(2):
        a(f's_waitcnt lgkmcnt({4*(1-z)})')
        for sg in range(2):
            d = D1[z][sg]
            a(f'{MF} v[{d}:{d+15}], v[{AD[z]}:{AD[z]+3}], v[{B1+8*sg}:{B1+8*sg+3}], 0')
            a(f'{MF} v[{d}:{d+15}], v[{AD[z]+4}:{AD[z]+7}], v[{B1+8*sg+4}:{B1+8*sg+7}], v[{d}:{d+15}]')
    a('s_barrier')
    P = XF; ALT = S
    for z in range(2):
        d = D1[z][0]
        a(f'v_pk_add_f32 v[{ALT[z]}:{ALT[z]+1}], v[{d}:{d+1}], v[{d+2}:{d+3}]')
        for j in range(2, 8): a(f'v_pk_add_f32 v[{ALT[z]}:{ALT[z]+1}], v[{ALT[z]}:{ALT[z]+1}], v[{d+2*j}:{d+2*j+1}]')
        a(f'v_sub_f32 v{ALT[z]}, v{ALT[z]}, v{ALT[z]+1}')
        a(f'v_mov_b32 v{ALT[z]+1}, v{ALT[z]}'); a(f'v_permlane32_swap_b32 v{ALT[z]}, v{ALT[z]+1}'); a(f'v_add_f32 v{ALT[z]}, v{ALT[z]}, v{ALT[z]+1}')
        a(f'v_mov_b32 v{ALT[z]+1}, 0'); a(f'v_cvt_pk_bf16_f32 v{ALT[z]}, v{ALT[z]}, v{ALT[z]+1}')
        cmul_pack(a, P[z], D1[z][0], D1[z][1], CS, SN, T)
        d2 = D1[z][0]
        for q in range(4):
            a(f'{MF} v[{d2}:{d2+15}], v[{A2+4*q}:{A2+4*q+3}], v[{P[z]+4*q}:{P[z]+4*q+3}], ' + ('0' if q == 0 else f'v[{d2}:{d2+15}]'))
    for z in range(2):
        d2 = D1[z][0]; o = D1[z][1]
        for u in range(8):
            a(f'v_cvt_pk_bf16_f32 v{o+u}, v{d2+2*u}, v{d2+2*u+1}')
            du = 32*(u & 1) + 128*(u >> 1)
            a(f'ds_write_b32 v{vTW}, v{o+u} offset:{73*du + 32*z}')
    a('s_mov_b64 exec, 1')
    for z in range(2): a(f'ds_write_b32 v5, v{ALT[z]} offset:{72*512 + 8*64 + 32*z}')
    a('s_mov_b64 exec, -1')
    a('s_waitcnt lgkmcnt(0)'); a('s_barrier')
    return R.p

def wp_part(a, tag, early, tables, nocs=False, mid=None):
    wg = 's2'
    a('s_load_dwordx4 s[16:19], s[0:1], 8')
    a(f's_and_b32 s21, {wg}, 7'); a(f's_lshr_b32 s22, {wg}, 3'); a('s_and_b32 s22, s22, 15')
    a('s_and_b32 s24, s21, 3'); a('s_lshl_b32 s24, s24, 1'); a('s_and_b32 s25, s22, 1'); a('s_add_u32 s24, s24, s25')
    a('s_lshr_b32 s23, s21, 2'); a('s_lshl_b32 s23, s23, 3'); a('s_lshr_b32 s25, s22, 1'); a('s_add_u32 s23, s23, s25')
    a('s_lshl_b32 s25, s23, 2'); a('s_and_b32 s26, s20, 3'); a('s_add_u32 s25, s25, s26'); a('s_lshl_b32 s25, s25, 5')
    a('s_lshl_b32 s26, s24, 2'); a('s_add_u32 s25, s25, s26'); a('s_lshr_b32 s26, s20, 2'); a('s_add_u32 s25, s25, s26')
    a('s_mul_i32 s26, s25, 1026'); a('s_add_u32 s27, s26, 2052')
    a('s_lshr_b32 s28, s23, 1'); a('s_lshl_b32 s28, s28, 6'); a('s_and_b32 s29, s23, 1'); a('s_lshl_b32 s29, s29, 5'); a('s_add_u32 s28, s28, s29')
    a('s_lshl_b32 s29, s24, 2'); a('s_add_u32 s28, s28, s29'); a('s_lshl_b32 s28, s28, 4')
    a('v_lshlrev_b32 v1, 4, v0'); a('v_mov_b32 v3, 1024')
    a('s_and_b32 s34, s2, 127')
    a('s_waitcnt lgkmcnt(0)')
    srd(a, 4, 16, 2048*1026); srd(a, 8, 18, 2048*1026)
    R = Regs(8, 232)
    if tables:
        ZV = R.alloc(4, 4); ZA_ = R.alloc(2)
        for i in range(4): a(f'v_mov_b32 v{ZV+i}, 0')
        all_addr(a, ZA_)
        srd_off(a, 96, 84, WS_PF, PFB); srd(a, 92, 86, 256)
        if FUSE2:
            a('s_cmp_ge_u32 s2, 240'); a(f's_cbranch_scc1 L_nofz_{tag}'); a('s_cmp_lg_u32 s20, 1'); a(f's_cbranch_scc1 L_nofz_{tag}')
            srd_off(a, 44, 84, WS_FLG, 0x10000)
            a(f'v_lshlrev_b32 v{ZA_}, 6, v0'); a('s_sub_u32 s40, s2, 224'); a('s_lshl_b32 s40, s40, 12')
            a(f'buffer_store_dword v{ZV}, v{ZA_}, s[44:47], s40 offen sc1')
            a.label(f'L_nofz_{tag}')
        a('s_cmp_lg_u32 s2, 240'); a(f's_cbranch_scc1 L_noclr_{tag}'); a('s_cmp_lg_u32 s20, 7'); a(f's_cbranch_scc1 L_noclr_{tag}')
        a(f'buffer_store_dwordx4 v[{ZV}:{ZV+3}], v{ZA_}, s[96:99], 0 offen sc1')
        a('s_mov_b32 s40, 4096')
        a(f'buffer_store_dwordx4 v[{ZV}:{ZV+3}], v{ZA_}, s[96:99], s40 offen sc1')
        if FUSE2:
            a('s_mov_b32 s40, 8192')
            a(f'buffer_store_dwordx4 v[{ZV}:{ZV+3}], v{ZA_}, s[96:99], s40 offen sc1')
        a.label(f'L_noclr_{tag}')
    WR = [R.alloc(4, 4), R.alloc(4, 4)]; WI = [R.alloc(4, 4), R.alloc(4, 4)]; NY = [R.alloc(2), R.alloc(2)]
    for z, so in enumerate(('s26', 's27')):
        a(f'buffer_load_dwordx4 v[{WR[z]}:{WR[z]+3}], v1, s[4:7], {so} offen{WNT}')
        a(f'buffer_load_dwordx4 v[{WI[z]}:{WI[z]+3}], v1, s[8:11], {so} offen{WNT}')
        a(f'buffer_load_ushort v{NY[z]}, v3, s[4:7], {so} offen')
        a(f'buffer_load_ushort v{NY[z]+1}, v3, s[8:11], {so} offen')
    srd(a, 36, 82, 1024*7168)
    a('s_lshl_b32 s35, s34, 3'); a('s_add_u32 s35, s35, s20'); a('s_lshl_b32 s35, s35, 13')
    a('v_lshlrev_b32 v2, 6, v0')
    def cs_loads():
        a('buffer_load_dword v232, v2, s[36:39], s35 offen'); a('s_add_u32 s35, s35, 4096')
        a('buffer_load_dword v233, v2, s[36:39], s35 offen')
    if early: early.setup(a, tag)
    srd_off(a, 12, 84, WS_WP, ZBYTES)
    O = R.alloc(16, 4)
    a('v_mul_u32_u24 v4, 584, v0'); a('s_lshl_b32 s31, s20, 2'); a(f's_add_u32 s31, s31, {TILE0}'); a('v_add_u32 v4, s31, v4')
    a('s_mov_b32 s29, 0x05040100'); a('s_mov_b32 s30, 0x07060302')
    if tables:
        a(f's_cmp_lg_u32 s2, 255'); a(f's_cbranch_scc1 L_notab_{tag}'); a('s_cmp_lg_u32 s20, 7'); a(f's_cbranch_scc1 L_notab_{tag}')
        gen_rinv_tables(a, R, 84, 44, ' sc1' if FUSE2 else '')
        a('s_waitcnt vmcnt(0)')
        a.label(f'L_notab_{tag}')
    if mid: mid(a)
    else: a('s_waitcnt vmcnt(0)')
    if early: early.issue(a, tag)
    if WARM and early: cs_loads()
    if tables:
        a('s_cmp_lg_u32 s2, 240'); a(f's_cbranch_scc1 L_noopen_{tag}'); a('s_cmp_lg_u32 s20, 7'); a(f's_cbranch_scc1 L_noopen_{tag}')
        a(f'v_mov_b32 v{ZA_}, 0'); a(f'v_mov_b32 v{ZA_+1}, 1'); a('s_mov_b64 exec, 1')
        a(f'buffer_store_dword v{ZA_+1}, v{ZA_}, s[92:95], 0 offen sc1')
        a('s_mov_b64 exec, -1')
        a.label(f'L_noopen_{tag}')
    for z in range(2):
        for j in range(4):
            a(f'v_perm_b32 v{O+8*z+2*j}, v{WI[z]+j}, v{WR[z]+j}, s29')
            a(f'v_perm_b32 v{O+8*z+2*j+1}, v{WI[z]+j}, v{WR[z]+j}, s30')
        for e in range(8):
            a(f'ds_write_b32 v4, v{O+8*z+e} offset:{72*e + 32*z}')
    for z in range(2): a(f'v_lshl_or_b32 v{NY[z]}, v{NY[z]+1}, 16, v{NY[z]}')
    a('s_mov_b64 exec, 1')
    a('v_mov_b32 v5, s31')
    for z in range(2): a(f'ds_write_b32 v5, v{NY[z]} offset:{72*512 + 8*64 + 32*z}')
    a('s_mov_b64 exec, -1')
    a('s_waitcnt lgkmcnt(0)'); a('s_barrier')
    return R.p

def gate_issue(a, vt):
    srd(a, 92, 86, 256)
    a(f'v_mov_b32 v{vt}, 0')
    a(f'buffer_load_dword v{vt+1}, v{vt}, s[92:95], 0 offen sc1')
def signal(a, vt, tag):
    srd(a, 92, 86, 256)
    a('s_mov_b32 s42, 0')
    a.label(f'L_gate_{tag}')
    a(f'v_readfirstlane_b32 s40, v{vt+1}'); a('s_cmp_eq_u32 s40, 1'); a(f's_cbranch_scc1 L_gateok_{tag}')
    if PSLEEP: a(f's_sleep {PSLEEP}')
    a(f'buffer_load_dword v{vt+1}, v{vt}, s[92:95], 0 offen sc1')
    a('s_waitcnt vmcnt(0)')
    a('s_add_u32 s42, s42, 1'); a('s_cmp_lt_u32 s42, 0x8000'); a(f's_cbranch_scc1 L_gate_{tag}')
    a.label(f'L_gateok_{tag}')
    srd_off(a, 96, 84, WS_PF, PFB)
    a('s_lshr_b32 s40, s2, 3'); a('s_lshl_b32 s40, s40, 7'); a('s_and_b32 s41, s2, 7'); a('s_lshl_b32 s41, s41, 2'); a('s_add_u32 s40, s40, s41')
    a(f'v_mov_b32 v{vt}, s40'); a(f'v_mov_b32 v{vt+1}, 1'); a('s_mov_b64 exec, 1')
    if not NOSYNC: a(f'buffer_store_dword v{vt+1}, v{vt}, s[96:99], 0 offen sc1')
    a('s_mov_b64 exec, -1')

def all_addr(a, vt):
    a(f'v_lshrrev_b32 v{vt}, 1, v0'); a(f'v_lshlrev_b32 v{vt}, 7, v{vt}'); a(f'v_and_b32 v{vt+1}, 1, v0'); a(f'v_lshl_add_u32 v{vt}, v{vt+1}, 4, v{vt}')
def poll_all(a, vt, vd, tag):
    srd_off(a, 96, 84, WS_PF, PFB)
    all_addr(a, vt)
    a('s_mov_b32 s42, 0')
    a.label(f'L_poll_{tag}')
    a(f'buffer_load_dwordx4 v[{vd}:{vd+3}], v{vt}, s[96:99], 0 offen sc1')
    a('s_waitcnt vmcnt(0)')
    for i in range(4):
        a(f'v_cmp_eq_u32 vcc, 1, v{vd+i}')
        if i == 0: a('s_mov_b64 s[40:41], vcc')
        else: a('s_and_b64 s[40:41], s[40:41], vcc')
    a('s_cmp_eq_u64 s[40:41], -1'); a(f's_cbranch_scc1 L_pollok_{tag}')
    if NOSYNC: a(f's_branch L_pollok_{tag}')
    if PSLEEP: a(f's_sleep {PSLEEP}')
    a('s_add_u32 s42, s42, 1'); a('s_cmp_lt_u32 s42, 0x8000'); a(f's_cbranch_scc1 L_poll_{tag}')
    a.label(f'L_pollok_{tag}')
def poll3_addr(a, vt):
    a(f'v_and_b32 v{vt+1}, 15, v0')
    a('s_lshr_b32 s40, s76, 1'); a('s_lshl_b32 s40, s40, 1')
    a(f'v_lshrrev_b32 v{vt}, 3, v{vt+1}'); a(f'v_add_u32 v{vt}, s40, v{vt}'); a(f'v_lshlrev_b32 v{vt}, 7, v{vt}')
    a(f'v_and_b32 v{vt+2}, 7, v0'); a(f'v_lshl_add_u32 v{vt}, v{vt+2}, 2, v{vt}')
    a('s_lshr_b32 s40, s2, 5'); a('s_lshl_b32 s40, s40, 9'); a('s_and_b32 s41, s2, 4'); a('s_lshl_b32 s41, s41, 2'); a('s_add_u32 s40, s40, s41'); a('s_add_u32 s40, s40, 4096')
    a(f'v_and_b32 v{vt+2}, 3, v{vt+1}'); a(f'v_lshlrev_b32 v{vt+2}, 7, v{vt+2}'); a(f'v_add_u32 v{vt+2}, s40, v{vt+2}')
    a(f'v_lshrrev_b32 v{vt+1}, 2, v{vt+1}'); a(f'v_lshl_add_u32 v{vt+2}, v{vt+1}, 2, v{vt+2}')
    a(f'v_and_b32 v{vt+1}, 16, v0'); a(f'v_cmp_eq_u32 vcc, 0, v{vt+1}'); a(f'v_cndmask_b32 v{vt}, v{vt+2}, v{vt}, vcc')
def poll3_check(a, vt, tag):
    a('s_mov_b32 s42, 0'); a(f's_branch L_pc_{tag}')
    a.label(f'L_poll_{tag}')
    if PSLEEP: a(f's_sleep {PSLEEP}')
    a(f'buffer_load_dword v{vt+1}, v{vt}, s[96:99], 0 offen sc1')
    a('s_waitcnt vmcnt(0)')
    a.label(f'L_pc_{tag}')
    a(f'v_cmp_eq_u32 vcc, 1, v{vt+1}')
    a('s_cmp_eq_u64 vcc, -1'); a(f's_cbranch_scc1 L_pollok_{tag}')
    if NOSYNC: a(f's_branch L_pollok_{tag}')
    a('s_add_u32 s42, s42, 1'); a('s_cmp_lt_u32 s42, 0x8000'); a(f's_cbranch_scc1 L_poll_{tag}')
    a.label(f'L_pollok_{tag}')

def stamp_rec(a, regs, slot, endlabel, ws=84):
    a('s_waitcnt vmcnt(0)'); a('s_memrealtime s[56:57]'); a('s_waitcnt lgkmcnt(0)')
    a('s_cmp_lg_u32 s20, 0'); a(f's_cbranch_scc1 {endlabel}')
    srd_off(a, 12, ws, WS_DBG + slot*0x4000, 0x4000)
    for i, r in enumerate(regs): a(f'v_mov_b32 v{12+i}, s{r}')
    a('s_lshl_b32 s40, s2, 6'); a('v_mov_b32 v10, s40')
    a('v_cmp_eq_u32 vcc, 0, v0'); a('s_and_saveexec_b64 s[62:63], vcc')
    for i in range((len(regs)+3)//4): a(f'buffer_store_dwordx4 v[{12+4*i}:{15+4*i}], v10, s[12:15], 0 offen offset:{16*i}')
    a('s_mov_b64 exec, -1')

def g1_part(a, tag, cfg, early, stamp, hsc, sigk, tsc=SC1, fltest=False, pk=9, siga=-1, pf2k=0):
    tmp = [1, 2, 3, 4]
    if stamp: a('s_memrealtime s[90:91]')
    a('s_mov_b32 s23, s76'); a('s_mov_b32 s24, s77')
    a(f's_mul_i32 s26, s23, {cfg.BM*cfg.pitchA}'); a(f's_mul_i32 s27, s24, {cfg.BN*2}')
    emit_consts(a, cfg)
    a(f's_cmp_ge_u32 s20, {cfg.NC}'); a(f's_cbranch_scc1 L_loader_{tag}')
    a('v_mov_b32 v235, 1')
    a('s_cmp_lg_u32 s20, 0'); a(f's_cbranch_scc1 L_nogate_{tag}')
    gate_issue(a, 234)
    a.label(f'L_nogate_{tag}')
    save = fft.SC; fft.SC = tsc
    tile_store_phase(a, 0, 's20', 12, 28, 8, TILE0, tag + 'a')
    a('s_add_u32 s21, s20, 4')
    tile_store_phase(a, 0, 's21', 12, 28, 40, TILE0, tag + 'b')
    fft.SC = save
    srd_off(a, 12, 84, HP.off, M*HP.pitch)
    a(f's_and_b32 s37, s20, {cfg.WN-1}')
    a(f's_lshr_b32 s36, s20, {cfg.WN.bit_length()-1}')
    Rc = Regs(72, 256)
    sets = emit_consumer_addr2(a, cfg, Rc, 0, 's36', 's37', tmp)
    vO = 5; vST = 6; vCS = 7
    Fr = consumer_regs(cfg, Regs(8, 256))
    Fr['acc'] = Rc.alloc(4*cfg.TM*cfg.TN, 4)
    acc = Fr['acc']
    for i in range(4*cfg.TM*cfg.TN): a(f'v_mov_b32 v{acc+i}, 0')
    a('s_waitcnt lgkmcnt(0)')
    a('v_mov_b32 v2, 0')
    sg = Asm()
    sg('s_cmp_lg_u32 s20, 0'); sg(f's_cbranch_scc1 L_nosig_{tag}')
    signal(sg, 2, tag)
    sg.label(f'L_nosig_{tag}')
    hooks = {}
    stl = ['s_memrealtime s[64:65]', 's_waitcnt lgkmcnt(0)'] if stamp else []
    if siga == -2:
        a('s_cmp_ge_u32 s2, 128'); a(f's_cbranch_scc1 L_nodrain_{tag}')
        a('s_waitcnt vmcnt(0)')
        a.label(f'L_nodrain_{tag}')
        a('v_mov_b32 v3, v235')
        for x in stl: a(x)
        s1 = Asm(); s1('s_cmp_ge_u32 s2, 128'); s1(f's_cbranch_scc1 L_nosig1_{tag}')
        s1.L += [l.replace('L_gate', 'L_gat1').replace('L_nosig_', 'L_nosig1_') for l in sg.L]
        hooks['first'] = lambda a: a.extend(s1)
    elif siga < 0:
        a('s_waitcnt vmcnt(0)'); a('v_mov_b32 v3, v235')
        for x in stl: a(x)
        hooks['first'] = lambda a: a.extend(sg)
    ONES = 220; CSA = 240; vCP = 236
    for i in range(4): a(f'v_mov_b32 v{ONES+i}, 0x3f803f80')
    a(f'v_and_b32 v{vCP+1}, 15, v0'); a(f'v_lshrrev_b32 v{vCP}, 4, v0'); a(f'v_lshlrev_b32 v{vCP}, 4, v{vCP}'); a(f'v_lshl_add_u32 v{vCP}, v{vCP+1}, 6, v{vCP}')
    a(f's_mul_i32 s40, s76, {3584*4}'); a('s_lshl_b32 s41, s77, 10'); a('s_add_u32 s40, s40, s41'); a('s_lshl_b32 s41, s37, 8'); a('s_add_u32 s40, s40, s41')
    a(f'v_add_u32 v{vCP}, s40, v{vCP}')
    srd_off(a, 4, 84, WS_CP, CPB)
    hstate = [0]
    def head(em, par):
        for t in range(cfg.TN):
            w = Fr['W'][par] + 4*t; c = CSA + 4*t
            em(f'v_mfma_f32_16x16x32_bf16 v[{c}:{c+3}], v[{w}:{w+3}], v[{ONES}:{ONES+3}], ' + ('0' if hstate[0] == 0 else f'v[{c}:{c+3}]'))
        hstate[0] += 1
        if hstate[0] == 2:
            for t in range(1, 4):
                em(f'v_cmp_eq_u32 vcc, {t}, v{vCP+1}')
                for i in range(4): em(f'v_cndmask_b32 v{CSA+i}, v{CSA+i}, v{CSA+4*t+i}, vcc')
            em('s_mov_b32 exec_lo, 0x000f000f'); em('s_mov_b32 exec_hi, 0x000f000f')
            em(f'buffer_store_dwordx4 v[{CSA}:{CSA+3}], v{vCP}, s[4:7], 0 offen sc1')
            em('s_mov_b64 exec, -1')
    hooks['head'] = head
    sb = Asm()
    sb('s_cmp_lg_u32 s20, 0'); sb(f's_cbranch_scc1 L_nosigb_{tag}')
    srd_off(sb, 96, 84, WS_PF, PFB)
    sb('s_lshr_b32 s40, s2, 3'); sb('s_lshl_b32 s40, s40, 7'); sb('s_and_b32 s41, s2, 7'); sb('s_lshl_b32 s41, s41, 2'); sb('s_add_u32 s40, s40, s41'); sb('s_add_u32 s40, s40, 4096')
    sb('v_mov_b32 v2, s40'); sb('v_mov_b32 v3, 1'); sb('s_mov_b64 exec, 1')
    if not NOSYNC: sb('buffer_store_dword v3, v2, s[96:99], 0 offen sc1')
    sb('s_mov_b64 exec, -1')
    sb.label(f'L_nosigb_{tag}')
    hooks['bar'] = {sigk: (['s_waitcnt vmcnt(0)'], sb.L)}
    if siga == -2:
        s2_ = Asm(); s2_('s_cmp_lt_u32 s2, 128'); s2_(f's_cbranch_scc1 L_nosig_{tag}'); s2_('v_mov_b32 v2, 0'); s2_('v_mov_b32 v3, v235')
        hooks['bar'][sigk] = (['s_waitcnt vmcnt(0)'], s2_.L + list(sg.L) + list(sb.L))
    if pf2k:
        pf = Asm()
        srd(pf, 68, 88, F*Dm*2)
        pf('s_lshl_b32 s40, s2, 2'); pf('s_add_u32 s40, s40, s20'); pf('s_lshl_b32 s40, s40, 13')
        pf('v_lshlrev_b32 v2, 6, v0')
        pf('buffer_load_dword v234, v2, s[68:71], s40 offen' + PFNT); pf('s_add_u32 s40, s40, 4096')
        pf('buffer_load_dword v234, v2, s[68:71], s40 offen' + PFNT)
        hooks['bar'][pf2k] = ([], pf.L)
    if siga >= 0:
        pre = ['s_waitcnt vmcnt(0)', 'v_mov_b32 v3, v235'] + stl
        hooks['bar'][siga] = (pre, list(sg.L) + (list(sb.L) if siga == sigk else []))
    if stamp:
        used = {k % 3 for k in hooks['bar'] if k >= 1}
        free = [r for r in range(3) if r not in used]
        hooks['pre_bar'] = {}
        if len(free) >= 1: hooks['pre_bar'][[k for k in (4, 5, 6) if k % 3 == free[0]][0]] = ['s_memrealtime s[66:67]', 's_waitcnt lgkmcnt(0)']
        if len(free) >= 2: hooks['pre_bar'][[k for k in (8, 9, 10) if k % 3 == free[1]][0]] = ['s_memrealtime s[68:69]', 's_waitcnt lgkmcnt(0)']
    ool = emit_consumer_loop2(a, cfg, Fr, sets, 32, tag, hooks=hooks)
    cfg.valu = None
    if stamp: stamp_mid(a)
    STv = Fr['A'][0]; CSv = STv + 16
    st = Fr['W'][0]; ndst = 3; tb = st + 16
    a(f'v_and_b32 v{tmp[1]}, 15, v0'); a(f'v_lshlrev_b32 v{vST}, 3, v{tmp[1]}'); a(f'v_add_u32 v{vST}, {STAT_LDS}, v{vST}')
    for mt in range(cfg.TM): a(f'ds_read_b64 v[{STv+2*mt}:{STv+2*mt+1}], v{vST} offset:{128*mt}')
    a(f'v_lshrrev_b32 v{vCS}, 4, v0'); a(f'v_lshlrev_b32 v{vCS}, 4, v{vCS}'); a(f's_mul_i32 s40, s37, {cfg.TN*64}'); a(f's_add_u32 s40, s40, {CS_LDS}'); a(f'v_add_u32 v{vCS}, s40, v{vCS}')
    for t in range(cfg.TN): a(f'ds_read_b128 v[{CSv+4*t}:{CSv+4*t+3}], v{vCS} offset:{64*t}')
    a('s_mov_b32 s46, 0xbfb8aa3b'); a('s_mov_b32 s47, 0xbfb8aa3b')
    a(f's_mul_i32 s40, s23, {cfg.BM}')
    a(f'v_and_b32 v{tmp[1]}, 7, v0'); a(f'v_add_u32 v{tmp[1]}, s40, v{tmp[1]}')
    a(f's_mov_b32 s41, {HP.pitch}')
    a(f'v_mul_lo_u32 v{vO}, v{tmp[1]}, s41')
    a(f'v_lshrrev_b32 v{tmp[1]}, 3, v0'); a(f'v_and_b32 v{tmp[1]}, 1, v{tmp[1]}'); a(f'v_lshl_add_u32 v{vO}, v{tmp[1]}, 6, v{vO}')
    a(f'v_lshrrev_b32 v{tmp[1]}, 4, v0'); a(f'v_and_b32 v{tmp[2]}, 1, v{tmp[1]}'); a(f'v_lshl_add_u32 v{vO}, v{tmp[2]}, 5, v{vO}')
    a(f'v_lshrrev_b32 v{tmp[1]}, 5, v0'); a(f'v_lshl_add_u32 v{vO}, v{tmp[1]}, 4, v{vO}')
    a(f's_mul_i32 s40, s37, {cfg.TN*32}'); a('s_add_u32 s40, s40, s27')
    a(f'v_add_u32 v{vO}, s40, v{vO}')
    a('s_waitcnt lgkmcnt(0)')
    def act4(c, t, cs, sp):
        for j in (0, 2): a(f'v_pk_mul_f32 v[{t+j}:{t+j+1}], v[{cs+j}:{cs+j+1}], v[{sp}:{sp+1}] op_sel:[0,1] op_sel_hi:[1,1]')
        for j in (0, 2): a(f'v_pk_fma_f32 v[{c+j}:{c+j+1}], v[{c+j}:{c+j+1}], v[{sp}:{sp+1}], v[{t+j}:{t+j+1}] op_sel:[0,0,0] op_sel_hi:[1,0,1]')
        for j in range(4): a(f'v_exp_f32 v{t+j}, v{c+j}')
        for j in (0, 2): a(f'v_pk_fma_f32 v[{t+j}:{t+j+1}], v[{t+j}:{t+j+1}], s[46:47], s[46:47]')
        for j in range(4): a(f'v_rcp_f32 v{t+j}, v{t+j}')
        for j in (0, 2): a(f'v_pk_mul_f32 v[{t+j}:{t+j+1}], v[{c+j}:{c+j+1}], v[{t+j}:{t+j+1}]')
    assert cfg.TN == 4 and cfg.WM == 1
    DS = [220, 224, 228]
    for mt in range(cfg.TM):
        d0 = st + 8*(mt & 1); d1 = d0 + 4; b = DS[mt % 3]
        for tp in range(2):
            d = d0 + 4*tp; tt = tb + 8*tp
            c0 = acc + 4*(mt*cfg.TN + 2*tp); c1 = c0 + 4
            act4(c0, tt, CSv + 8*tp, STv + 2*mt); act4(c1, tt+4, CSv + 8*tp + 4, STv + 2*mt)
            for j in range(4): a(f'v_cvt_pk_bf16_f32 v{d+j}, v{tt+2*j}, v{tt+2*j+1}')
            a(f'v_permlane16_swap_b32 v{d}, v{d+2}')
            a(f'v_permlane16_swap_b32 v{d+1}, v{d+3}')
        for j in range(4): a(f'v_mov_b32 v{b+j}, v{d1+j}')
        for j in range(4): a(f'v_mov_b32_dpp v{b+j}, v{d0+j} row_ror:8 row_mask:0xf bank_mask:0x3')
        for j in range(4): a(f'v_mov_b32_dpp v{d0+j}, v{d1+j} row_ror:8 row_mask:0xf bank_mask:0xc')
        a(f's_mov_b32 s40, {mt*16*HP.pitch}'); a(f's_mov_b32 s41, {(mt*16+8)*HP.pitch}')
        a(f'buffer_store_dwordx4 v[{d0}:{d0+3}], v{vO}, s[12:15], s40 offen{hsc}')
        a(f'buffer_store_dwordx4 v[{b}:{b+3}], v{vO}, s[12:15], s41 offen{hsc}')
    if stamp:
        a('s_waitcnt lgkmcnt(0)'); a('s_sub_u32 s60, s60, s58')
        stamp_rec(a, (52, 53, 90, 91, 54, 55, 56, 57, 64, 65, 66, 67, 68, 69, 68, 69), 0, f'L_g1end_{tag}')
    a.label(f'L_g1end_{tag}')
    a('s_branch L_g2_entry' if FUSE2 else 's_endpgm')
    for blk in ool:
        for ln in blk: a(ln)
    a.label(f'L_loader_{tag}')
    a(f's_sub_u32 s35, s20, {cfg.NC}')
    srd(a, 4, 80, M*Dm*2); srd(a, 8, 82, Dm*F*2)
    Rl = Regs(5, 236)
    X = {k: Rl.alloc() for k in ('d', 'l', 'z', 'sa', 'cp', 'cw')}
    X['p'] = Rl.alloc(3); X['p1'] = X['p'] + 1
    PV = Rl.alloc(16, 4); PT = Rl.alloc(4, 4)
    a('s_lshl_b32 s28, s76, 7'); a(f's_mul_i32 s29, s76, {64*cfg.pitchW}')
    a(f's_mul_i32 s30, s35, {cfg.PA*1024}')
    a(f's_mul_i32 s31, s35, {cfg.PW*1024}'); a(f's_add_u32 s31, s31, {cfg.A_BYTES}')
    n_main = cfg.NST - (cfg.S-1)
    def after_pro(a):
        a('s_lshl_b32 s66, s2, 2'); a('s_add_u32 s66, s66, s35')
        a(f'v_lshlrev_b32 v{X["l"]}, 6, v0'); a(f'v_mov_b32 v{X["z"]}, 0')
        srd_off(a, 72, 84, WS_FLG, 0x10000)
        srd(a, 68, 88, F*Dm*2)
        srd_off(a, 48, 84, WS_Z, ZB2); srd_off(a, 52, 84, WS_CP, CPB)
        a(f'v_and_b32 v{X["sa"]}, 1, v0'); a(f'v_mul_u32_u24 v{X["sa"]}, {ZP}, v{X["sa"]}')
        a(f'v_lshrrev_b32 v{X["cp"]}, 1, v0'); a(f'v_lshl_add_u32 v{X["sa"]}, v{X["cp"]}, 4, v{X["sa"]}')
        a(f'v_and_b32 v{X["cw"]}, 15, v0'); a(f'v_lshlrev_b32 v{X["cw"]}, 4, v{X["cw"]}')
        a(f'v_lshrrev_b32 v{X["cp"]}, 4, v0'); a(f'v_mul_u32_u24 v{X["cp"]}, {3584*4}, v{X["cp"]}'); a(f'v_add_u32 v{X["cp"]}, v{X["cp"]}, v{X["cw"]}')
        a('s_lshl_b32 s40, s35, 8'); a(f's_add_u32 s40, s40, {CS_LDS}'); a(f'v_add_u32 v{X["cw"]}, s40, v{X["cw"]}')
        srd_off(a, 96, 84, WS_PF, PFB); poll3_addr(a, X['p']); a(f'v_mov_b32 v{X["p1"]}, 0')
    PK = pk
    NX = 5
    def wait_hook(a, n):
        a(f's_cmp_le_u32 s32, {PK}'); a(f's_cbranch_scc1 L_wa_{tag}')
        a(f's_cmp_eq_u32 s32, {PK+1}'); a(f's_cbranch_scc1 L_wb_{tag}')
        a(f's_cmp_gt_u32 s32, {PK+3}'); a(f's_cbranch_scc1 L_wa_{tag}')
        a(f's_waitcnt vmcnt({n + NX})'); a(f's_branch L_wd_{tag}')
        a.label(f'L_wb_{tag}'); a(f's_waitcnt vmcnt({n + 1})'); a(f's_branch L_wd_{tag}')
        a.label(f'L_wa_{tag}'); a(f's_waitcnt vmcnt({n})')
        a.label(f'L_wd_{tag}')
    def extra(a):
        a(f's_cmp_lg_u32 s32, {PK}'); a(f's_cbranch_scc1 L_nop1_{tag}')
        a(f'buffer_load_dword v{X["p1"]}, v{X["p"]}, s[96:99], 0 offen sc1')
        a.label(f'L_nop1_{tag}')
        a(f's_cmp_lg_u32 s32, {PK+1}'); a(f's_cbranch_scc1 L_nop2_{tag}')
        a(f's_waitcnt vmcnt({cfg.P})')
        poll3_check(a, X['p'], tag)
        a('s_lshl_b32 s40, s76, 1'); a('s_lshr_b32 s41, s35, 1'); a('s_add_u32 s40, s40, s41')
        a('s_lshr_b32 s41, s40, 3'); a('s_and_b32 s42, s35, 1'); a('s_lshl_b32 s42, s42, 2'); a('s_add_u32 s41, s41, s42'); a('s_lshl_b32 s41, s41, 6')
        a('s_lshr_b32 s42, s40, 2'); a('s_and_b32 s42, s42, 1'); a('s_lshl_b32 s42, s42, 5'); a('s_add_u32 s41, s41, s42')
        a('s_lshl_b32 s41, s41, 4'); a('s_and_b32 s40, s40, 3'); a('s_lshl_b32 s40, s40, 2'); a('s_add_u32 s41, s41, s40')
        a(f's_add_u32 s41, s41, {513*ZP}')
        a('s_lshl_b32 s40, s35, 8'); a(f's_add_u32 m0, s40, {STAT_LDS}'); a('s_nop 0')
        a(f'buffer_load_dword v{X["sa"]}, s[48:51], s41 offen sc1 lds')
        a('s_lshl_b32 s41, s77, 10'); a('s_lshl_b32 s40, s35, 8'); a('s_add_u32 s41, s41, s40')
        for i in range(4):
            a(f'buffer_load_dwordx4 v[{PV+4*i}:{PV+4*i+3}], v{X["cp"]}, s[52:55], s41 offen sc1')
            if i < 3: a(f's_add_u32 s41, s41, {4*3584*4}')
        a.label(f'L_nop2_{tag}')
    extra.uncounted = True
    def cs_finish(a):
        for i in (1, 3):
            for j in (0, 2): a(f'v_pk_add_f32 v[{PV+4*(i-1)+j}:{PV+4*(i-1)+j+1}], v[{PV+4*(i-1)+j}:{PV+4*(i-1)+j+1}], v[{PV+4*i+j}:{PV+4*i+j+1}]')
        for j in (0, 2): a(f'v_pk_add_f32 v[{PV+j}:{PV+j+1}], v[{PV+j}:{PV+j+1}], v[{PV+8+j}:{PV+8+j+1}]')
        for op in ('v_permlane32_swap_b32', 'v_permlane16_swap_b32'):
            for j in range(4): a(f'v_mov_b32 v{PT+j}, v{PV+j}')
            for j in range(4): a(f'{op} v{PV+j}, v{PT+j}')
            for j in (0, 2): a(f'v_pk_add_f32 v[{PV+j}:{PV+j+1}], v[{PV+j}:{PV+j+1}], v[{PT+j}:{PT+j+1}]')
        a('s_mov_b64 exec, 0xffff')
        a(f'ds_write_b128 v{X["cw"]}, v[{PV}:{PV+3}]')
        a('s_mov_b64 exec, -1')
        a('s_waitcnt lgkmcnt(0)')
    def tail(a):
        if pf2k and FUSE2: return 0
        a('s_lshl_b32 s40, s66, 13')
        a(f'buffer_load_dword v{X["d"]}, v{X["l"]}, s[68:71], s40 offen')
        a('s_add_u32 s40, s40, 4096')
        a(f'buffer_load_dword v{X["d"]}, v{X["l"]}, s[68:71], s40 offen')
        if FUSE2: return 2
        a('s_lshl_b32 s40, s66, 12')
        a(f'buffer_store_dword v{X["z"]}, v{X["l"]}, s[72:75], s40 offen')
        return 3
    emit_loader_loop(a, cfg, early.vA, early.vW, 4, 8, 28, 29, 30, 32, 33, 38, tag, tail, after_pro=after_pro, extra=extra, pro_done=NEARLY, krot=True, wait_hook=wait_hook, tail1=cs_finish)
    a('s_branch L_g2_entry' if FUSE2 else 's_endpgm')
    return 256

def gen_fused(a, stamp=False, hsc=' sc1', sigk=1, tsc=SC1, nocs=False, psleep=0, nosync=False, nocol=False, fltest=False, efirst=False, warm=False, nearly=2, pk=9, siga=-1, fuse2=False, dsleep=8, g2kw=None, g2opt=None, late=None, krot=0, noj2=False, csleep=8, pf2k=0, wnt=''):
    global WNT
    WNT = wnt
    global PSLEEP, NOSYNC, EFIRST, WARM, NEARLY, FUSE2, PFB, DSLEEP
    FUSE2 = fuse2; PFB = 12288 if fuse2 else 8192; DSLEEP = dsleep
    PSLEEP = psleep; NOSYNC = nosync; EFIRST = efirst; WARM = warm; NEARLY = nearly
    cfg = G16(S=3)
    top(a, stamp)
    a('s_cmp_ge_u32 s2, 224'); a('s_cbranch_scc1 L_col_role')
    a('s_cmp_ge_u32 s2, 128'); a('s_cbranch_scc1 L_wp_role')
    e1 = Early(cfg)
    n1 = row_part(a, 'rf', e1)
    a('s_branch L_g1_start')
    a.label('L_wp_role')
    e2 = Early(cfg)
    n2 = wp_part(a, 'wp', e2, False, nocs)
    assert e1.vA == e2.vA and e1.vW == e2.vW
    a.label('L_g1_start')
    g1_part(a, 'g1', cfg, e1, stamp, hsc, sigk, tsc, fltest, pk, siga, pf2k)
    a.label('L_col_role')
    a('s_sub_u32 s3, s2, 224')
    n3 = wp_part(a, 'wc', None, True, nocs, None)
    a('v_mov_b32 v65, 1'); a('v_mov_b32 v64, 0')
    a('s_cmp_lg_u32 s20, 0'); a('s_cbranch_scc1 L_colnogate')
    gate_issue(a, 64)
    a.label('L_colnogate')
    save = fft.SC; fft.SC = tsc
    tile_store_phase(a, 0, 's20', 12, 28, 8, TILE0, 'wc')
    fft.SC = save
    if nocol: a('s_endpgm')
    a('s_mov_b32 s18, s84'); a('s_mov_b32 s19, s85')
    def poll(a):
        a('s_waitcnt vmcnt(0)'); a('s_barrier')
        a('s_cmp_lg_u32 s20, 0'); a('s_cbranch_scc1 L_colnopoll')
        a('v_mov_b32 v5, 0'); a('v_mov_b32 v6, v65')
        signal(a, 5, 'col')
        if stamp: a('s_memrealtime s[90:91]')
        poll_all(a, 5, 8, 'col')
        a.label('L_colnopoll')
        if stamp: a('s_memrealtime s[54:55]')
    def stamp_end(a):
        if stamp: stamp_rec(a, (52, 53, 90, 91, 54, 55, 56, 57), 3, 'L_colend', ws=84)
        a.label('L_colend')
    n4, l4 = gen_col(a, 'c', 's3', 32, inited=True, poll=poll, ldsc=SC1, stamp_end=stamp_end, end_branch='L_g2_entry' if FUSE2 else None)
    if not FUSE2: return 256, FUSED_LDS
    a.label('L_g2_entry')
    a('s_waitcnt vmcnt(0)'); a('s_barrier')
    a('s_cmp_lg_u32 s20, 0'); a('s_cbranch_scc1 L_nosigd')
    srd_off(a, 96, 84, WS_PF, PFB)
    a('s_lshr_b32 s40, s2, 3'); a('s_lshl_b32 s40, s40, 7'); a('s_and_b32 s41, s2, 7'); a('s_lshl_b32 s41, s41, 2'); a('s_add_u32 s40, s40, s41'); a('s_add_u32 s40, s40, 8192')
    a('v_mov_b32 v2, s40'); a('v_mov_b32 v3, 1'); a('s_mov_b64 exec, 1')
    a('buffer_store_dword v3, v2, s[96:99], 0 offen sc1')
    a('s_mov_b64 exec, -1')
    a.label('L_nosigd')
    PR = {}
    def g2poll(a, R):
        vt = R.alloc(3); ve = R.alloc(); PR['vt'] = vt
        srd_off(a, 96, 64, WS_PF, PFB)
        a(f'v_lshrrev_b32 v{vt}, 3, v0'); a(f'v_add_u32 v{vt}, 28, v{vt}'); a(f'v_lshlrev_b32 v{vt}, 7, v{vt}')
        a(f'v_and_b32 v{vt+1}, 7, v0'); a(f'v_lshl_add_u32 v{vt}, v{vt+1}, 2, v{vt}')
        a(f'v_min_u32 v{vt+1}, 6, v{vt+1}'); a(f'v_lshlrev_b32 v{vt+1}, 9, v{vt+1}')
        a('s_and_b32 s40, s23, 3'); a('s_lshl_b32 s40, s40, 7'); a('s_lshr_b32 s41, s23, 2'); a('s_lshl_b32 s42, s25, 2'); a('s_add_u32 s41, s41, s42'); a('s_lshl_b32 s41, s41, 2'); a('s_add_u32 s40, s40, s41')
        a(f'v_add_u32 v{vt+1}, s40, v{vt+1}')
        a('v_cmp_gt_u32 vcc, 32, v0'); a(f'v_cndmask_b32 v{vt}, v{vt+1}, v{vt}, vcc'); a(f'v_add_u32 v{vt}, 0x2000, v{vt}')
        if late and krot:
            a(f'v_and_b32 v{vt+1}, 3, v0'); a(f'v_min_u32 v{vt+1}, 2, v{vt+1}'); a(f'v_add_u32 v{vt+1}, 4, v{vt+1}'); a(f'v_lshlrev_b32 v{vt+1}, 9, v{vt+1}')
            a('s_add_u32 s40, s40, 0x2000'); a(f'v_add_u32 v{ve}, s40, v{vt+1}')
        elif late:
            a(f'v_and_b32 v{vt+1}, 7, v0'); a(f'v_min_u32 v{vt+1}, 6, v{vt+1}'); a(f'v_lshlrev_b32 v{vt+1}, 9, v{vt+1}')
            a('s_add_u32 s40, s40, 0x2000'); a(f'v_add_u32 v{ve}, s40, v{vt+1}')
        else: a(f'v_mov_b32 v{ve}, v{vt}')
        if not noj2: a('s_cmp_lg_u32 s35, 0'); a('s_cbranch_scc1 L_g2p_done')
        a('s_mov_b32 s42, 0')
        a.label('L_g2poll')
        a(f'buffer_load_dword v{vt+1}, v{ve}, s[96:99], 0 offen sc1')
        a('s_waitcnt vmcnt(0)')
        a(f'v_cmp_eq_u32 vcc, 1, v{vt+1}')
        a('s_cmp_eq_u64 vcc, -1'); a('s_cbranch_scc1 L_g2p_done')
        if DSLEEP: a(f's_sleep {DSLEEP}')
        a('s_add_u32 s42, s42, 1'); a('s_cmp_lt_u32 s42, 0x8000'); a('s_cbranch_scc1 L_g2poll')
        a.label('L_g2p_done')
        a('s_barrier')
    def probe(a):
        a(f'buffer_load_dword v{PR["vt"]+1}, v{PR["vt"]}, s[96:99], 0 offen sc1')
    def check(a):
        vt = PR['vt']
        a('s_mov_b32 s42, 0'); a('s_branch L_g2pc')
        a.label('L_g2ps')
        if csleep: a(f's_sleep {csleep}')
        a(f'buffer_load_dword v{vt+1}, v{vt}, s[96:99], 0 offen sc1')
        a('s_waitcnt vmcnt(0)')
        a.label('L_g2pc')
        a(f'v_cmp_eq_u32 vcc, 1, v{vt+1}')
        a('s_cmp_eq_u64 vcc, -1'); a('s_cbranch_scc1 L_g2pok')
        a('s_add_u32 s42, s42, 1'); a('s_cmp_lt_u32 s42, 0x8000'); a('s_cbranch_scc1 L_g2ps')
        a.label('L_g2pok')
    g2opt = dict(g2opt or {})
    if late:
        late = dict(late); late.update(probe=probe, check=check); g2opt.update(late=late, krot=krot, SIG=late['SIG'])
    d = dict(BM=128, BN=128, WM=2, WN=2, K=1792, S=4, NSUB=1, pitchA=HP.pitch, pitchW=2048, dbufA=True); d.update(g2kw or {})
    cfg2 = G16(**d)
    nv2, l2 = gen_g2s(a, 'g2', cfg2, stamp, fused=g2poll, **(g2opt or {}))
    return 256, max(FUSED_LDS, l2)
```

```python
from asm import *

class G16:
    def __init__(s, **kw):
        s.BM=128; s.BN=256; s.WM=1; s.WN=4; s.K=1024; s.S=3; s.NSUB=1; s.pitchA=2048; s.pitchW=7168
        s.NL=4; s.dbufA=False; s.prio=0; s.lds0=0
        s.noload=False; s.nomfma=False; s.a0first=False; s.maxper0=1; s.bat=None; s.maxperb=2; s.nords=False; s.kstatic=''; s.vmcut=0; s.nobar=False; s.unroll=1; s.noadv=False
        s.__dict__.update(kw)
        s.TM = s.BM//s.WM//16; s.TN = s.BN//s.WN//16
        s.NC = s.WM*s.WN
        s.RB = s.BN*2
        s.A_BYTES = s.BM*128; s.W_BYTES = 64*s.RB
        s.SUB = s.A_BYTES + s.W_BYTES
        s.STAGE = s.SUB*s.NSUB
        s.nA = s.A_BYTES//1024; s.nW = s.W_BYTES//1024
        assert s.nA % s.NL == 0 and s.nW % s.NL == 0, (s.nA, s.nW, s.NL)
        s.PA = s.nA//s.NL; s.PW = s.nW//s.NL; s.P = (s.PA+s.PW)*s.NSUB
        s.NST = s.K//(64*s.NSUB)
        assert s.NST*64*s.NSUB == s.K
        s.LDS = s.S*s.STAGE
        s.NSTEP = 2*s.NSUB

S_STG, S_NEG = 43, 44
def emit_consts(a, cfg):
    a(f's_mov_b32 s{S_STG}, {cfg.STAGE}')
    a(f's_mov_b32 s{S_NEG}, {hex((-(cfg.S-1)*cfg.STAGE) & 0xffffffff)}')

def w_mask_code(a, cfg, vk, dst, t):
    if cfg.RB >= 256:
        a(f'v_and_b32 v{dst}, 3, v{vk}')
        a(f'v_lshrrev_b32 v{t}, 1, v{vk}'); a(f'v_and_b32 v{t}, 4, v{t}')
        a(f'v_or_b32 v{dst}, v{dst}, v{t}')
        a(f'v_lshlrev_b32 v{dst}, 1, v{dst}')
    else:
        a(f'v_and_b32 v{dst}, 2, v{vk}')
        a(f'v_lshrrev_b32 v{t}, 1, v{vk}'); a(f'v_and_b32 v{t}, 4, v{t}')
        a(f'v_or_b32 v{dst}, v{dst}, v{t}')

def emit_loader_setup(a, cfg, R, vlane, s_lw, s_m0row_bytes, s_n0_bytes, tmp, s_rowxor=None):
    t0, t1, t2, t3 = tmp
    vA = [R.alloc(name=f'vA{i}') for i in range(cfg.PA)]
    vW = [R.alloc(name=f'vW{i}') for i in range(cfg.PW)]
    for i in range(cfg.PA):
        a(f's_mul_i32 s40, {s_lw}, {8*cfg.PA}')
        a(f's_add_u32 s40, s40, {8*i}')
        a(f'v_lshrrev_b32 v{t0}, 3, v{vlane}')
        a(f'v_add_u32 v{t0}, s40, v{t0}')
        a(f'v_lshrrev_b32 v{t1}, 1, v{t0}')
        a(f'v_xor_b32 v{t1}, v{t1}, v{vlane}')
        a(f'v_and_b32 v{t1}, 7, v{t1}')
        a(f'v_lshlrev_b32 v{t1}, 4, v{t1}')
        if s_rowxor: a(f'v_xor_b32 v{t0}, {s_rowxor}, v{t0}')
        a(f's_mov_b32 s41, {cfg.pitchA}')
        a(f'v_mul_lo_u32 v{t0}, v{t0}, s41')
        a(f'v_add3_u32 v{vA[i]}, v{t0}, v{t1}, {s_m0row_bytes}')
    cpr = cfg.RB//16; rpp = 64//cpr if cpr <= 64 else None
    sh = cpr.bit_length()-1
    for i in range(cfg.PW):
        a(f's_mul_i32 s40, {s_lw}, {rpp*cfg.PW}')
        a(f's_add_u32 s40, s40, {rpp*i}')
        a(f'v_lshrrev_b32 v{t0}, {sh}, v{vlane}')
        a(f'v_add_u32 v{t0}, s40, v{t0}')
        w_mask_code(a, cfg, t0, t1, t3)
        a(f'v_and_b32 v{t2}, {cpr-1}, v{vlane}')
        a(f'v_xor_b32 v{t1}, v{t1}, v{t2}')
        a(f'v_lshlrev_b32 v{t1}, 4, v{t1}')
        a(f's_mov_b32 s41, {cfg.pitchW}')
        a(f'v_mul_lo_u32 v{t0}, v{t0}, s41')
        a(f'v_add3_u32 v{vW[i]}, v{t0}, v{t1}, {s_n0_bytes}')
    return vA, vW

def stage_load_list(cfg, vA, vW, srdA, srdW, s_kA, s_kW, s_lds, s_tmp):
    out = []
    for sub in range(cfg.NSUB):
        sa, sw = s_kA, s_kW
        pre = []
        if sub:
            pre = [f's_add_u32 s{s_tmp}, s{s_kA}, {128*sub}', f's_add_u32 s{s_tmp+1}, s{s_kW}, {64*cfg.pitchW*sub}']
            sa, sw = s_tmp, s_tmp+1
        for i in range(cfg.PA):
            out.append(pre + [f's_add_u32 m0, s{s_lds}, {sub*cfg.SUB + i*1024}', 's_nop 0',
                        f'buffer_load_dwordx4 v{vA[i]}, s[{srdA}:{srdA+3}], s{sa} offen lds']); pre = []
        for i in range(cfg.PW):
            out.append([f's_add_u32 m0, s{s_lds+1}, {sub*cfg.SUB + i*1024}', 's_nop 0',
                        f'buffer_load_dwordx4 v{vW[i]}, s[{srdW}:{srdW+3}], s{sw} offen lds'])
    return out

def emit_loader_loop(a, cfg, vA, vW, srdA, srdW, s_kA, s_kW, s_lds, s_it, s_stage, s_tmp, tag, tail_loads=None, after_pro=None, post_bar=None, pre_last=None, extra=None, extra_pro=None, pro_done=0, krot=False, wait_hook=None, tail0=None, tail1=None):
    def adv():
        if 'A' not in cfg.kstatic: a(f's_add_u32 s{s_kA}, s{s_kA}, {128*cfg.NSUB}')
        if 'W' not in cfg.kstatic: a(f's_add_u32 s{s_kW}, s{s_kW}, {64*cfg.pitchW*cfg.NSUB}')
        if krot:
            a(f's_cmp_eq_u32 s{s_kA}, {cfg.K*2}'); a(f's_cselect_b32 s{s_kA}, 0, s{s_kA}'); a(f's_cselect_b32 s{s_kW}, 0, s{s_kW}')
        a(f's_add_u32 s{s_stage}, s{s_stage}, 1')
        a(f's_cmp_eq_u32 s{s_stage}, {cfg.S}')
        a(f's_cselect_b32 s42, s{S_NEG}, s{S_STG}')
        a(f's_cselect_b32 s{s_stage}, 0, s{s_stage}')
        a(f's_add_u32 s{s_lds}, s{s_lds}, s42'); a(f's_add_u32 s{s_lds+1}, s{s_lds+1}, s42')
    def loads(force=False):
        if cfg.noload and not force: return
        for g in stage_load_list(cfg, vA, vW, srdA, srdW, s_kA, s_kW, s_lds, s_tmp):
            for x in g: a(x)
    a(f's_mov_b32 s{s_stage}, 0')
    E = 1 if (extra and not getattr(extra, 'uncounted', False)) else 0
    npro = 0
    for i in range(cfg.S-1 + (1 if cfg.noload else 0)):
        if i >= pro_done: loads(True)
        adv()
    if extra_pro: npro = extra_pro(a)
    if cfg.noload: a('s_waitcnt vmcnt(0)')
    if after_pro: after_pro(a)
    n_main = cfg.NST - (cfg.S-1)
    a(f's_mov_b32 s{s_it}, 0')
    a(f'L_load_{tag}:')
    if wait_hook: wait_hook(a, (cfg.S-2-cfg.vmcut)*cfg.P + (cfg.S-1)*E)
    else: a(f's_waitcnt vmcnt({min(63,(cfg.S-2-cfg.vmcut)*cfg.P + (cfg.S-1)*E)})')
    if cfg.nobar:
        a(f's_cmp_lg_u32 s{s_it}, 0'); a(f's_cbranch_scc1 L_nb_{tag}'); a('s_barrier'); a(f'L_nb_{tag}:')
    else: a('s_barrier')
    if post_bar: post_bar(a)
    loads(); adv()
    if extra: extra(a)
    a(f's_add_u32 s{s_it}, s{s_it}, 1')
    a(f's_cmp_lt_u32 s{s_it}, {n_main}')
    a(f's_cbranch_scc1 L_load_{tag}')
    nx = 0
    if tail_loads: nx = tail_loads(a)
    for i in range(cfg.S-1):
        if tail1 and i == 1: tail1(a)
        a(f's_waitcnt vmcnt({min(63,(cfg.S-2-i)*cfg.P + nx + (cfg.S-1-i)*E)})')
        if tail0 and i == 0: tail0(a)
        if pre_last and i == cfg.S-2: pre_last(a)
        if not cfg.nobar: a('s_barrier')

def emit_consumer_addr(a, cfg, R, vlane, s_wm, s_wn, tmp):
    t0, t1, t2, t3 = tmp
    vRA = [R.alloc(name=f'vRA{ks}') for ks in range(2)]
    vRW = [R.alloc(name=f'vRW{t}') for t in range(cfg.TN)]
    a(f'v_and_b32 v{t0}, 15, v{vlane}')
    a(f's_mul_i32 s40, {s_wm}, {cfg.TM*16}')
    a(f'v_add_u32 v{t0}, s40, v{t0}')
    a(f'v_lshrrev_b32 v{t1}, 1, v{t0}')
    a(f'v_and_b32 v{t1}, 7, v{t1}')
    a(f'v_lshrrev_b32 v{t2}, 4, v{vlane}')
    a(f'v_xor_b32 v{t1}, v{t1}, v{t2}')
    a(f'v_lshlrev_b32 v{t0}, 7, v{t0}')
    if cfg.lds0: a(f'v_add_u32 v{t0}, {cfg.lds0}, v{t0}')
    for ks in range(2):
        a(f'v_xor_b32 v{t2}, {4*ks}, v{t1}')
        a(f'v_lshl_add_u32 v{vRA[ks]}, v{t2}, 4, v{t0}')
    a(f'v_lshrrev_b32 v{t0}, 2, v{vlane}'); a(f'v_and_b32 v{t0}, 3, v{t0}')
    a(f'v_lshrrev_b32 v{t2}, 4, v{vlane}'); a(f'v_lshl_add_u32 v{t0}, v{t2}, 3, v{t0}')
    w_mask_code(a, cfg, t0, t1, t3)
    a(f's_mov_b32 s41, {cfg.RB}'); a(f'v_mul_lo_u32 v{t0}, v{t0}, s41')
    a(f'v_and_b32 v{t2}, 1, v{vlane}'); a(f'v_lshl_add_u32 v{t0}, v{t2}, 3, v{t0}')
    a(f'v_add_u32 v{t0}, {cfg.A_BYTES + cfg.lds0}, v{t0}')
    a(f'v_lshrrev_b32 v{t2}, 1, v{vlane}'); a(f'v_and_b32 v{t2}, 1, v{t2}')
    for t in range(cfg.TN):
        a(f's_mul_i32 s40, {s_wn}, {2*cfg.TN}'); a(f's_add_u32 s40, s40, {2*t}')
        a(f'v_add_u32 v{t3}, s40, v{t2}')
        a(f'v_xor_b32 v{t3}, v{t3}, v{t1}')
        a(f'v_lshl_add_u32 v{vRW[t]}, v{t3}, 4, v{t0}')
    return vRA, vRW

class LgkmTracker:
    def __init__(s, a): s.a = a; s.p = []
    def issue(s, line, tag): s.a(line); s.p.append(tag)
    def need(s, tags):
        idx = -1
        for t in tags:
            if t in s.p: idx = max(idx, len(s.p)-1 - s.p[::-1].index(t))
        if idx < 0: return
        n = len(s.p)-idx-1
        n = min(n, 15)
        s.a(f's_waitcnt lgkmcnt({n})')
        s.p = s.p[len(s.p)-n:] if n else []
    def all(s):
        if s.p: s.a('s_waitcnt lgkmcnt(0)')
        s.p = []

def consumer_regs(cfg, R):
    F = {}
    F['W'] = [R.alloc(4*cfg.TN, 4), R.alloc(4*cfg.TN, 4)]
    if cfg.dbufA: F['A'] = [R.alloc(4*cfg.TM, 4), R.alloc(4*cfg.TM, 4)]
    else:
        x = R.alloc(4*cfg.TM, 4); F['A'] = [x, x]
    F['acc'] = R.alloc(4*cfg.TM*cfg.TN, 4)
    return F

def step_reads(cfg, F, vRA, vRW, step, par):
    sub, ks = step//2, step & 1
    out = []
    so = sub*cfg.SUB
    for t in range(cfg.TN):
        for j in range(2):
            r = F['W'][par] + 4*t + 2*j
            off = so + (32*ks + 4*j)*cfg.RB
            out.append((f'ds_read_b64_tr_b16 v[{r}:{r+1}], v{vRW[t]} offset:{off}', ('W', par, t, j), -1))
    for mt in range(cfg.TM):
        r = F['A'][par] + 4*mt
        e = -1 if cfg.dbufA else (mt+1)*cfg.TN - 1
        out.append((f'ds_read_b128 v[{r}:{r+3}], v{vRA[ks]} offset:{so + mt*2048}', ('A', par if cfg.dbufA else 0, mt), e))
    if cfg.a0first and cfg.dbufA:
        nw = 2*cfg.TN
        out = [out[nw]] + out[:nw] + out[nw+1:]
    if cfg.nords: out = []
    return out

def emit_step(a, cfg, T, F, par, reads, barrier_at=None, pre_barrier=None, extra=None, maxper=1, post_barrier=None):
    acc = F['acc']; pend = list(reads); idx = 0
    extra = list(extra or [])
    valu = list(cfg.valu(F, par)) if getattr(cfg, 'valu', None) else []
    for mt in range(cfg.TM):
        for t in range(cfg.TN):
            if barrier_at is not None and idx == barrier_at:
                for x in extra: a(x)
                extra = []
                T.all()
                if pre_barrier:
                    for x in pre_barrier: a(x)
                if not cfg.nobar: a('s_barrier')
                for x in (post_barrier or []): a(x)
            T.need([('W', par, t, 0), ('W', par, t, 1), ('A', par if cfg.dbufA else 0, mt)])
            c = acc + 4*(mt*cfg.TN + t); w = F['W'][par] + 4*t; x = F['A'][par] + 4*mt
            if not cfg.nomfma:
                a(f'v_mfma_f32_16x16x32_bf16 v[{c}:{c+3}], v[{w}:{w+3}], v[{x}:{x+3}], v[{c}:{c+3}]')
            n = 0
            if barrier_at is None or idx >= barrier_at:
                k = 0
                while k < len(pend) and n < maxper:
                    if pend[k][2] <= idx:
                        T.issue(pend[k][0], pend[k][1]); pend.pop(k); n += 1
                    else: k += 1
            if n == 0 and extra: a(extra.pop(0))
            if valu and idx >= cfg.TN: a(valu.pop(0))
            idx += 1
    for p in pend: T.issue(p[0], p[1])
    for x in extra: a(x)
    assert not valu

def emit_consumer_loop(a, cfg, F, vRA, vRW, s_it, s_stage, s_delta, tag, pre_barrier=None, before_last=None, per_iter=None):
    NM = cfg.TM*cfg.TN
    T = LgkmTracker(a)
    a('s_barrier')
    if getattr(cfg,'stampfirst',False): a('s_memtime s[58:59]'); a('s_memrealtime s[52:53]'); a('s_waitcnt lgkmcnt(0)')
    if getattr(cfg,'stampb0',False): a('s_memtime s[58:59]'); a('s_memrealtime s[94:95]'); a('s_waitcnt lgkmcnt(0)')
    if getattr(cfg,'prio',0): a(f's_setprio {cfg.prio}')
    first = step_reads(cfg, F, vRA, vRW, 0, 0)
    for ln, tg, e in first: T.issue(ln, tg)
    entry = list(T.p)
    T.all()
    a(f's_mov_b32 s{s_it}, 0'); a(f's_mov_b32 s{s_stage}, 0')
    a(f'L_cons_{tag}:')
    if per_iter: per_iter(a)
    adv = [f'v_add_u32 v{r}, s{s_delta}, v{r}' for r in list(vRA)+list(vRW)] if not cfg.noadv else []
    def body(last):
        for step in range(cfg.NSTEP):
            par = step & 1
            if step < cfg.NSTEP-1:
                extra = []
                if step == 0 and not last:
                    extra = [f's_add_u32 s{s_stage}, s{s_stage}, 1', f's_cmp_eq_u32 s{s_stage}, {cfg.S}',
                             f's_cselect_b32 s{s_delta}, s{S_NEG}, s{S_STG}', f's_cselect_b32 s{s_stage}, 0, s{s_stage}']
                    for x in extra: a(x)
                emit_step(a, cfg, T, F, par, step_reads(cfg, F, vRA, vRW, step+1, par ^ 1), maxper=cfg.maxper0)
            elif last:
                emit_step(a, cfg, T, F, par, [])
            else:
                bat = NM//2 if not cfg.dbufA else max(1, NM//4)
                if cfg.bat is not None: bat = cfg.bat
                emit_step(a, cfg, T, F, par, step_reads(cfg, F, vRA, vRW, 0, par ^ 1), barrier_at=bat, extra=adv, maxper=cfg.maxperb, pre_barrier=pre_barrier)
    T.p = []
    start_state = None
    class Dry:
        def __call__(self, s): pass
    a_real = T.a
    T.a = Dry(); a_save = a
    def run(emit, last):
        nonlocal a
        a = emit; T.a = emit
        body(last)
    dry = Dry()
    T.p = []
    run(dry, False)
    st = list(T.p)
    run(dry, False)
    assert st == T.p, (st, T.p)
    T.p = list(st)
    run(a_save, False)
    a = a_save
    a(f's_add_u32 s{s_it}, s{s_it}, 1')
    a(f's_cmp_lt_u32 s{s_it}, {cfg.NST-1}')
    a(f's_cbranch_scc1 L_cons_{tag}')
    T.p = list(st)
    if before_last: before_last(a_save)
    run(a_save, True)

def stage_windows(cfg):
    win = []; bases = []
    for st in range(cfg.S):
        lo = st*cfg.STAGE
        if bases and lo + cfg.STAGE - bases[-1] <= 65536: win.append(len(bases)-1)
        else: bases.append(lo); win.append(len(bases)-1)
    return win, bases

def emit_consumer_addr2(a, cfg, R, vlane, s_wm, s_wn, tmp):
    vRA, vRW = emit_consumer_addr(a, cfg, R, vlane, s_wm, s_wn, tmp)
    win, bases = stage_windows(cfg)
    sets = [(vRA, vRW)]
    for b in bases[1:]:
        nA = [R.alloc() for _ in vRA]; nW = [R.alloc() for _ in vRW]
        for d, s_ in zip(nA + nW, list(vRA) + list(vRW)): a(f'v_add_u32 v{d}, {b}, v{s_}')
        sets.append((nA, nW))
    return sets

def step_reads2(cfg, F, sets, slot, step, par):
    win, bases = stage_windows(cfg)
    vRA, vRW = sets[win[slot]]
    base = slot*cfg.STAGE - bases[win[slot]]
    sub, ks = step//2, step & 1
    out = []
    so = base + sub*cfg.SUB
    for t in range(cfg.TN):
        for j in range(2):
            r = F['W'][par] + 4*t + 2*j
            off = so + (32*ks + 4*j)*cfg.RB
            assert off < 65536
            out.append((f'ds_read_b64_tr_b16 v[{r}:{r+1}], v{vRW[t]} offset:{off}', ('W', par, t, j), -1))
    for mt in range(cfg.TM):
        r = F['A'][par] + 4*mt
        e = -1 if cfg.dbufA else (mt+1)*cfg.TN - 1
        assert so + mt*2048 < 65536
        out.append((f'ds_read_b128 v[{r}:{r+3}], v{vRA[ks]} offset:{so + mt*2048}', ('A', par if cfg.dbufA else 0, mt), e))
    if cfg.a0first and cfg.dbufA:
        nw = 2*cfg.TN
        out = [out[nw]] + out[:nw] + out[nw+1:]
    if cfg.nords: out = []
    return out

def emit_consumer_loop2(a, cfg, F, sets, s_it, tag, nst=None, hooks=None):
    hooks = hooks or {}
    NST = nst or cfg.NST
    S = cfg.S; NM = cfg.TM*cfg.TN
    head = hooks.get('head')
    H = 1 if head else 0
    nloop = (NST-1-H)//S
    T = LgkmTracker(a)
    ool = []
    a('s_barrier')
    if getattr(cfg,'stampb0',False): a('s_memtime s[58:59]'); a('s_memrealtime s[94:95]'); a('s_waitcnt lgkmcnt(0)')
    if getattr(cfg,'prio',0): a(f's_setprio {cfg.prio}')
    for ln, tg, e in step_reads2(cfg, F, sets, 0, 0, 0): T.issue(ln, tg)
    if hooks.get('first'): hooks['first'](a)
    T.all()
    bat = NM//2 if not cfg.dbufA else max(1, NM//4)
    if cfg.bat is not None: bat = cfg.bat
    class Dry:
        def __call__(self, s): pass
    def stage(em, slot, last, pre=None, start=None, post=None, endstep=None):
        T.a = em
        if start: start(em)
        for step in range(cfg.NSTEP):
            par = step & 1
            if endstep and step: endstep(em, par ^ 1)
            if step < cfg.NSTEP-1:
                emit_step(em, cfg, T, F, par, step_reads2(cfg, F, sets, slot, step+1, par ^ 1), maxper=cfg.maxper0)
            elif last:
                emit_step(em, cfg, T, F, par, [])
            else:
                emit_step(em, cfg, T, F, par, step_reads2(cfg, F, sets, (slot+1) % S, 0, par ^ 1), barrier_at=bat, maxper=cfg.maxperb, pre_barrier=pre, post_barrier=post)
        if endstep: endstep(em, (cfg.NSTEP-1) & 1)
    T.p = []; stage(Dry(), 0, False); st = list(T.p); stage(Dry(), 1 % S, False); assert st == T.p
    pb = hooks.get('pre_bar', {}); ats = hooks.get('at_stage', {}); bh = hooks.get('bar', {})
    if H:
        T.p = list(st)
        b0 = bh.get(0)
        stage(a, 0, False, (list(b0[0]) if b0 else pb.get(0)), None, (list(b0[1]) if b0 else None), head)
    if nloop:
        a(f's_mov_b32 s{s_it}, 0')
        a(f'L_cons_{tag}:')
        T.p = list(st)
        for slot0 in range(S):
            slot = (slot0 + H) % S
            pre = None; start = None; post = None
            inl = lambda k: H <= k < H + nloop*S and k % S == slot
            idx = [k for k in bh if inl(k)]
            if idx:
                assert len(idx) == 1 and not [k for k in pb if inl(k)]
                k = idx[0]
                pre = [f's_cmp_eq_u32 s{s_it}, {(k-H)//S}', f's_cbranch_scc1 L_oolb{k}_{tag}']
                post = [f'L_retb{k}_{tag}:']
                ool.append([f'L_oolb{k}_{tag}:'] + list(bh[k][0]) + ['s_barrier'] + list(bh[k][1]) + [f's_branch L_retb{k}_{tag}'])
            idx = [k for k in pb if inl(k)]
            if idx:
                assert len(idx) == 1
                k = idx[0]
                pre = [f's_cmp_eq_u32 s{s_it}, {(k-H)//S}', f's_cbranch_scc1 L_ool{k}_{tag}', f'L_ret{k}_{tag}:']
                ool.append([f'L_ool{k}_{tag}:'] + list(pb[k]) + [f's_branch L_ret{k}_{tag}'])
            assert not [k for k in ats if inl(k)]
            stage(a, slot, False, pre, None, post)
        a(f's_add_u32 s{s_it}, s{s_it}, 1')
        a(f's_cmp_lt_u32 s{s_it}, {nloop}')
        a(f's_cbranch_scc1 L_cons_{tag}')
    T.p = list(st)
    for k in range(H + nloop*S, NST):
        stage(a, k % S, k == NST-1, pb.get(k), ats.get(k))
    return ool
```

```python
from asm import *
from gemm16 import *
from fft import WS_XN, WS_H, WS_S, WS_DBG, WS_XCH, WS_TAB, WS_FLG, WS_Y, ZP, ZBYTES, MF, cmul_pack
M=2048; F=3584; Dm=1024
ONT = ''
class HP:
    off = WS_H; pitch = F*2

def silu4(a, c, t, pk=True):
    a(f'v_pk_mul_f32 v[{t}:{t+1}], v[{c}:{c+1}], s[46:47]')
    a(f'v_pk_mul_f32 v[{t+2}:{t+3}], v[{c+2}:{c+3}], s[46:47]')
    for j in range(4): a(f'v_exp_f32 v{t+j}, v{t+j}')
    a(f'v_pk_add_f32 v[{t}:{t+1}], v[{t}:{t+1}], s[48:49]')
    a(f'v_pk_add_f32 v[{t+2}:{t+3}], v[{t+2}:{t+3}], s[48:49]')
    for j in range(4): a(f'v_rcp_f32 v{t+j}, v{t+j}')
    a(f'v_pk_mul_f32 v[{t}:{t+1}], v[{c}:{c+1}], v[{t}:{t+1}]')
    a(f'v_pk_mul_f32 v[{t+2}:{t+3}], v[{c+2}:{c+3}], v[{t+2}:{t+3}]')

def silu_consts(a):
    a('s_mov_b32 s46, 0xbfb8aa3b'); a('s_mov_b32 s47, 0xbfb8aa3b'); a('s_mov_b32 s48, 1.0'); a('s_mov_b32 s49, 1.0')

def stamp_begin(a):
    a('s_memrealtime s[52:53]'); a('s_memtime s[58:59]')
def stamp_mid(a):
    a('s_memrealtime s[54:55]'); a('s_memtime s[60:61]')
def stamp_out(a, endlabel, ws_pair=18, slot=0):
    a('s_waitcnt vmcnt(0)')
    a('s_memrealtime s[56:57]')
    a('s_waitcnt lgkmcnt(0)')
    a('s_cmp_lg_u32 s20, 0'); a(f's_cbranch_scc1 {endlabel}')
    srd_off(a, 12, ws_pair, WS_DBG + slot*0x4000, 0x4000)
    a('v_mov_b32 v10, s52'); a('v_mov_b32 v11, s53'); a('v_mov_b32 v12, s54'); a('v_mov_b32 v13, s55')
    a('s_lshl_b32 s40, s2, 5')
    a('s_sub_u32 s60, s60, s58'); a('v_mov_b32 v18, s60'); a('v_mov_b32 v19, 0'); a('v_mov_b32 v17, s57'); a('v_mov_b32 v16, s56'); a('v_mov_b32 v20, s40')
    a('v_cmp_eq_u32 vcc, 0, v0'); a('s_and_saveexec_b64 s[62:63], vcc')
    a('buffer_store_dwordx4 v[10:13], v20, s[12:15], 0 offen')
    a('buffer_store_dwordx4 v[16:19], v20, s[12:15], 0 offen offset:16')

def loader_part(a, cfg, tag, tmp, tail_loads=None, s_rowxor=None, pre=None, k0=0, **kw):
    a(f's_sub_u32 s35, s20, {cfg.NC}')
    Rl = Regs(5, 256)
    if pre: pre(a, Rl)
    vA, vW = emit_loader_setup(a, cfg, Rl, 0, 's35', 's26', 's27', tmp, s_rowxor)
    a(f's_mov_b32 s28, {k0*128}'); a(f's_mov_b32 s29, {k0*64*cfg.pitchW}')
    a(f's_mul_i32 s30, s35, {cfg.PA*1024}')
    a(f's_mul_i32 s31, s35, {cfg.PW*1024}'); a(f's_add_u32 s31, s31, {cfg.A_BYTES}')
    emit_loader_loop(a, cfg, vA, vW, 4, 8, 28, 29, 30, 32, 33, 38, tag, tail_loads, **kw)
    a('s_endpgm')

def gen_g1(a, tag, cfg, stamp=False, prefetch_w2=True, sentinel=False, hsc='', cprefetch=False, unroll=False):
    a('s_load_dwordx2 s[16:17], s[0:1], 32')
    a('s_load_dwordx2 s[18:19], s[0:1], 64')
    if stamp: stamp_begin(a)
    a('v_lshrrev_b32 v1, 6, v0'); a('v_and_b32 v0, 63, v0'); a('v_readfirstlane_b32 s20, v1')
    a('s_and_b32 s21, s2, 7'); a('s_lshr_b32 s22, s2, 3')
    a('s_and_b32 s23, s21, 3'); a('s_lshl_b32 s23, s23, 2'); a('s_and_b32 s24, s22, 3'); a('s_add_u32 s23, s23, s24')
    a('s_lshr_b32 s24, s21, 2'); a('s_mul_i32 s24, s24, 7'); a('s_lshr_b32 s25, s22, 2'); a('s_add_u32 s24, s24, s25')
    a(f's_mul_i32 s26, s23, {cfg.BM*cfg.pitchA}')
    a(f's_mul_i32 s27, s24, {cfg.BN*2}')
    a('s_waitcnt lgkmcnt(0)')
    srd_off(a, 4, 18, WS_XN, M*Dm*2)
    srd(a, 8, 16, Dm*F*2)
    emit_consts(a, cfg)
    tmp = [1,2,3,4]
    a(f's_cmp_ge_u32 s20, {cfg.NC}')
    a(f's_cbranch_scc1 L_loader_{tag}')
    srd_off(a, 12, 18, HP.off, M*HP.pitch)
    a(f's_and_b32 s37, s20, {cfg.WN-1}')
    a(f's_lshr_b32 s36, s20, {cfg.WN.bit_length()-1}')
    Rc = Regs(5, 256)
    per_iter = None
    if cprefetch or sentinel == 'c':
        vD = Rc.alloc(); vL = Rc.alloc()
        a('s_lshl_b32 s66, s2, 2'); a('s_add_u32 s66, s66, s20')
    if cprefetch:
        a('s_load_dwordx2 s[64:65], s[0:1], 40')
        a(f'v_lshlrev_b32 v{vL}, 6, v0'); a('s_lshl_b32 s40, s66, 13')
        a('s_waitcnt lgkmcnt(0)')
        srd(a, 68, 64, F*Dm*2)
        a(f'buffer_load_dword v{vD}, v{vL}, s[68:71], s40 offen')
        a('s_add_u32 s40, s40, 4096')
        a(f'buffer_load_dword v{vD}, v{vL}, s[68:71], s40 offen')
    if sentinel == 'c':
        SE = Rc.alloc(4, 4)
        srd_off(a, 72, 18, WS_XCH, 0x800000)
        for i in range(4): a(f'v_mov_b32 v{SE+i}, -1')
        a(f'v_lshlrev_b32 v{vL}, 4, v0'); a('s_lshl_b32 s67, s66, 10')
        def per_iter(a):
            a(f'buffer_store_dwordx4 v[{SE}:{SE+3}], v{vL}, s[72:75], s67 offen sc1')
            a(f's_add_u32 s67, s67, {896*1024}')
    if unroll: sets = emit_consumer_addr2(a, cfg, Rc, 0, 's36', 's37', tmp)
    else: vRA, vRW = emit_consumer_addr(a, cfg, Rc, 0, 's36', 's37', tmp)
    Fr = consumer_regs(cfg, Rc)
    acc = Fr['acc']
    for i in range(4*cfg.TM*cfg.TN): a(f'v_mov_b32 v{acc+i}, 0')
    if unroll: emit_consumer_loop2(a, cfg, Fr, sets, 32, tag)
    else: emit_consumer_loop(a, cfg, Fr, vRA, vRW, 32, 33, 34, tag, per_iter=per_iter)
    if stamp: stamp_mid(a)
    vO = tmp[0]
    silu_consts(a)
    a(f'v_and_b32 v{tmp[1]}, 15, v0')
    a(f's_mul_i32 s40, s23, {cfg.BM}'); a(f's_mul_i32 s41, s36, {cfg.TM*16}'); a('s_add_u32 s40, s40, s41')
    a(f'v_add_u32 v{tmp[1]}, s40, v{tmp[1]}')
    a(f's_mov_b32 s41, {HP.pitch}')
    a(f'v_mul_lo_u32 v{vO}, v{tmp[1]}, s41')
    a(f'v_lshrrev_b32 v{tmp[1]}, 4, v0'); a(f'v_and_b32 v{tmp[2]}, 1, v{tmp[1]}'); a(f'v_lshl_add_u32 v{vO}, v{tmp[2]}, 5, v{vO}')
    a(f'v_lshrrev_b32 v{tmp[1]}, 5, v0'); a(f'v_lshl_add_u32 v{vO}, v{tmp[1]}, 4, v{vO}')
    a(f's_mul_i32 s40, s37, {cfg.TN*32}'); a('s_add_u32 s40, s40, s27')
    a(f'v_add_u32 v{vO}, s40, v{vO}')
    st = Fr['W'][0]; k = 0; ndst = 3; tb = st + 4*ndst
    for mt in range(cfg.TM):
        for tp in range(cfg.TN//2):
            d = st + (k % ndst)*4; tt = tb + (k % 2)*8; k += 1
            c0 = acc + 4*(mt*cfg.TN + 2*tp); c1 = c0 + 4
            silu4(a, c0, tt); silu4(a, c1, tt+4)
            for j in range(4): a(f'v_cvt_pk_bf16_f32 v{d+j}, v{tt+2*j}, v{tt+2*j+1}')
            a(f'v_permlane16_swap_b32 v{d}, v{d+2}')
            a(f'v_permlane16_swap_b32 v{d+1}, v{d+3}')
            a(f's_mov_b32 s40, {mt*16*HP.pitch}')
            a(f'buffer_store_dwordx4 v[{d}:{d+3}], v{vO}, s[12:15], s40 offen offset:{tp*64}{hsc}')
    if stamp: stamp_out(a, f'L_g1end_{tag}', 18, 0)
    a.label(f'L_g1end_{tag}')
    a('s_endpgm')
    a.label(f'L_loader_{tag}')
    def pf(a):
        a('s_load_dwordx2 s[64:65], s[0:1], 40')
        a('s_lshl_b32 s40, s2, 2'); a('s_add_u32 s40, s40, s35'); a('s_lshl_b32 s40, s40, 13')
        a(f's_lshl_b32 s41, s35, 10'); a(f's_add_u32 m0, s41, {cfg.LDS}')
        a('v_lshlrev_b32 v1, 4, v0')
        a('s_waitcnt lgkmcnt(0)')
        srd(a, 68, 64, F*Dm*2)
        for i in range(8):
            a(f'buffer_load_dwordx4 v1, s[68:71], s40 offen offset:{1024*(i & 3)} lds')
            if i == 3: a('s_add_u32 s40, s40, 4096')
        if sentinel is not True: return 8
        srd_off(a, 72, 18, WS_XCH, 0x800000)
        for i in range(4): a(f'v_mov_b32 v{8+i}, -1')
        a('s_lshl_b32 s40, s2, 2'); a('s_add_u32 s40, s40, s35'); a('s_mul_i32 s40, s40, 10240')
        for i in range(10):
            a(f'buffer_store_dwordx4 v[8:11], v1, s[72:75], s40 offen offset:{1024*(i & 3)} sc1')
            if i & 3 == 3: a('s_add_u32 s40, s40, 4096')
        return 18
    if sentinel == 'f':
        X = {}
        def pre(a, Rl):
            X['d'] = Rl.alloc(); X['l'] = Rl.alloc(); X['z'] = Rl.alloc()
            a('s_load_dwordx2 s[64:65], s[0:1], 40')
            a('s_lshl_b32 s66, s2, 2'); a('s_add_u32 s66, s66, s35')
            a(f'v_lshlrev_b32 v{X["l"]}, 6, v0'); a(f'v_mov_b32 v{X["z"]}, 0')
            srd_off(a, 72, 18, WS_FLG, 0x10000)
            a('s_waitcnt lgkmcnt(0)')
            srd(a, 68, 64, F*Dm*2)
        def tail(a):
            a('s_lshl_b32 s40, s66, 13')
            a(f'buffer_load_dword v{X["d"]}, v{X["l"]}, s[68:71], s40 offen')
            a('s_add_u32 s40, s40, 4096')
            a(f'buffer_load_dword v{X["d"]}, v{X["l"]}, s[68:71], s40 offen')
            a('s_lshl_b32 s40, s66, 12')
            a(f'buffer_store_dword v{X["z"]}, v{X["l"]}, s[72:75], s40 offen')
            return 3
        loader_part(a, cfg, tag, tmp, tail, pre=pre)
    elif sentinel == 'l':
        X = {}
        def pre(a, Rl):
            X['d'] = Rl.alloc(); X['l'] = Rl.alloc(); X['m'] = Rl.alloc(); X['se'] = Rl.alloc(4, 4)
            a('s_load_dwordx2 s[64:65], s[0:1], 40')
            a('s_lshl_b32 s66, s2, 2'); a('s_add_u32 s66, s66, s35')
            a(f'v_lshlrev_b32 v{X["l"]}, 6, v0'); a(f'v_lshlrev_b32 v{X["m"]}, 4, v0')
            for i in range(4): a(f'v_mov_b32 v{X["se"]+i}, -1')
            srd_off(a, 72, 18, WS_XCH, 0x800000)
            a('s_lshl_b32 s67, s66, 10')
            a('s_waitcnt lgkmcnt(0)')
            srd(a, 68, 64, F*Dm*2)
        def extra_pro(a):
            a('s_lshl_b32 s40, s66, 13')
            a(f'buffer_load_dword v{X["d"]}, v{X["l"]}, s[68:71], s40 offen')
            a('s_add_u32 s40, s40, 4096')
            a(f'buffer_load_dword v{X["d"]}, v{X["l"]}, s[68:71], s40 offen')
            return 2
        def extra(a):
            a(f'buffer_store_dwordx4 v[{X["se"]}:{X["se"]+3}], v{X["m"]}, s[72:75], s67 offen sc1')
            a(f's_add_u32 s67, s67, {896*1024}')
        loader_part(a, cfg, tag, tmp, None, pre=pre, extra=extra, extra_pro=extra_pro)
    else:
        loader_part(a, cfg, tag, tmp, pf if prefetch_w2 else None)
    return Rc.p, cfg.LDS + (8192 if prefetch_w2 and sentinel not in ('l','f') else 0)

def gen_g2(a, tag, cfg, stamp=False):
    a('s_load_dwordx4 s[16:19], s[0:1], 40')
    a('s_load_dwordx2 s[64:65], s[0:1], 64')
    a('s_load_dwordx2 s[66:67], s[0:1], 0')
    if stamp: stamp_begin(a)
    a('v_lshrrev_b32 v1, 6, v0'); a('v_and_b32 v0, 63, v0'); a('v_readfirstlane_b32 s20, v1')
    a('s_and_b32 s21, s2, 7'); a('s_lshr_b32 s22, s2, 3')
    a('s_and_b32 s23, s21, 3'); a('s_lshl_b32 s23, s23, 2'); a('s_and_b32 s24, s22, 3'); a('s_add_u32 s23, s23, s24')
    a('s_lshr_b32 s24, s21, 2'); a('s_lshl_b32 s24, s24, 3'); a('s_lshr_b32 s25, s22, 2'); a('s_add_u32 s24, s24, s25')
    a(f's_mul_i32 s26, s23, {cfg.BM*cfg.pitchA}')
    a(f's_mul_i32 s27, s24, {cfg.BN*2}')
    a('s_waitcnt lgkmcnt(0)')
    srd_off(a, 4, 64, HP.off, M*HP.pitch)
    srd(a, 8, 16, F*Dm*2)
    emit_consts(a, cfg)
    tmp = [1,2,3,4]
    a(f's_cmp_ge_u32 s20, {cfg.NC}')
    a(f's_cbranch_scc1 L_loader_{tag}')
    srd(a, 12, 18, M*Dm*2)
    srd(a, 68, 66, M*Dm*2)
    srd_off(a, 72, 64, WS_S, M*Dm*2)
    a(f's_and_b32 s37, s20, {cfg.WN-1}')
    a(f's_lshr_b32 s36, s20, {cfg.WN.bit_length()-1}')
    Rc = Regs(5, 256)
    vO = Rc.alloc()
    a(f'v_and_b32 v{tmp[1]}, 15, v0')
    a(f's_mul_i32 s40, s23, {cfg.BM}'); a(f's_mul_i32 s41, s36, {cfg.TM*16}'); a('s_add_u32 s40, s40, s41')
    a(f'v_add_u32 v{tmp[1]}, s40, v{tmp[1]}')
    a(f'v_lshlrev_b32 v{vO}, 11, v{tmp[1]}')
    a(f'v_lshrrev_b32 v{tmp[1]}, 4, v0'); a(f'v_and_b32 v{tmp[2]}, 1, v{tmp[1]}'); a(f'v_lshl_add_u32 v{vO}, v{tmp[2]}, 5, v{vO}')
    a(f'v_lshrrev_b32 v{tmp[1]}, 5, v0'); a(f'v_lshl_add_u32 v{vO}, v{tmp[1]}, 4, v{vO}')
    a(f's_mul_i32 s40, s37, {cfg.TN*32}'); a('s_add_u32 s40, s40, s27')
    a(f'v_add_u32 v{vO}, s40, v{vO}')
    NP = cfg.TM*(cfg.TN//2)
    XR = Rc.alloc(4*NP, 4); SR = Rc.alloc(4*NP, 4)
    k = 0
    for mt in range(cfg.TM):
        for tp in range(cfg.TN//2):
            a(f's_mov_b32 s40, {mt*16*2048}')
            a(f'buffer_load_dwordx4 v[{XR+4*k}:{XR+4*k+3}], v{vO}, s[68:71], s40 offen offset:{tp*64}')
            a(f'buffer_load_dwordx4 v[{SR+4*k}:{SR+4*k+3}], v{vO}, s[72:75], s40 offen offset:{tp*64}')
            k += 1
    vRA, vRW = emit_consumer_addr(a, cfg, Rc, 0, 's36', 's37', tmp)
    Fr = consumer_regs(cfg, Rc)
    acc = Fr['acc']
    for i in range(4*cfg.TM*cfg.TN): a(f'v_mov_b32 v{acc+i}, 0')
    emit_consumer_loop(a, cfg, Fr, vRA, vRW, 32, 33, 34, tag)
    if stamp: stamp_mid(a)
    silu_consts(a)
    T = Rc.alloc(16, 4)
    a('s_waitcnt vmcnt(0)')
    k = 0
    for mt in range(cfg.TM):
        for tp in range(cfg.TN//2):
            x = XR + 4*k; s = SR + 4*k; k += 1
            a(f'v_permlane16_swap_b32 v{x}, v{x+2}'); a(f'v_permlane16_swap_b32 v{x+1}, v{x+3}')
            a(f'v_permlane16_swap_b32 v{s}, v{s+2}'); a(f'v_permlane16_swap_b32 v{s+1}, v{s+3}')
            for tt in range(2):
                c = acc + 4*(mt*cfg.TN + 2*tp + tt); g = T + 4*tt; u = T + 8
                silu4(a, c, g)
                for j in range(2):
                    a(f'v_lshlrev_b32 v{u+2*j}, 16, v{s+2*tt+j}'); a(f'v_and_b32 v{u+2*j+1}, 0xffff0000, v{s+2*tt+j}')
                    a(f'v_lshlrev_b32 v{u+4+2*j}, 16, v{x+2*tt+j}'); a(f'v_and_b32 v{u+4+2*j+1}, 0xffff0000, v{x+2*tt+j}')
                for j in range(2):
                    a(f'v_pk_fma_f32 v[{g+2*j}:{g+2*j+1}], v[{u+2*j}:{u+2*j+1}], v[{g+2*j}:{g+2*j+1}], v[{u+4+2*j}:{u+4+2*j+1}]')
                for j in range(2):
                    a(f'v_cvt_pk_bf16_f32 v{x+2*tt+j}, v{g+2*j}, v{g+2*j+1}')
            a(f'v_permlane16_swap_b32 v{x}, v{x+2}'); a(f'v_permlane16_swap_b32 v{x+1}, v{x+3}')
            a(f's_mov_b32 s40, {mt*16*2048}')
            a(f'buffer_store_dwordx4 v[{x}:{x+3}], v{vO}, s[12:15], s40 offen offset:{tp*64}')
    if stamp: stamp_out(a, f'L_g2end_{tag}', 64, 1)
    a.label(f'L_g2end_{tag}')
    a('s_endpgm')
    a.label(f'L_loader_{tag}')
    loader_part(a, cfg, tag, tmp)
    return Rc.p, cfg.LDS


def gen_g2s(a, tag, cfg, stamp=False, l2pf=0, SIG=18, mark=False, nopre=False, unroll=False, flags=False, fused=None, late=None, krot=0, hk=None):
    assert cfg.BM == 128 and cfg.BN == 128 and cfg.WM == 2 and cfg.WN == 2 and cfg.S == 4 and cfg.NSUB == 1
    TILE = 3*cfg.STAGE; TAB = TILE + 16384; NYQ = cfg.LDS
    if late: TILE = cfg.LDS; TAB = TILE + 16384
    a('s_load_dwordx4 s[16:19], s[0:1], 40')
    a('s_load_dwordx4 s[84:87], s[0:1], 56')
    a('s_load_dwordx2 s[66:67], s[0:1], 0')
    if stamp: a('s_memrealtime s[52:53]'); cfg.stampb0 = True
    if not fused: a('v_lshrrev_b32 v1, 6, v0'); a('v_and_b32 v0, 63, v0'); a('v_readfirstlane_b32 s20, v1')
    a('s_and_b32 s21, s2, 7'); a('s_lshr_b32 s22, s2, 3')
    a('s_lshr_b32 s25, s21, 2')
    a('s_and_b32 s23, s21, 3'); a('s_lshl_b32 s23, s23, 2'); a('s_and_b32 s24, s22, 3'); a('s_add_u32 s23, s23, s24')
    a('s_lshr_b32 s24, s22, 2')
    a(f's_mul_i32 s26, s23, {cfg.BM*cfg.pitchA}'); a(f's_mul_i32 s40, s25, {cfg.K*2}'); a('s_add_u32 s26, s26, s40')
    a(f's_mul_i32 s27, s24, {cfg.BN*2}'); a(f's_mul_i32 s40, s25, {cfg.K*cfg.pitchW}'); a('s_add_u32 s27, s27, s40')
    a('s_lshr_b32 s88, s23, 1')
    a('s_lshl_b32 s89, s25, 4'); a('s_and_b32 s40, s23, 1'); a('s_lshl_b32 s40, s40, 3'); a('s_add_u32 s89, s89, s40'); a('s_add_u32 s89, s89, s24')
    a('s_waitcnt lgkmcnt(0)')
    a('s_mov_b32 s64, s86'); a('s_mov_b32 s65, s87')
    srd_off(a, 4, 64, HP.off, M*HP.pitch)
    srd(a, 8, 16, F*Dm*2)
    emit_consts(a, cfg)
    srd(a, 80, 84, 256)
    tmp = [1,2,3,4]
    a(f's_cmp_ge_u32 s20, {cfg.NC}')
    a(f's_cbranch_scc1 L_loader_{tag}')
    srd(a, 12, 18, M*Dm*2)
    srd(a, 68, 66, M*Dm*2)
    srd_off(a, 72, 64, WS_S, M*Dm*2)
    srd_off(a, 76, 64, WS_XCH, 0x800000)
    a(f's_and_b32 s37, s20, {cfg.WN-1}')
    a(f's_lshr_b32 s36, s20, {cfg.WN.bit_length()-1}')
    Rc = Regs(5, 256)
    vO = Rc.alloc(); vL16 = Rc.alloc()
    a(f'v_lshlrev_b32 v{vL16}, 4, v0')
    a(f'v_and_b32 v{tmp[1]}, 15, v0')
    a(f's_mul_i32 s40, s23, {cfg.BM}'); a(f's_mul_i32 s41, s36, {cfg.TM*16}'); a('s_add_u32 s40, s40, s41')
    a('s_lshl_b32 s41, s25, 5'); a('s_add_u32 s40, s40, s41')
    a(f'v_add_u32 v{tmp[1]}, s40, v{tmp[1]}')
    a(f'v_lshlrev_b32 v{vO}, 11, v{tmp[1]}')
    a(f'v_lshrrev_b32 v{tmp[1]}, 4, v0'); a(f'v_and_b32 v{tmp[2]}, 1, v{tmp[1]}'); a(f'v_lshl_add_u32 v{vO}, v{tmp[2]}, 5, v{vO}')
    a(f'v_lshrrev_b32 v{tmp[1]}, 5, v0'); a(f'v_lshl_add_u32 v{vO}, v{tmp[1]}, 4, v{vO}')
    a(f's_mul_i32 s40, s37, {cfg.TN*32}'); a(f's_mul_i32 s41, s24, {cfg.BN*2}'); a('s_add_u32 s40, s40, s41')
    a(f'v_add_u32 v{vO}, s40, v{vO}')
    if unroll: sets = emit_consumer_addr2(a, cfg, Rc, 0, 's36', 's37', tmp)
    else: vRA, vRW = emit_consumer_addr(a, cfg, Rc, 0, 's36', 's37', tmp)
    acc = Rc.alloc(4*cfg.TM*cfg.TN, 4)
    for i in range(4*cfg.TM*cfg.TN): a(f'v_mov_b32 v{acc+i}, 0')
    U = Rc.p
    Fr = {'acc': acc, 'W': [Rc.alloc(16, 4), Rc.alloc(16, 4)], 'A': [Rc.alloc(16, 4), Rc.alloc(16, 4)]}
    NP = 4
    XR = Rc.alloc(4*NP, 4); SR = Rc.alloc(4*NP, 4); T = Rc.alloc(16, 4)
    vPF = Rc.alloc(); vPD = Rc.alloc()
    def rinv_regs(Rr):
        r = {}
        r['G'] = Rr.alloc(16, 4); r['CS'] = Rr.alloc(16, 2); r['SN'] = Rr.alloc(16, 2); r['H'] = Rr.alloc(16, 4); r['TT'] = Rr.alloc(8, 4)
        r['V'] = [Rr.alloc(8, 4), Rr.alloc(8, 4)]; r['NQ'] = [Rr.alloc(), Rr.alloc()]
        for k in ('vSg', 'vV', 'vN', 'vS', 'vTb'): r[k] = Rr.alloc()
        r['D1'] = [[Rr.alloc(16, 4), Rr.alloc(16, 4)], [Rr.alloc(16, 4), Rr.alloc(16, 4)]]
        return r
    def rinv_rows(a, sw):
        a('s_lshl_b32 s40, s88, 2'); a(f's_add_u32 s40, s40, {sw}'); a('s_lshl_b32 s40, s40, 6'); a('s_lshl_b32 s41, s89, 1'); a('s_add_u32 s40, s40, s41')
        a('s_lshl_b32 s90, s40, 11'); a('s_add_u32 s91, s90, 2048')
    def rinv_setup(a, r, sw):
        vV, vN, vS, TT, vSg = r['vV'], r['vN'], r['vS'], r['TT'], r['vSg']
        a(f'v_and_b32 v{vV}, 31, v0'); a(f'v_lshrrev_b32 v{vN}, 5, v0'); a(f'v_lshl_add_u32 v{vV}, v{vN}, 7, v{vV}')
        a(f'v_lshlrev_b32 v{vV}, 5, v{vV}'); a(f's_lshl_b32 s40, {sw}, 2'); a(f's_add_u32 s41, s40, {TILE}'); a(f'v_add_u32 v{vV}, s41, v{vV}')
        if late: a(f'v_mov_b32 v{vN}, s40')
        else: a(f's_add_u32 s41, s40, {NYQ}'); a(f'v_mov_b32 v{vN}, s41')
        a(f'v_lshlrev_b32 v{vS}, 6, v0'); a(f'v_and_b32 v{vS}, 0x7ff, v{vS}'); a(f'v_lshrrev_b32 v{TT}, 5, v0'); a(f'v_lshl_add_u32 v{vS}, v{TT}, 5, v{vS}')
        if late: a(f's_lshl_b32 s40, {sw}, 12'); a(f's_add_u32 s40, s40, {TILE}'); a(f'v_add_u32 v{vS}, s40, v{vS}')
        a(f'v_and_b32 v{TT}, 1, v0'); a(f'v_cvt_f32_u32 v{TT}, v{TT}'); a(f'v_fma_f32 v{vSg}, v{TT}, -2.0, 1.0')
        a('v_cmp_gt_u32 vcc, 32, v0'); a(f'v_cndmask_b32 v{vSg}, 0, v{vSg}, vcc')
        a(f'v_lshlrev_b32 v{r["vTb"]}, 4, v0'); a(f'v_add_u32 v{r["vTb"]}, {TAB}, v{r["vTb"]}')
    def rinv_body(a, r):
        G, CS, SN, H, TT, V, NQ, vSg, vV, vN, vS, D1, vTb = (r[k] for k in ('G', 'CS', 'SN', 'H', 'TT', 'V', 'NQ', 'vSg', 'vV', 'vN', 'vS', 'D1', 'vTb'))
        T_ = LgkmTracker(a)
        for c in range(4): T_.issue(f'ds_read_b128 v[{G+4*c}:{G+4*c+3}], v{vTb} offset:{1024*c}', ('G', c))
        for z in range(2):
            for q in range(2):
                for jj in range(4):
                    T_.issue(f'ds_read_b32 v{V[z]+4*q+jj}, v{vV} offset:{1024*(8*q+jj) + 16*z}', ('V', z))
            if not late: T_.issue(f'ds_read_b32 v{NQ[z]}, v{vN} offset:{16*z}', ('N', z))
            if z == 0:
                T_.need([('G', c) for c in range(4)])
        for z in range(2):
            T_.need([('V', z), ('N', z)])
            for sg in range(2):
                d = D1[z][sg]
                a(f'{MF} v[{d}:{d+15}], v[{V[z]}:{V[z]+3}], v[{G+8*sg}:{G+8*sg+3}], 0')
                a(f'{MF} v[{d}:{d+15}], v[{V[z]+4}:{V[z]+7}], v[{G+8*sg+4}:{G+8*sg+7}], v[{d}:{d+15}]')
            if z == 0:
                for c in range(4, 12): T_.issue(f'ds_read_b128 v[{G+4*c}:{G+4*c+3}], v{vTb} offset:{1024*c}', ('C', c))
        for c in range(12, 16): T_.issue(f'ds_read_b128 v[{G+4*c}:{G+4*c+3}], v{vTb} offset:{1024*c}', ('H', c))
        for z in range(2): a(f'v_lshlrev_b32 v{NQ[z]}, 16, v{NQ[z]}')
        T_.need([('C', c) for c in range(4, 12)])
        for z in range(2):
            a(f'v_fmac_f32 v{D1[z][0]}, v{NQ[z]}, v{vSg}')
            cmul_pack(a, D1[z][1], D1[z][0], D1[z][1], CS, SN, TT)
            if z == 0: T_.all()
            d2 = D1[z][0]; P = D1[z][1]
            for q in range(4):
                a(f'{MF} v[{d2}:{d2+15}], v[{P+4*q}:{P+4*q+3}], v[{H+4*q}:{H+4*q+3}], ' + ('0' if q == 0 else f'v[{d2}:{d2+15}]'))
        for z in range(2):
            d2 = D1[z][0]; o = D1[z][1]
            for u in range(8): a(f'v_cvt_pk_bf16_f32 v{o+u}, v{d2+2*u}, v{d2+2*u+1}')
            if late:
                a(f'ds_write_b128 v{vS}, v[{o}:{o+3}] offset:{2048*z}'); a(f'ds_write_b128 v{vS}, v[{o+4}:{o+7}] offset:{2048*z+16}')
            else:
                so = 's90' if z == 0 else 's91'
                a(f'buffer_store_dwordx4 v[{o}:{o+3}], v{vS}, s[72:75], {so} offen sc1')
                a(f'buffer_store_dwordx4 v[{o+4}:{o+7}], v{vS}, s[72:75], {so} offen offset:16 sc1')
        if late: a('s_waitcnt lgkmcnt(0)')
    rinv_rows(a, 's20')
    top = Rc.p
    if not late:
        Rr = Regs(U, 256); rr = rinv_regs(Rr); top = max(Rr.p, Rc.p)
        rinv_setup(a, rr, 's20')
        if fused: a('s_barrier')
        a('s_barrier')
        rinv_body(a, rr)
    else:
        top = 256
        a(f's_lshl_b32 s40, s20, 12'); a(f's_add_u32 s40, s40, {TILE}'); a(f'v_add_u32 v{vPF}, s40, v{vL16}')
        if not late.get('noj2'): a('s_barrier')
    a('s_lshl_b32 s40, s23, 3'); a('s_add_u32 s40, s40, s24'); a('s_lshl_b32 s40, s40, 3'); a('s_add_u32 s40, s40, s20')
    a('s_lshl_b32 s41, s25, 2'); a('s_add_u32 s38, s40, s41'); a('s_lshl_b32 s38, s38, 13')
    a('s_xor_b32 s39, s38, 0x8000')
    pre_bar = [f's_cmp_lg_u32 s32, {SIG-1}', f's_cbranch_scc1 L_nw_{tag}', 's_waitcnt vmcnt(0)', f'L_nw_{tag}:']
    for i in range(4): a(f'v_mov_b32 v{XR+i}, -1')
    a('s_mov_b32 s96, s38')
    def per_iter(a):
        a('s_cmp_ge_u32 s32, 4'); a(f's_cbranch_scc1 L_nomark_{tag}')
        a(f'buffer_store_dwordx4 v[{XR}:{XR+3}], v{vL16}, s[76:79], s96 offen sc1')
        a(f'buffer_store_dwordx4 v[{XR}:{XR+3}], v{vL16}, s[76:79], s96 offen offset:1024 sc1')
        a('s_add_u32 s96, s96, 2048')
        a.label(f'L_nomark_{tag}')
    def before_last(a):
        k = 0
        for mt in range(2):
            for tp in range(2):
                a(f's_mov_b32 s40, {mt*16*2048}')
                a(f'buffer_load_dwordx4 v[{XR+4*k}:{XR+4*k+3}], v{vO}, s[68:71], s40 offen offset:{tp*64}')
                a(f'buffer_load_dwordx4 v[{SR+4*k}:{SR+4*k+3}], v{vO}, s[72:75], s40 offen offset:{tp*64} sc1')
                k += 1
    ool = []
    if unroll:
        hooks = {'pre_bar': {SIG-1: ['s_waitcnt vmcnt(0)']}, 'at_stage': {cfg.NST-1: before_last}}
        if late:
            pk = [f'    ds_read_b128 v[{SR+4*j}:{SR+4*j+3}], v{vPF} offset:{1024*j}' for j in range(4)] + ['    s_waitcnt lgkmcnt(0)']
            pk += [f'    buffer_store_dwordx4 v[{SR+4*j}:{SR+4*j+3}], v{vL16}, s[72:75], {"s90" if j < 2 else "s91"} offen offset:{1024*(j & 1)} sc1' for j in range(4)]
            hooks['bar'] = {late['KP']: ([], pk)}
            at = Asm()
            at('s_cmp_lg_u32 s20, 0'); at(f's_cbranch_scc1 L_noat_{tag}')
            at('s_lshl_b32 s40, s88, 5'); at('s_add_u32 s40, s40, 16'); at(f'v_mov_b32 v{T}, s40'); at(f'v_mov_b32 v{T+1}, 1'); at('s_mov_b64 exec, 1')
            at(f'buffer_atomic_add v{T+1}, v{T}, s[80:83], 0 offen sc1'); at('s_mov_b64 exec, -1')
            at.label(f'L_noat_{tag}')
            hooks['bar'][SIG-1] = (['s_waitcnt vmcnt(0)'], at.L); hooks['pre_bar'] = {}
            if hk: hooks['bar'][hk[0]] = hk[1]
        ool = emit_consumer_loop2(a, cfg, Fr, sets, 32, tag, hooks=hooks)
    else:
        emit_consumer_loop(a, cfg, Fr, vRA, vRW, 32, 33, 34, tag, pre_barrier=None if nopre else pre_bar, before_last=before_last, per_iter=per_iter if mark else None)
    if stamp: stamp_mid(a)
    a('s_add_u32 s41, s39, 4096')
    for r in range(8):
        c = acc + 32 + 4*r
        a(f'buffer_store_dwordx4 v[{c}:{c+3}], v{vL16}, s[76:79], {"s39" if r < 4 else "s41"} offen offset:{1024*(r & 3)} sc1')
    RX = Fr['W'][0]
    assert Fr['W'][1] == RX+16 and Fr['A'][0] == RX+32
    silu_consts(a)
    q = RX + 32
    if flags:
        srd_off(a, 80, 64, WS_FLG, 0x10000)
        a('s_lshr_b32 s40, s39, 7'); a(f'v_mov_b32 v{q}, s40'); a(f'v_mov_b32 v{q+1}, 1')
        a('s_lshr_b32 s40, s38, 7'); a(f'v_mov_b32 v{q+2}, s40')
        a('s_waitcnt vmcnt(0)')
        a('s_mov_b64 exec, 1')
        a(f'buffer_store_dword v{q+1}, v{q}, s[80:83], 0 offen sc1')
        a('s_mov_b64 exec, -1')
        a('s_mov_b32 s42, 0')
        a.label(f'L_xch_{tag}')
        a(f'buffer_load_dword v{q+3}, v{q+2}, s[80:83], 0 offen sc1')
        a('s_add_u32 s42, s42, 1')
        a('s_waitcnt vmcnt(0)')
        a(f'v_readfirstlane_b32 s40, v{q+3}')
        a('s_cmp_eq_u32 s40, 1'); a(f's_cbranch_scc1 L_xok_{tag}')
        a('s_cmp_lt_u32 s42, 0x8000'); a(f's_cbranch_scc1 L_xch_{tag}')
        a.label(f'L_xok_{tag}')
        a('s_add_u32 s41, s38, 4096')
        for r in range(8):
            a(f'buffer_load_dwordx4 v[{RX+4*r}:{RX+4*r+3}], v{vL16}, s[76:79], {"s38" if r < 4 else "s41"} offen offset:{1024*(r & 3)} sc1')
        a('s_waitcnt vmcnt(0)')
    else:
        a('s_add_u32 s41, s38, 4096'); a('s_mov_b32 s42, 0')
        a.label(f'L_xch_{tag}')
        for r in range(8):
            a(f'buffer_load_dwordx4 v[{RX+4*r}:{RX+4*r+3}], v{vL16}, s[76:79], {"s38" if r < 4 else "s41"} offen offset:{1024*(r & 3)} sc1')
        a('s_add_u32 s42, s42, 1')
        a('s_waitcnt vmcnt(0)')
        a(f'v_max3_u32 v{q}, v{RX}, v{RX+1}, v{RX+2}'); a(f'v_max3_u32 v{q+1}, v{RX+3}, v{RX+4}, v{RX+5}')
        for i in range(6, 32, 4):
            a(f'v_max3_u32 v{q}, v{q}, v{RX+i}, v{RX+i+1}')
            if i+2 < 32: a(f'v_max3_u32 v{q+1}, v{q+1}, v{RX+i+2}, v{RX+i+3}')
        a(f'v_max_u32 v{q}, v{q}, v{q+1}')
        a(f'v_cmp_eq_u32 vcc, -1, v{q}')
        a(f's_cbranch_vccz L_xok_{tag}')
        a('s_cmp_lt_u32 s42, 0x4000'); a(f's_cbranch_scc1 L_xch_{tag}')
        a.label(f'L_xok_{tag}')
    if stamp: a('s_memrealtime s[92:93]')
    for i in range(0, 32, 2):
        a(f'v_pk_add_f32 v[{acc+i}:{acc+i+1}], v[{acc+i}:{acc+i+1}], v[{RX+i}:{RX+i+1}]')
    k = 0
    for mt in range(2):
        for tp in range(2):
            x = XR + 4*k; s = SR + 4*k; k += 1
            a(f'v_permlane16_swap_b32 v{x}, v{x+2}'); a(f'v_permlane16_swap_b32 v{x+1}, v{x+3}')
            a(f'v_permlane16_swap_b32 v{s}, v{s+2}'); a(f'v_permlane16_swap_b32 v{s+1}, v{s+3}')
            for tt in range(2):
                c = acc + 4*(mt*cfg.TN + 2*tp + tt); g = T + 4*tt; u = T + 8
                silu4(a, c, g)
                for j in range(2):
                    a(f'v_lshlrev_b32 v{u+2*j}, 16, v{s+2*tt+j}'); a(f'v_and_b32 v{u+2*j+1}, 0xffff0000, v{s+2*tt+j}')
                    a(f'v_lshlrev_b32 v{u+4+2*j}, 16, v{x+2*tt+j}'); a(f'v_and_b32 v{u+4+2*j+1}, 0xffff0000, v{x+2*tt+j}')
                for j in range(2):
                    a(f'v_pk_fma_f32 v[{g+2*j}:{g+2*j+1}], v[{u+2*j}:{u+2*j+1}], v[{g+2*j}:{g+2*j+1}], v[{u+4+2*j}:{u+4+2*j+1}]')
                for j in range(2):
                    a(f'v_cvt_pk_bf16_f32 v{x+2*tt+j}, v{g+2*j}, v{g+2*j+1}')
            a(f'v_permlane16_swap_b32 v{x}, v{x+2}'); a(f'v_permlane16_swap_b32 v{x+1}, v{x+3}')
            a(f's_mov_b32 s40, {mt*16*2048}')
            a(f'buffer_store_dwordx4 v[{x}:{x+3}], v{vO}, s[12:15], s40 offen offset:{tp*64}{ONT}')
    if stamp:
        a('s_waitcnt lgkmcnt(0)')
        a('s_sub_u32 s60, s60, s58')
        a('s_waitcnt vmcnt(0)'); a('s_memrealtime s[56:57]'); a('s_waitcnt lgkmcnt(0)')
        a('s_cmp_lg_u32 s20, 0'); a(f's_cbranch_scc1 L_g2end_{tag}')
        srd_off(a, 12, 64, WS_DBG + 5*0x4000, 0x4000)
        for i, r in enumerate((52, 53, 94, 95, 54, 55, 92, 93, 56, 57, 60)): a(f'v_mov_b32 v{12+i}, s{r}')
        a('v_mov_b32 v23, 0')
        a('s_lshl_b32 s40, s2, 6'); a('v_mov_b32 v10, s40')
        a('v_cmp_eq_u32 vcc, 0, v0'); a('s_and_saveexec_b64 s[62:63], vcc')
        for i in range(3): a(f'buffer_store_dwordx4 v[{12+4*i}:{15+4*i}], v10, s[12:15], 0 offen offset:{16*i}')
    a.label(f'L_g2end_{tag}')
    a('s_endpgm')
    for blk in ool:
        for ln in blk: a(ln)
    a.label(f'L_loader_{tag}')
    LR = {}
    def y_setup(a, Rl):
        vY = Rl.alloc(); vT = Rl.alloc(); LR['vY'] = vY; LR['vT'] = vT
        srd_off(a, 12, 64, WS_Y, ZBYTES); srd_off(a, 68, 64, WS_TAB, 16384)
        a(f'v_lshrrev_b32 v{vT}, 1, v0'); a(f's_mov_b32 s41, {ZP}'); a(f'v_mul_lo_u32 v{vY}, v{vT}, s41')
        a(f'v_and_b32 v{vT}, 1, v0'); a(f'v_lshl_add_u32 v{vY}, v{vT}, 4, v{vY}')
        a(f'v_lshlrev_b32 v{vT}, 4, v0')
        a('s_lshr_b32 s40, s89, 4'); a('s_lshl_b32 s40, s40, 2'); a('s_lshr_b32 s41, s88, 1'); a('s_add_u32 s40, s40, s41'); a('s_lshl_b32 s40, s40, 6')
        a('s_and_b32 s41, s88, 1'); a('s_lshl_b32 s41, s41, 5'); a('s_add_u32 s40, s40, s41')
        a('s_and_b32 s41, s89, 15'); a('s_lshl_b32 s41, s41, 1'); a('s_add_u32 s40, s40, s41'); a('s_lshl_b32 s90, s40, 4')
    def y_issue(a):
        vY, vT = LR['vY'], LR['vT']
        a(f's_mul_i32 s40, s35, {4*32*ZP}'); a('s_add_u32 s40, s40, s90')
        a('s_lshl_b32 s41, s35, 12')
        for i in range(4):
            a(f's_add_u32 m0, s41, {TILE + 1024*i}'); a('s_nop 0')
            a(f'buffer_load_dwordx4 v{vY}, s[12:15], s40 offen lds')
            if i < 3: a(f's_add_u32 s40, s40, {32*ZP}')
        a(f's_add_u32 m0, s41, {TAB}'); a('s_nop 0')
        for i in range(4):
            a(f'buffer_load_dwordx4 v{vT}, s[68:71], s41 offen offset:{1024*i} lds')
        if late:
            a(f's_add_u32 s40, s90, {512*ZP}')
            for z in range(2): a(f'buffer_load_dword v{LR["r"]["NQ"][z]}, v{LR["r"]["vN"]}, s[12:15], s40 offen offset:{16*z}')
            return
        a('s_cmp_lg_u32 s35, 0'); a(f's_cbranch_scc1 L_nonyq_{tag}')
        a(f's_add_u32 s40, s90, {512*ZP}'); a(f's_mov_b32 m0, {NYQ}'); a('s_mov_b64 exec, 3')
        a(f'buffer_load_dwordx4 v{vY}, s[12:15], s40 offen lds')
        a('s_mov_b64 exec, -1')
        a.label(f'L_nonyq_{tag}')
    def pre(a, Rl):
        y_setup(a, Rl)
        if late:
            LR['r'] = rinv_regs(Regs(32, 256)); rinv_setup(a, LR['r'], 's35')
        else: y_issue(a)
    lool = Asm()
    if late:
        PY, NS = late['PY'], late['NS']; CK = PY + cfg.S - 1; XI = CK + (1 if late.get('w0') else 0); SL0 = XI + cfg.S; NX = 10
        assert SL0 + NS - 1 == late['KP'], (SL0, NS, late['KP'])
        base_n = (cfg.S-2)*cfg.P
        def wait_hook(a, n):
            a(f's_cmp_le_u32 s32, {PY}'); a(f's_cbranch_scc1 L_wa_{tag}')
            a(f's_cmp_le_u32 s32, {CK}'); a(f's_cbranch_scc1 L_wb_{tag}')
            a(f's_cmp_le_u32 s32, {XI}'); a(f's_cbranch_scc1 L_wa_{tag}')
            a(f's_cmp_gt_u32 s32, {XI + cfg.S - 1}'); a(f's_cbranch_scc1 L_wa_{tag}')
            a(f's_waitcnt vmcnt({n + NX})'); a(f's_branch L_wd_{tag}')
            a.label(f'L_wb_{tag}'); a(f's_waitcnt vmcnt({n + 1})'); a(f's_branch L_wd_{tag}')
            a.label(f'L_wa_{tag}'); a(f's_waitcnt vmcnt({n})')
            a.label(f'L_wd_{tag}')
        def extra(a):
            a(f's_cmp_gt_u32 s32, {SL0 + NS - 1}'); a(f's_cbranch_scc1 L_xr_{tag}')
            a(f's_cmp_eq_u32 s32, {PY}'); a(f's_cbranch_scc1 L_xp_{tag}')
            a(f's_cmp_eq_u32 s32, {CK}'); a(f's_cbranch_scc1 L_xc_{tag}')
            if XI != CK: a(f's_cmp_eq_u32 s32, {XI}'); a(f's_cbranch_scc1 L_xi_{tag}')
            for i in range(NS): a(f's_cmp_eq_u32 s32, {SL0 + i}'); a(f's_cbranch_scc1 L_xs{i}_{tag}')
            a.label(f'L_xr_{tag}')
            o = lool
            o.label(f'L_xp_{tag}'); late['probe'](o); o(f's_branch L_xr_{tag}')
            o.label(f'L_xc_{tag}')
            if XI != CK:
                o('s_cmp_lg_u32 s35, 0'); o(f's_cbranch_scc1 L_xr_{tag}')
                o(f's_waitcnt vmcnt({(cfg.S-1)*cfg.P})'); late['check'](o); o(f's_branch L_xr_{tag}')
                o.label(f'L_xi_{tag}'); y_issue(o); o(f's_branch L_xr_{tag}')
            else:
                o(f's_waitcnt vmcnt({(cfg.S-1)*cfg.P})'); late['check'](o); y_issue(o); o(f's_branch L_xr_{tag}')
            body = Asm(); rinv_body(body, LR['r'])
            cost = lambda ln: 8 if 'mfma' in ln else (4 if 'lgkmcnt' in ln else 1)
            tot = sum(cost(l) for l in body.L); cuts = [[] for _ in range(NS)]; acc_ = 0
            for ln in body.L:
                i = min(NS-1, int(acc_*NS/tot)); cuts[i].append(ln); acc_ += cost(ln)
            for i in range(NS):
                o.label(f'L_xs{i}_{tag}'); o.L += cuts[i]; o(f's_branch L_xr_{tag}')
        extra.uncounted = True
    NPRO = (l2pf - (cfg.S-1)) if l2pf else 0
    assert NPRO == 0 or NPRO >= cfg.S-1
    def pf_setup(a, Rl):
        vP = Rl.alloc(); vD = Rl.alloc(); t = Rl.alloc()
        a('s_cmp_ge_u32 s35, 2'); a(f's_cbranch_scc1 L_pfw_{tag}')
        a('s_and_b32 s40, s21, 3'); a('s_lshl_b32 s40, s40, 9'); a('s_lshl_b32 s41, s22, 4'); a('s_add_u32 s40, s40, s41')
        a('s_lshl_b32 s41, s35, 3'); a('s_add_u32 s40, s40, s41')
        a(f'v_add_u32 v{vP}, s40, v0'); a(f's_mov_b32 s41, {cfg.pitchA}'); a(f'v_mul_lo_u32 v{vP}, v{vP}, s41')
        a(f's_mul_i32 s40, s25, {cfg.K*2}'); a(f'v_add_u32 v{vP}, s40, v{vP}')
        a(f'v_mov_b32 v{t}, 0x7f000000'); a('v_cmp_gt_u32 vcc, 8, v0'); a(f'v_cndmask_b32 v{vP}, v{t}, v{vP}, vcc')
        for i in range(4): a(f's_mov_b32 s{72+i}, s{4+i}')
        a('s_mov_b32 s97, 128')
        a(f's_branch L_pfx_{tag}')
        a.label(f'L_pfw_{tag}')
        a(f's_mul_i32 s40, s25, {cfg.K}'); a('s_lshl_b32 s41, s22, 1'); a('s_add_u32 s40, s40, s41'); a('s_add_u32 s40, s40, s35'); a('s_sub_u32 s40, s40, 2')
        a('s_lshl_b32 s40, s40, 11')
        a(f'v_lshlrev_b32 v{vP}, 7, v0'); a(f'v_add_u32 v{vP}, s40, v{vP}')
        a(f'v_mov_b32 v{t}, 0x7f000000'); a('v_cmp_gt_u32 vcc, 16, v0'); a(f'v_cndmask_b32 v{vP}, v{t}, v{vP}, vcc')
        for i in range(4): a(f's_mov_b32 s{72+i}, s{8+i}')
        a(f's_mov_b32 s97, {64*cfg.pitchW}')
        a.label(f'L_pfx_{tag}')
        a(f's_mul_i32 s98, s97, {cfg.S-1}')
        return vP, vD
    PFR = {}
    def pf_one(a):
        a(f'buffer_load_dword v{PFR["d"]}, v{PFR["p"]}, s[72:75], s98 offen')
        a('s_add_u32 s98, s98, s97')
    def pf_pro(a):
        for i in range(NPRO): pf_one(a)
        return NPRO
    def after_pro(a):
        if late: return
        a(f's_waitcnt vmcnt({(cfg.S-1)*cfg.P + NPRO})'); a('s_barrier')
    def post_bar(a):
        if late: return
        a(f's_cmp_lg_u32 s32, {SIG}'); a(f's_cbranch_scc1 L_nosig_{tag}')
        a('s_cmp_lg_u32 s35, 0'); a(f's_cbranch_scc1 L_nosig_{tag}')
        a('s_lshl_b32 s40, s88, 5')
        if fused: a('s_add_u32 s40, s40, 16')
        a('v_mov_b32 v1, s40'); a('v_mov_b32 v2, 1'); a('s_mov_b64 exec, 1')
        a('buffer_atomic_add v2, v1, s[80:83], 0 offen sc1')
        a('s_mov_b64 exec, -1')
        a.label(f'L_nosig_{tag}')
    def tail(a):
        a('s_lshl_b32 s40, s88, 5')
        if fused: a('s_add_u32 s40, s40, 16')
        a('v_mov_b32 v1, s40')
        a('buffer_load_dword v2, v1, s[80:83], 0 offen sc1')
        return 1
    def pre_last(a):
        a('s_mov_b32 s42, 0')
        a.label(f'L_poll_{tag}')
        a('s_waitcnt vmcnt(0)')
        a('v_readfirstlane_b32 s40, v2')
        a('s_cmp_ge_u32 s40, 32'); a(f's_cbranch_scc1 L_pollok_{tag}')
        a('buffer_load_dword v2, v1, s[80:83], 0 offen sc1')
        a('s_add_u32 s42, s42, 1'); a('s_cmp_lt_u32 s42, 0x8000'); a(f's_cbranch_scc1 L_poll_{tag}')
        a.label(f'L_pollok_{tag}')
    def pre2(a, R):
        if fused: fused(a, R)
        a('s_lshl_b32 s92, s25, 5'); pre(a, R)
        if l2pf: PFR['p'], PFR['d'] = pf_setup(a, R)
    kw = dict(extra=pf_one if l2pf else None, extra_pro=pf_pro if l2pf else None)
    if late: kw = dict(extra=extra, wait_hook=wait_hook)
    if krot: kw.update(krot=True, k0=krot)
    loader_part(a, cfg, tag, tmp, tail, s_rowxor='s92', pre=pre2, after_pro=after_pro, post_bar=post_bar, pre_last=pre_last, **kw)
    a.extend(lool)
    if late: return top, TAB + 16384
    return top, cfg.LDS + 64
```

```python
import sys
from asm import *
from fft import *
from roles_gemm import *
import hazard, fft
from full import wrap, KN
from g2var import g2k, finish
from fused import gen_fused
UF = dict(flags=True, unroll=True)
S3 = dict(a0first=True, maxper0=1, bat=4)
def k1(stamp, **kw):
    fft.SC = ''; fft.SCX = ''; fft.SCY = ''; fft.STAMP = False
    a = Asm(); name = 'g1col_kernel'
    a('s_cmp_ge_u32 s2, 256'); a(f's_cbranch_scc1 L_end_{name}')
    nv, l = gen_fused(a, stamp, **kw)
    a.label(f'L_end_{name}'); a('s_endpgm')
    return wrap(name, a.text(), nv, 256, 512, l)
def emit(fn, st, kw={}, gopt=UF, gkw=S3):
    ks = [k1(st, **kw), g2k(KN + '_kernel', st, gopt, **gkw)]
    open('exp/%s%s.s' % (fn, '_st' if st else ''),'w').write(finish(ks))
def emit1(fn, st, kw={}, gopt=UF, gkw=S3):
    fft.SC = ''; fft.SCX = ''; fft.SCY = ' sc1'; fft.STAMP = False
    a = Asm(); name = KN + '_kernel'
    a('s_cmp_ge_u32 s2, 256'); a(f's_cbranch_scc1 L_end_k')
    nv, l = gen_fused(a, st, fuse2=True, g2kw=gkw, g2opt=gopt, **kw)
    a.label(f'L_end_k'); a('s_endpgm')
    open('exp/%s%s.s' % (fn, '_st' if st else ''),'w').write(finish([wrap(name, a.text(), nv, 256, 512, l)]))
if __name__ == '__main__':
    Wd = dict(PY=0, NS=6, KP=12, SIG=19)
    B = dict(psleep=16, sigk=2, nearly=1, late=Wd, krot=16, csleep=16)
    for st in (False, True):
        emit1('f13c', st, B)
        emit1('f15', st, dict(B, pf2k=4))
        emit1('f15a', st, dict(B, pf2k=7))
        emit1('f15b', st, dict(B, pf2k=4, wnt=' nt'))
        emit1('f15c', st, dict(B, pf2k=10))
```

```python
from asm import *

WS_XN = 0x0000000
WS_H  = 0x0400000
WS_Z  = 0x1200000
WS_WP = 0x1680000
WS_Y  = 0x1B00000
WS_S  = 0x2000000
WS_XCH= 0x2400000
WS_TAB= 0x2C00000
WS_FLG= 0x2C10000
WS_DBG= 0x3000000
ZP = 8448
ZBYTES = 513*ZP
TILE_BYTES = 72*528 + 8*66 + 64
MF = 'v_mfma_f32_32x32x16_bf16'

STAMP = False
SCY = ''
SCX = ''
SC = ''
def st_begin(a):
    if STAMP: a('s_memrealtime s[90:91]')
def st_end(a, slot, tag, ws=18, wave='s20'):
    if not STAMP: return
    a('s_waitcnt vmcnt(0) lgkmcnt(0)')
    a('s_memrealtime s[92:93]'); a('s_waitcnt lgkmcnt(0)')
    a(f's_cmp_lg_u32 {wave}, 0'); a(f's_cbranch_scc1 L_stx_{tag}')
    srd_off(a, 12, ws, WS_DBG + slot*0x4000, 0x4000)
    a('v_mov_b32 v10, s90'); a('v_mov_b32 v11, s91'); a('v_mov_b32 v12, s92'); a('v_mov_b32 v13, s93')
    a('v_mov_b32 v14, s92'); a('v_mov_b32 v15, s93'); a('v_mov_b32 v16, 0'); a('v_mov_b32 v17, 0')
    a('s_lshl_b32 s40, s2, 5'); a('v_mov_b32 v20, s40')
    a('v_cmp_eq_u32 vcc, 0, v0'); a('s_and_saveexec_b64 s[62:63], vcc')
    a('buffer_store_dwordx4 v[10:13], v20, s[12:15], 0 offen')
    a('buffer_store_dwordx4 v[14:17], v20, s[12:15], 0 offen offset:16')
    a.label(f'L_stx_{tag}')

def allreduce(a, v, t):
    for r in (8, 4, 2, 1):
        a(f'v_add_f32_dpp v{v}, v{v}, v{v} row_ror:{r} row_mask:0xf bank_mask:0xf')
    a(f'v_mov_b32 v{t}, v{v}'); a(f'v_permlane16_swap_b32 v{v}, v{t}'); a(f'v_add_f32 v{v}, v{v}, v{t}')
    a(f'v_mov_b32 v{t}, v{v}'); a(f'v_permlane32_swap_b32 v{v}, v{t}'); a(f'v_add_f32 v{v}, v{v}, v{t}')

def allreduce2(a, v0, t0, v1, t1):
    for r in (8, 4, 2, 1):
        a(f'v_add_f32_dpp v{v0}, v{v0}, v{v0} row_ror:{r} row_mask:0xf bank_mask:0xf')
        a(f'v_add_f32_dpp v{v1}, v{v1}, v{v1} row_ror:{r} row_mask:0xf bank_mask:0xf')
    for op in ('v_permlane16_swap_b32', 'v_permlane32_swap_b32'):
        a(f'v_mov_b32 v{t0}, v{v0}'); a(f'v_mov_b32 v{t1}, v{v1}')
        a(f'{op} v{v0}, v{t0}'); a(f'{op} v{v1}, v{t1}')
        a(f'v_add_f32 v{v0}, v{v0}, v{t0}'); a(f'v_add_f32 v{v1}, v{v1}, v{t1}')

def f32(x):
    import struct
    return hex(struct.unpack('<I', struct.pack('<f', x))[0])

def emit_cs(a, dc, ds, fE, eadd, fF, phase_reg, t):
    if eadd: a(f'v_add_f32 v{t}, {f32(float(eadd))}, v{fE}'); src = t
    else: src = fE
    if phase_reg is None: a(f'v_mul_f32 v{t}, v{src}, v{fF}')
    else: a(f'v_fma_f32 v{t}, v{src}, v{fF}, {phase_reg}')
    a(f'v_fract_f32 v{t}, v{t}')
    if ds is not None: a(f'v_sin_f32 v{ds}, v{t}')
    if dc is not None: a(f'v_cos_f32 v{dc}, v{t}')

def emit_img(a, dst, fE, e0, fF, phase, t):
    for jj in range(4):
        emit_cs(a, t+1, t+2, fE, e0+jj, fF, phase, t)
        a('s_nop 0')
        a(f'v_cvt_pk_bf16_f32 v{dst+jj}, v{t+1}, v{t+2}')

def cmul_pack(a, dst, re, im, cs, sn, t, n=16):
    for r in range(0, n, 2):
        u = t + 4*((r >> 1) & 1)
        a(f'v_pk_mul_f32 v[{u}:{u+1}], v[{re+r}:{re+r+1}], v[{cs+r}:{cs+r+1}]')
        a(f'v_pk_mul_f32 v[{u+2}:{u+3}], v[{im+r}:{im+r+1}], v[{cs+r}:{cs+r+1}]')
        a(f'v_pk_fma_f32 v[{u}:{u+1}], v[{im+r}:{im+r+1}], v[{sn+r}:{sn+r+1}], v[{u}:{u+1}]')
        a(f'v_pk_fma_f32 v[{u+2}:{u+3}], v[{re+r}:{re+r+1}], v[{sn+r}:{sn+r+1}], v[{u+2}:{u+3}] neg_lo:[1,0,0] neg_hi:[1,0,0]')
        a(f'v_cvt_pk_bf16_f32 v{dst+r}, v{u}, v{u+2}')
        a(f'v_cvt_pk_bf16_f32 v{dst+r+1}, v{u+1}, v{u+3}')

def tile_store_phase(a, vlane, s_w, srd_out, s_pos0, t, tile0, tag):
    vA, vG = t, t+1
    d = t+4
    a(f'v_lshrrev_b32 v{t+2}, 2, v{vlane}'); a(f'v_and_b32 v{t+3}, 3, v{vlane}')
    a(f'v_mul_u32_u24 v{vA}, 72, v{t+2}')
    a(f'v_lshrrev_b32 v{vG}, 3, v{t+2}'); a(f'v_lshl_add_u32 v{vA}, v{vG}, 3, v{vA}')
    a(f'v_lshl_add_u32 v{vA}, v{t+3}, 4, v{vA}')
    a(f's_mul_i32 s40, {s_w}, 1168'); a(f's_add_u32 s40, s40, {tile0}')
    a(f'v_add_u32 v{vA}, s40, v{vA}')
    a(f's_lshl_b32 s40, {s_w}, 4'); a(f'v_add_u32 v{vG}, s40, v{t+2}')
    a(f's_mov_b32 s41, {ZP}'); a(f'v_mul_lo_u32 v{vG}, v{vG}, s41'); a(f'v_lshl_add_u32 v{vG}, v{t+3}, 4, v{vG}')
    for it in range(4):
        a(f'ds_read_b64 v[{d+4*it}:{d+4*it+1}], v{vA} offset:{9344*it}')
        a(f'ds_read_b64 v[{d+4*it+2}:{d+4*it+3}], v{vA} offset:{9344*it+8}')
    a(f's_cmp_lg_u32 {s_w}, 0'); a(f's_cbranch_scc1 L_no5_{tag}')
    a(f'ds_read_b64 v[{d+16}:{d+17}], v{vA} offset:{9344*4}')
    a(f'ds_read_b64 v[{d+18}:{d+19}], v{vA} offset:{9344*4+8}')
    a(f's_add_u32 s41, s{s_pos0}, {4*128*ZP}')
    a('s_waitcnt lgkmcnt(0)')
    a(f'buffer_store_dwordx4 v[{d+16}:{d+19}], v{vG}, s[{srd_out}:{srd_out+3}], s41 offen{SC}')
    a.label(f'L_no5_{tag}')
    for it in range(4):
        a(f's_add_u32 s41, s{s_pos0}, {it*128*ZP}')
        a(f's_waitcnt lgkmcnt({2*(3-it)})')
        a(f'buffer_store_dwordx4 v[{d+4*it}:{d+4*it+3}], v{vG}, s[{srd_out}:{srd_out+3}], s41 offen{SC}')

def gen_row_fwd(a, tag, wg='s2'):
    ROWB = (TILE_BYTES + 255)//256*256
    st_begin(a)
    a('s_load_dwordx2 s[16:17], s[0:1], 0')
    a('s_load_dwordx2 s[18:19], s[0:1], 64')
    a('v_lshrrev_b32 v1, 6, v0'); a('v_and_b32 v0, 63, v0'); a('v_readfirstlane_b32 s20, v1')
    a(f's_and_b32 s21, {wg}, 7'); a(f's_lshr_b32 s22, {wg}, 3')
    a('s_lshr_b32 s23, s22, 1')
    a('s_and_b32 s24, s22, 1'); a('s_lshl_b32 s25, s21, 1'); a('s_add_u32 s24, s24, s25')
    a('s_lshl_b32 s25, s23, 2'); a('s_and_b32 s26, s20, 3'); a('s_add_u32 s25, s25, s26'); a('s_lshl_b32 s25, s25, 6')
    a('s_lshl_b32 s26, s24, 2'); a('s_add_u32 s25, s25, s26'); a('s_lshr_b32 s26, s20, 2'); a('s_add_u32 s25, s25, s26')
    a('s_lshl_b32 s26, s25, 11'); a('s_add_u32 s27, s26, 4096')
    a('s_lshr_b32 s28, s24, 3'); a('s_lshl_b32 s28, s28, 2'); a('s_lshr_b32 s29, s23, 1'); a('s_add_u32 s28, s28, s29'); a('s_lshl_b32 s28, s28, 6')
    a('s_and_b32 s29, s23, 1'); a('s_lshl_b32 s29, s29, 5'); a('s_add_u32 s28, s28, s29')
    a('s_and_b32 s29, s24, 7'); a('s_lshl_b32 s29, s29, 2'); a('s_add_u32 s28, s28, s29'); a('s_lshl_b32 s28, s28, 4')
    a('v_lshlrev_b32 v1, 5, v0')
    a('s_waitcnt lgkmcnt(0)')
    srd(a, 4, 16, 2048*2048)
    R = Regs(8, 256)
    X = [R.alloc(8, 4), R.alloc(8, 4)]
    a(f'buffer_load_dwordx4 v[{X[0]}:{X[0]+3}], v1, s[4:7], s26 offen')
    a(f'buffer_load_dwordx4 v[{X[0]+4}:{X[0]+7}], v1, s[4:7], s26 offen offset:16')
    a(f'buffer_load_dwordx4 v[{X[1]}:{X[1]+3}], v1, s[4:7], s27 offen')
    a(f'buffer_load_dwordx4 v[{X[1]+4}:{X[1]+7}], v1, s[4:7], s27 offen offset:16')
    srd_off(a, 8, 18, WS_XN, 2048*2048)
    srd_off(a, 12, 18, WS_Z, ZBYTES)
    B1 = R.alloc(16, 4); CS = R.alloc(16, 2); SN = R.alloc(16, 2); A2 = R.alloc(16, 4)
    T = R.alloc(8, 4)
    fC32, fC1k, fH, fD, fPh = 2, 3, 4, 5, 6
    a('v_and_b32 v7, 31, v0'); a('v_cvt_f32_u32 v7, v7')
    a(f'v_mul_f32 v{fC32}, {f32(1/32)}, v7'); a(f'v_mul_f32 v{fC1k}, {f32(1/1024)}, v7')
    a(f'v_lshrrev_b32 v{fH}, 5, v0'); a(f'v_cvt_f32_u32 v{fH}, v{fH}')
    a(f'v_mul_f32 v7, {f32(8.0)}, v{fH}')
    for q in range(2):
        for jj in range(4):
            for e in range(2):
                aa = 16*q + 2*jj + e
                a(f'v_add_f32 v{T}, {f32(float(aa))}, v7')
                a(f'v_mul_f32 v{T}, v{T}, v{fC32}'); a(f'v_fract_f32 v{T}, v{T}')
                a(f'v_cos_f32 v{T+1+e}, v{T}'); a(f'v_sin_f32 v{T+3+e}, v{T}')
            a('s_nop 0')
            a(f'v_cvt_pk_bf16_f32 v{B1+4*q+jj}, v{T+1}, v{T+2}')
            a(f'v_cvt_pk_bf16_f32 v{B1+8+4*q+jj}, -v{T+3}, -v{T+4}')
    a(f'v_mul_f32 v7, {f32(4.0)}, v{fH}')
    for r in range(16):
        emit_cs(a, CS+r, SN+r, 7, (r & 3) + 8*(r >> 2), fC1k, None, T)
    a(f'v_and_b32 v{fD}, 31, v0'); a(f'v_lshrrev_b32 v{fD}, 1, v{fD}'); a(f'v_cvt_f32_u32 v{fD}, v{fD}'); a(f'v_mul_f32 v{fD}, {f32(1/32)}, v{fD}')
    a(f'v_and_b32 v{fPh}, 1, v0'); a(f'v_cvt_f32_u32 v{fPh}, v{fPh}'); a(f'v_mul_f32 v{fPh}, {f32(0.25)}, v{fPh}')
    for q in range(4): emit_img(a, A2+4*q, 7, 8*q, fD, f'v{fPh}', T)
    vRB = 2
    vTR, vTW = 3, 4
    a(f's_lshl_b32 s30, s20, 12'); a(f's_add_u32 s30, s30, {ROWB}')
    a(f'v_add_u32 v{vRB}, s30, v1')
    a(f'v_lshrrev_b32 v5, 5, v0'); a(f'v_lshlrev_b32 v5, 3, v5'); a(f'v_lshrrev_b32 v6, 2, v0'); a(f'v_and_b32 v6, 3, v6'); a('v_add_u32 v5, v5, v6')
    a('v_lshlrev_b32 v5, 6, v5'); a('v_lshrrev_b32 v6, 4, v0'); a('v_and_b32 v6, 1, v6'); a('v_lshl_add_u32 v5, v6, 5, v5')
    a('v_and_b32 v6, 3, v0'); a('v_lshl_add_u32 v5, v6, 3, v5'); a(f'v_add_u32 v{vTR}, s30, v5')
    a('v_and_b32 v5, 31, v0'); a('v_lshrrev_b32 v6, 5, v0'); a('v_lshl_add_u32 v5, v6, 6, v5')
    a('v_lshrrev_b32 v6, 3, v5'); a('v_mul_u32_u24 v5, 72, v5'); a('v_lshl_add_u32 v5, v6, 3, v5')
    a('s_lshl_b32 s31, s20, 2'); a(f'v_add_u32 v{vTW}, s31, v5')
    XF = [R.alloc(16, 2), R.alloc(16, 2)]
    S = [R.alloc(4, 2), R.alloc(4, 2)]
    a('s_waitcnt vmcnt(0)')
    for z in range(2):
        for j in range(8):
            a(f'v_lshlrev_b32 v{XF[z]+2*j}, 16, v{X[z]+j}')
            a(f'v_and_b32 v{XF[z]+2*j+1}, 0xffff0000, v{X[z]+j}')
    for z in range(2):
        a(f'v_pk_add_f32 v[{S[z]}:{S[z]+1}], v[{XF[z]}:{XF[z]+1}], v[{XF[z]+2}:{XF[z]+3}]')
    for j in range(2, 8):
        for z in range(2):
            a(f'v_pk_add_f32 v[{S[z]}:{S[z]+1}], v[{S[z]}:{S[z]+1}], v[{XF[z]+2*j}:{XF[z]+2*j+1}]')
    for z in range(2): a(f'v_add_f32 v{S[z]}, v{S[z]}, v{S[z]+1}')
    allreduce2(a, S[0], S[0]+2, S[1], S[1]+2)
    M = [R.alloc(2, 2), R.alloc(2, 2)]
    for z in range(2):
        a(f'v_mul_f32 v{M[z]}, {f32(-1/1024)}, v{S[z]}'); a(f'v_mov_b32 v{M[z]+1}, v{M[z]}')
    for z in range(2):
        for j in range(8):
            a(f'v_pk_add_f32 v[{T+2*z}:{T+2*z+1}], v[{XF[z]+2*j}:{XF[z]+2*j+1}], v[{M[z]}:{M[z]+1}]')
            if j == 0: a(f'v_pk_mul_f32 v[{S[z]}:{S[z]+1}], v[{T+2*z}:{T+2*z+1}], v[{T+2*z}:{T+2*z+1}]')
            else: a(f'v_pk_fma_f32 v[{S[z]}:{S[z]+1}], v[{T+2*z}:{T+2*z+1}], v[{T+2*z}:{T+2*z+1}], v[{S[z]}:{S[z]+1}]')
    for z in range(2): a(f'v_add_f32 v{S[z]}, v{S[z]}, v{S[z]+1}')
    allreduce2(a, S[0], S[0]+2, S[1], S[1]+2)
    for z in range(2):
        s = S[z]
        a(f'v_mul_f32 v{s}, {f32(1/1024)}, v{s}')
        a(f'v_cvt_pk_bf16_f32 v{s}, v{s}, v{s}'); a(f'v_lshlrev_b32 v{s}, 16, v{s}')
        a(f'v_add_f32 v{s}, {f32(1e-5)}, v{s}')
        a(f'v_cvt_pk_bf16_f32 v{s}, v{s}, v{s}'); a(f'v_lshlrev_b32 v{s}, 16, v{s}')
        a(f'v_sqrt_f32 v{s}, v{s}'); a('s_nop 0')
        a(f'v_cvt_pk_bf16_f32 v{s}, v{s}, v{s}'); a(f'v_lshlrev_b32 v{s}, 16, v{s}')
        a(f'v_rcp_f32 v{s}, v{s}'); a('s_nop 0'); a(f'v_mov_b32 v{s+1}, v{s}')
        m = M[z]
        a(f'v_cvt_pk_bf16_f32 v{m}, v{m}, v{m}'); a(f'v_lshlrev_b32 v{m}, 16, v{m}'); a(f'v_mov_b32 v{m+1}, v{m}')
    for z in range(2):
        for j in range(8):
            u = T + 2*((j & 1) + 2*z)
            a(f'v_pk_add_f32 v[{u}:{u+1}], v[{XF[z]+2*j}:{XF[z]+2*j+1}], v[{M[z]}:{M[z]+1}]')
            a(f'v_pk_mul_f32 v[{u}:{u+1}], v[{u}:{u+1}], v[{S[z]}:{S[z]+1}]')
            a(f'v_cvt_pk_bf16_f32 v{X[z]+j}, v{u}, v{u+1}')
    for z in range(2):
        so = 's26' if z == 0 else 's27'
        a(f'ds_write_b128 v{vRB}, v[{X[z]}:{X[z]+3}] offset:{2048*z}')
        a(f'ds_write_b128 v{vRB}, v[{X[z]+4}:{X[z]+7}] offset:{2048*z+16}')
        a(f'buffer_store_dwordx4 v[{X[z]}:{X[z]+3}], v1, s[8:11], {so} offen{SCX}')
        a(f'buffer_store_dwordx4 v[{X[z]+4}:{X[z]+7}], v1, s[8:11], {so} offen offset:16{SCX}')
    AD = [R.alloc(8, 4), R.alloc(8, 4)]
    D1 = [[R.alloc(16, 4), R.alloc(16, 4)], [R.alloc(16, 4), R.alloc(16, 4)]]
    a('s_waitcnt lgkmcnt(0)')
    for z in range(2):
        for q in range(2):
            for jj in range(2):
                a(f'ds_read_b64_tr_b16 v[{AD[z]+4*q+2*jj}:{AD[z]+4*q+2*jj+1}], v{vTR} offset:{2048*z + 1024*q + 256*jj}')
    for z in range(2):
        a(f's_waitcnt lgkmcnt({4*(1-z)})')
        for sg in range(2):
            d = D1[z][sg]
            a(f'{MF} v[{d}:{d+15}], v[{AD[z]}:{AD[z]+3}], v[{B1+8*sg}:{B1+8*sg+3}], 0')
            a(f'{MF} v[{d}:{d+15}], v[{AD[z]+4}:{AD[z]+7}], v[{B1+8*sg+4}:{B1+8*sg+7}], v[{d}:{d+15}]')
    P = XF
    ALT = S
    for z in range(2):
        d = D1[z][0]
        a(f'v_pk_add_f32 v[{ALT[z]}:{ALT[z]+1}], v[{d}:{d+1}], v[{d+2}:{d+3}]')
        for j in range(2, 8): a(f'v_pk_add_f32 v[{ALT[z]}:{ALT[z]+1}], v[{ALT[z]}:{ALT[z]+1}], v[{d+2*j}:{d+2*j+1}]')
        a(f'v_sub_f32 v{ALT[z]}, v{ALT[z]}, v{ALT[z]+1}')
        a(f'v_mov_b32 v{ALT[z]+1}, v{ALT[z]}'); a(f'v_permlane32_swap_b32 v{ALT[z]}, v{ALT[z]+1}'); a(f'v_add_f32 v{ALT[z]}, v{ALT[z]}, v{ALT[z]+1}')
        a(f'v_mov_b32 v{ALT[z]+1}, 0'); a(f'v_cvt_pk_bf16_f32 v{ALT[z]}, v{ALT[z]}, v{ALT[z]+1}')
        cmul_pack(a, P[z], D1[z][0], D1[z][1], CS, SN, T)
        d2 = D1[z][0]
        for q in range(4):
            a(f'{MF} v[{d2}:{d2+15}], v[{A2+4*q}:{A2+4*q+3}], v[{P[z]+4*q}:{P[z]+4*q+3}], ' + ('0' if q == 0 else f'v[{d2}:{d2+15}]'))
    for z in range(2):
        d2 = D1[z][0]; o = D1[z][1]
        for u in range(8):
            a(f'v_cvt_pk_bf16_f32 v{o+u}, v{d2+2*u}, v{d2+2*u+1}')
            du = 32*(u & 1) + 128*(u >> 1)
            a(f'ds_write_b32 v{vTW}, v{o+u} offset:{73*du + 32*z}')
    a('s_mov_b64 exec, 1')
    a(f'v_mov_b32 v5, s31')
    for z in range(2): a(f'ds_write_b32 v5, v{ALT[z]} offset:{72*512 + 8*64 + 32*z}')
    a('s_mov_b64 exec, -1')
    a('s_waitcnt lgkmcnt(0)'); a('s_barrier')
    tile_store_phase(a, 0, 's20', 12, 28, D1[0][0], 0, tag)
    st_end(a, 2, tag)
    a('s_endpgm')
    return R.p, ROWB + 8*4096

def gen_rinv_tables(a, R, ws_pair, srd_base, sc=''):
    G = R.alloc(16, 4); CS = R.alloc(16, 2); SN = R.alloc(16, 2); H = R.alloc(16, 4); T = R.alloc(8, 4)
    fC32 = R.alloc(); fC1k = R.alloc(); fH4 = R.alloc(); fPh = R.alloc(); vA = R.alloc()
    assert CS == G+16 and SN == CS+16 and H == SN+16
    a(f'v_and_b32 v{T}, 31, v0')
    a(f'v_lshrrev_b32 v{T+1}, 2, v{T}'); a(f'v_and_b32 v{T+1}, 1, v{T+1}'); a(f'v_lshlrev_b32 v{T+1}, 4, v{T+1}')
    a(f'v_lshrrev_b32 v{T+2}, 3, v{T}'); a(f'v_lshl_add_u32 v{T+1}, v{T+2}, 2, v{T+1}')
    a(f'v_and_b32 v{T+2}, 3, v{T}'); a(f'v_add_u32 v{T+1}, v{T+1}, v{T+2}'); a(f'v_cvt_f32_u32 v{T+1}, v{T+1}')
    a(f'v_mul_f32 v{fC32}, {f32(1/32)}, v{T+1}'); a(f'v_mul_f32 v{fC1k}, {f32(1/1024)}, v{T+1}')
    a(f'v_lshrrev_b32 v{fH4}, 5, v0'); a(f'v_cvt_f32_u32 v{fH4}, v{fH4}'); a(f'v_mul_f32 v{fH4}, {f32(4.0)}, v{fH4}')
    for sg in range(2):
        a(f'v_mov_b32 v{fPh}, {f32(0.25*sg)}')
        for q in range(2): emit_img(a, G+8*sg+4*q, fH4, 8*q, fC32, f'v{fPh}', T)
    for r in range(16): emit_cs(a, CS+r, SN+r, fH4, (r & 3) + 8*(r >> 2), fC1k, None, T)
    a(f'v_and_b32 v{T}, 31, v0'); a(f'v_cvt_f32_u32 v{T}, v{T}'); a(f'v_mul_f32 v{fC32}, {f32(1/32)}, v{T}')
    for q in range(4): emit_img(a, H+4*q, fH4, 8*q, fC32, None, T)
    srd_off(a, srd_base, ws_pair, WS_TAB, 16384)
    a(f'v_lshlrev_b32 v{vA}, 4, v0')
    a('s_mov_b32 s40, 0')
    for c in range(16):
        if c and c % 4 == 0: a('s_add_u32 s40, s40, 4096')
        a(f'buffer_store_dwordx4 v[{G+4*c}:{G+4*c+3}], v{vA}, s[{srd_base}:{srd_base+3}], s40 offen offset:{1024*(c & 3)}{sc}')
    return 16

def gen_wprep(a, tag, wg='s2', prefetch_w1=True, tables=False):
    st_begin(a)
    a('s_load_dwordx4 s[16:19], s[0:1], 8')
    a('s_load_dwordx2 s[32:33], s[0:1], 32')
    a('s_load_dwordx2 s[34:35], s[0:1], 64')
    a('v_lshrrev_b32 v1, 6, v0'); a('v_mov_b32 v2, v0'); a('v_and_b32 v0, 63, v0'); a('v_readfirstlane_b32 s20, v1')
    a(f's_and_b32 s21, {wg}, 7'); a(f's_lshr_b32 s22, {wg}, 3'); a('s_and_b32 s22, s22, 15')
    a('s_and_b32 s24, s21, 3'); a('s_lshl_b32 s24, s24, 1'); a('s_and_b32 s25, s22, 1'); a('s_add_u32 s24, s24, s25')
    a('s_lshr_b32 s23, s21, 2'); a('s_lshl_b32 s23, s23, 3'); a('s_lshr_b32 s25, s22, 1'); a('s_add_u32 s23, s23, s25')
    a('s_lshl_b32 s25, s23, 2'); a('s_and_b32 s26, s20, 3'); a('s_add_u32 s25, s25, s26'); a('s_lshl_b32 s25, s25, 5')
    a('s_lshl_b32 s26, s24, 2'); a('s_add_u32 s25, s25, s26'); a('s_lshr_b32 s26, s20, 2'); a('s_add_u32 s25, s25, s26')
    a('s_mul_i32 s26, s25, 1026'); a('s_add_u32 s27, s26, 2052')
    a('s_lshr_b32 s28, s23, 1'); a('s_lshl_b32 s28, s28, 6'); a('s_and_b32 s29, s23, 1'); a('s_lshl_b32 s29, s29, 5'); a('s_add_u32 s28, s28, s29')
    a('s_lshl_b32 s29, s24, 2'); a('s_add_u32 s28, s28, s29'); a('s_lshl_b32 s28, s28, 4')
    a('v_lshlrev_b32 v1, 4, v0'); a('v_mov_b32 v3, 1024')
    a('s_waitcnt lgkmcnt(0)')
    srd(a, 4, 16, 2048*1026); srd(a, 8, 18, 2048*1026)
    R = Regs(8, 256)
    WR = [R.alloc(4, 4), R.alloc(4, 4)]; WI = [R.alloc(4, 4), R.alloc(4, 4)]; NY = [R.alloc(2), R.alloc(2)]
    for z, so in enumerate(('s26', 's27')):
        a(f'buffer_load_dwordx4 v[{WR[z]}:{WR[z]+3}], v1, s[4:7], {so} offen')
        a(f'buffer_load_dwordx4 v[{WI[z]}:{WI[z]+3}], v1, s[8:11], {so} offen')
        a(f'buffer_load_ushort v{NY[z]}, v3, s[4:7], {so} offen')
        a(f'buffer_load_ushort v{NY[z]+1}, v3, s[8:11], {so} offen')
    srd_off(a, 12, 34, WS_WP, ZBYTES)
    npf = 0
    if prefetch_w1:
        srd(a, 36, 32, 1024*7168)
        PF = R.alloc(28, 4)
        a(f's_and_b32 s40, {wg}, 127'); a('s_mul_i32 s40, s40, 57344'); a('v_lshlrev_b32 v2, 4, v2')
        for i in range(7):
            a(f'buffer_load_dwordx4 v[{PF+4*i}:{PF+4*i+3}], v2, s[36:39], s40 offen')
            a('s_add_u32 s40, s40, 8192')
        npf = 7
    O = R.alloc(16, 4)
    a('v_mul_u32_u24 v4, 584, v0'); a('s_lshl_b32 s31, s20, 2'); a('v_add_u32 v4, s31, v4')
    a('s_mov_b32 s29, 0x05040100'); a('s_mov_b32 s30, 0x07060302')
    if tables:
        a(f's_and_b32 s40, {wg}, 127'); a('s_or_b32 s40, s40, s20'); a('s_cmp_lg_u32 s40, 0'); a(f's_cbranch_scc1 L_notab_{tag}')
        gen_rinv_tables(a, R, 34, 44)
        a('s_waitcnt vmcnt(0)')
        a.label(f'L_notab_{tag}')
    a(f's_waitcnt vmcnt({npf})')
    for z in range(2):
        for j in range(4):
            a(f'v_perm_b32 v{O+8*z+2*j}, v{WI[z]+j}, v{WR[z]+j}, s29')
            a(f'v_perm_b32 v{O+8*z+2*j+1}, v{WI[z]+j}, v{WR[z]+j}, s30')
        for e in range(8):
            a(f'ds_write_b32 v4, v{O+8*z+e} offset:{72*e + 32*z}')
    for z in range(2): a(f'v_lshl_or_b32 v{NY[z]}, v{NY[z]+1}, 16, v{NY[z]}')
    a('s_mov_b64 exec, 1')
    a('v_mov_b32 v5, s31')
    for z in range(2): a(f'ds_write_b32 v5, v{NY[z]} offset:{72*512 + 8*64 + 32*z}')
    a('s_mov_b64 exec, -1')
    a('s_waitcnt lgkmcnt(0)'); a('s_barrier')
    t = R.alloc(24, 4)
    tile_store_phase(a, 0, 's20', 12, 28, t, 0, tag)
    st_end(a, 2, tag, ws=34)
    a('s_endpgm')
    return R.p, TILE_BYTES


COL_F32 = 0
COL_F64 = 8192
COL_TWB = 40960
COL_TWF = 0
COL_TWI = 16384
COL_LDS = COL_TWB + 32768

def gen_col(a, tag, s_idx, nwg=32, extra_prefetch=None, inited=False, poll=None, ldsc='', stamp_end=None, end_branch=None, ncol=513, pack0=False):
    NWV = 8*nwg
    if not inited:
        st_begin(a)
        a('s_load_dwordx2 s[18:19], s[0:1], 64')
        a('v_lshrrev_b32 v1, 6, v0'); a('v_and_b32 v0, 63, v0'); a('v_readfirstlane_b32 s20, v1')
    a(f's_lshl_b32 s21, {s_idx}, 3'); a('s_add_u32 s21, s21, s20')
    if pack0: a(f's_add_u32 s21, s21, {NWV}')
    a('v_lshlrev_b32 v1, 4, v0')
    a('s_waitcnt lgkmcnt(0)')
    srd_off(a, 4, 18, WS_Z, ZBYTES); srd_off(a, 8, 18, WS_WP, ZBYTES); srd_off(a, 12, 18, WS_Y, ZBYTES)
    R = Regs(8, 256)
    ZA = R.alloc(32, 4); WC = R.alloc(32, 4)
    def load_col(dst, srd_, s_col):
        a(f's_mul_i32 s40, {s_col}, {ZP}')
        for g in range(8):
            if g == 4: a('s_add_u32 s40, s40, 4096')
            a(f'buffer_load_dwordx4 v[{dst+4*g}:{dst+4*g+3}], v1, s[{srd_}:{srd_+3}], s40 offen offset:{1024*(g & 3)}{ldsc}')
    def load_col_(em, dst, srd_, s_col):
        em(f's_mul_i32 s40, {s_col}, {ZP}')
        for g in range(8):
            if g == 4: em('s_add_u32 s40, s40, 4096')
            em(f'buffer_load_dwordx4 v[{dst+4*g}:{dst+4*g+3}], v1, s[{srd_}:{srd_+3}], s40 offen offset:{1024*(g & 3)}{ldsc}')
    if not poll:
        load_col(ZA, 4, 's21'); load_col(WC, 8, 's21')
    F32 = R.alloc(32, 4)
    T = R.alloc(16, 4); TWS = R.alloc(8, 4); FB0 = R.alloc(16, 4)
    fF, fH4, fPh = 2, 3, 4
    a('v_and_b32 v5, 31, v0'); a('v_cvt_f32_u32 v5, v5')
    a(f'v_lshrrev_b32 v{fH4}, 5, v0'); a(f'v_cvt_f32_u32 v{fH4}, v{fH4}'); a(f'v_mul_f32 v{fH4}, {f32(4.0)}, v{fH4}')
    a('s_and_b32 s22, s20, 1'); a('s_lshr_b32 s23, s20, 1'); a('s_and_b32 s23, s23, 1'); a('s_lshr_b32 s24, s20, 2')
    a('s_lshl_b32 s25, s23, 5'); a('v_cvt_f32_u32 v6, s25'); a('v_add_f32 v6, v6, v5'); a(f'v_mul_f32 v{fF}, {f32(1/64)}, v6')
    a('v_cvt_f32_u32 v6, s22'); a(f'v_mul_f32 v{fPh}, {f32(0.25)}, v6')
    a('s_lshl_b32 s25, s24, 5'); a('v_cvt_f32_u32 v6, s25'); a(f'v_add_f32 v6, v6, v{fH4}')
    a('s_lshl_b32 s25, s22, 1'); a('s_add_u32 s25, s25, s23'); a('s_lshl_b32 s25, s25, 3'); a('s_lshl_b32 s26, s24, 2'); a('s_add_u32 s25, s25, s26'); a('s_lshl_b32 s25, s25, 10')
    a('v_add_u32 v7, s25, v1')
    for q in range(4):
        emit_img(a, T+4+4*(q & 1), 6, 8*q, fF, f'v{fPh}', T)
        a(f'ds_write_b128 v7, v[{T+4+4*(q & 1)}:{T+7+4*(q & 1)}] offset:{COL_F64 + 1024*q}')
    a(f'v_mul_f32 v{fF}, {f32(1/32)}, v5')
    a('s_lshr_b32 s25, s20, 1'); a('s_lshl_b32 s26, s25, 3'); a('v_cvt_f32_u32 v6, s26'); a(f'v_add_f32 v6, v6, v{fH4}')
    a('s_lshl_b32 s26, s22, 2'); a('s_add_u32 s26, s26, s25'); a('s_lshl_b32 s26, s26, 10'); a('v_add_u32 v7, s26, v1')
    emit_img(a, T+4, 6, 0, fF, f'v{fPh}', T)
    a(f'ds_write_b128 v7, v[{T+4}:{T+7}] offset:{COL_F32}')
    a('s_and_b32 s25, s20, 3'); a('s_lshl_b32 s26, s25, 3'); a('v_cvt_f32_u32 v6, s26'); a(f'v_add_f32 v6, v6, v{fH4}')
    a('s_lshr_b32 s27, s20, 2'); a('s_lshl_b32 s28, s27, 5'); a('v_cvt_f32_u32 v7, s28')
    a('s_lshl_b32 s28, s27, 3'); a('s_lshl_b32 s29, s25, 1'); a('s_add_u32 s28, s28, s29'); a('s_lshl_b32 s28, s28, 10'); a(f's_add_u32 s28, s28, {COL_TWB}'); a('v_add_u32 v2, s28, v1')
    a(f'v_add_f32 v4, v6, v7'); a(f'v_mul_f32 v{T+15}, {f32(1/2048)}, v5')
    for pr in range(2):
        for e in range(2):
            emit_cs(a, T+4+e, T+6+e, 4, 2*pr+e, T+15, None, T)
        a('s_nop 0')
        a(f'ds_write_b128 v2, v[{T+4}:{T+7}] offset:{COL_TWF + 1024*pr}')
        a('s_nop 1')
    a(f'v_add_f32 v4, v5, v7'); a(f'v_mul_f32 v{T+15}, {f32(1/2048)}, v4')
    for pr in range(2):
        for e in range(2):
            emit_cs(a, T+8+e, T+10+e, 6, 2*pr+e, T+15, None, T)
        a('s_nop 0')
        for e in range(4): a(f'v_mul_f32 v{T+8+e}, {f32(2.0**-20)}, v{T+8+e}')
        a(f'ds_write_b128 v2, v[{T+8}:{T+11}] offset:{COL_TWI + 1024*pr}')
        a('s_nop 1')
    a(f'v_add_u32 v2, {COL_TWB}, v1')
    if poll: poll(a)
    a('s_waitcnt lgkmcnt(0)'); a('s_barrier')
    if poll:
        load_col(ZA, 4, 's21'); load_col(WC, 8, 's21')
    for i in range(8): a(f'ds_read_b128 v[{F32+4*i}:{F32+4*i+3}], v1 offset:{COL_F32 + 1024*i}')
    D = [[R.alloc(16, 4), R.alloc(16, 4)], [R.alloc(16, 4), R.alloc(16, 4)]]
    P = R.alloc(32, 4)
    NTW = 4
    def twiddle(dst, base):
        seq = [(blk, pr) for blk in range(2) for pr in range(8)]
        slot = lambda n: T + 8 + 4*(n % NTW)
        for n in range(NTW-1): a(f'ds_read_b128 v[{slot(n)}:{slot(n)+3}], v2 offset:{base + 1024*n}')
        for n, (blk, pr) in enumerate(seq):
            cur = slot(n)
            if n+NTW-1 < len(seq):
                nx = slot(n+NTW-1)
                a(f'ds_read_b128 v[{nx}:{nx+3}], v2 offset:{base + 1024*(n+NTW-1)}')
            a(f's_waitcnt lgkmcnt({min(NTW-1, len(seq)-1-n)})')
            r = 2*pr; re = D[0][blk]+r; im = D[1][blk]+r; u = T + 4*(n & 1)
            a(f'v_pk_mul_f32 v[{u}:{u+1}], v[{re}:{re+1}], v[{cur}:{cur+1}]')
            a(f'v_pk_mul_f32 v[{u+2}:{u+3}], v[{im}:{im+1}], v[{cur}:{cur+1}]')
            a(f'v_pk_fma_f32 v[{u}:{u+1}], v[{im}:{im+1}], v[{cur+2}:{cur+3}], v[{u}:{u+1}]')
            a(f'v_pk_fma_f32 v[{u+2}:{u+3}], v[{re}:{re+1}], v[{cur+2}:{cur+3}], v[{u+2}:{u+3}] neg_lo:[1,0,0] neg_hi:[1,0,0]')
            a(f'v_cvt_pk_bf16_f32 v{dst+16*blk+r}, v{u}, v{u+2}')
            a(f'v_cvt_pk_bf16_f32 v{dst+16*blk+r+1}, v{u+1}, v{u+3}')
    NFB = 8
    def f64_stage(data, data_is_A):
        seq = [(sg, blk, q) for blk in range(2) for sg in range(2) for q in range(8)]
        def img(n): sg, blk, q = seq[n]; return COL_F64 + ((sg*2 + blk)*8 + q)*1024
        slot = lambda n: T + 4*(n % NFB)
        for n in range(NFB-1): a(f'ds_read_b128 v[{slot(n)}:{slot(n)+3}], v1 offset:{img(n)}')
        for n, (sg, blk, q) in enumerate(seq):
            if n+NFB-1 < len(seq):
                sl = slot(n+NFB-1)
                a(f'ds_read_b128 v[{sl}:{sl+3}], v1 offset:{img(n+NFB-1)}')
            a(f's_waitcnt lgkmcnt({min(NFB-1, len(seq)-1-n)})')
            f = slot(n); d = D[sg][blk]; x = data + 4*q
            c = '0' if q == 0 else f'v[{d}:{d+15}]'
            if data_is_A: a(f'{MF} v[{d}:{d+15}], v[{x}:{x+3}], v[{f}:{f+3}], {c}')
            else: a(f'{MF} v[{d}:{d+15}], v[{f}:{f+3}], v[{x}:{x+3}], {c}')
    a.label(f'L_col_{tag}')
    a('s_waitcnt vmcnt(8) lgkmcnt(0)')
    for blk in range(2):
        for sg in range(2):
            d = D[sg][blk]
            for q in range(4):
                x = ZA + 16*blk + 4*q; f = F32 + 16*sg + 4*q
                a(f'{MF} v[{d}:{d+15}], v[{x}:{x+3}], v[{f}:{f+3}], ' + ('0' if q == 0 else f'v[{d}:{d+15}]'))
    if pack0:
        a(f's_sub_u32 s22, s21, {NWV}'); a('s_cselect_b32 s23, s21, s22')
    else:
        a(f's_add_u32 s22, s21, {NWV}')
        a(f's_cmp_lt_u32 s22, {ncol}'); a(f's_cselect_b32 s23, s22, s21')
    twiddle(P, COL_TWF)
    ool = Asm()
    if pack0:
        a('s_cmp_eq_u32 s21, 0'); a(f's_cbranch_scc1 L_sp1_{tag}')
    load_col(ZA, 4, 's23')
    if pack0:
        a.label(f'L_sp1r_{tag}')
        ool.label(f'L_sp1_{tag}')
        ool('s_mov_b32 s24, 512')
        main = a; a = ool; load_col_(ool, ZA, 8, 's24'); a = main
        ool(f's_branch L_sp1r_{tag}')
    f64_stage(P, False)
    if pack0:
        a('s_cmp_eq_u32 s21, 0'); a(f's_cbranch_scc1 L_sp2_{tag}')
    a('s_waitcnt vmcnt(8)')
    for blk in range(2):
        for r in range(0, 16, 2):
            w = WC + 16*blk + r; u = T + 8*((r >> 1) & 1); xr = D[0][blk]+r; xi = D[1][blk]+r
            a(f'v_lshlrev_b32 v{u}, 16, v{w}'); a(f'v_lshlrev_b32 v{u+1}, 16, v{w+1}')
            a(f'v_and_b32 v{u+2}, 0xffff0000, v{w}'); a(f'v_and_b32 v{u+3}, 0xffff0000, v{w+1}')
            a(f'v_pk_mul_f32 v[{u+4}:{u+5}], v[{xr}:{xr+1}], v[{u}:{u+1}]')
            a(f'v_pk_mul_f32 v[{u+6}:{u+7}], v[{xr}:{xr+1}], v[{u+2}:{u+3}]')
            a(f'v_pk_fma_f32 v[{u+4}:{u+5}], v[{xi}:{xi+1}], v[{u+2}:{u+3}], v[{u+4}:{u+5}] neg_lo:[1,0,0] neg_hi:[1,0,0]')
            a(f'v_pk_fma_f32 v[{u+6}:{u+7}], v[{xi}:{xi+1}], v[{u}:{u+1}], v[{u+6}:{u+7}]')
            a(f'v_cvt_pk_bf16_f32 v{P+16*blk+r}, v{u+4}, -v{u+6}')
            a(f'v_cvt_pk_bf16_f32 v{P+16*blk+r+1}, v{u+5}, -v{u+7}')
    if pack0:
        a.label(f'L_sp2r_{tag}')
        o = ool; SCR = COL_LDS; vW_, vI_, vR_ = T+36, T+37, T+38
        o.label(f'L_sp2_{tag}')
        o(f'v_and_b32 v{vR_}, 31, v0'); o(f'v_lshlrev_b32 v{vR_}, 3, v{vR_}'); o(f'v_lshrrev_b32 v{vI_}, 5, v0'); o(f'v_lshl_add_u32 v{vR_}, v{vI_}, 10, v{vR_}')
        o(f'v_add_u32 v{vW_}, {SCR}, v{vR_}'); o(f'v_add_u32 v{vI_}, 4, v{vW_}')
        o(f'v_sub_u32 v{vR_}, {SCR + 16384 - 256*59}, v{vR_}')
        kr = lambda blk, r: 32*blk + (r & 3) + 8*(r >> 2)
        for blk in range(2):
            for r in range(0, 16, 2):
                o(f'ds_write2st64_b32 v{vW_}, v{D[0][blk]+r}, v{D[0][blk]+r+1} offset0:{kr(blk, r)} offset1:{kr(blk, r+1)}')
                o(f'ds_write2st64_b32 v{vI_}, v{D[1][blk]+r}, v{D[1][blk]+r+1} offset0:{kr(blk, r)} offset1:{kr(blk, r+1)}')
        o('s_mov_b64 exec, 1')
        o(f'ds_write_b32 v{vW_}, v{D[0][0]} offset:16384'); o(f'ds_write_b32 v{vI_}, v{D[1][0]} offset:16384')
        o('s_mov_b64 exec, -1')
        o('s_waitcnt vmcnt(0)')
        seq = [(blk, r) for blk in range(2) for r in range(16)]
        sl = lambda n: T + 2*(n % 8)
        for n in range(7): o(f'ds_read_b64 v[{sl(n)}:{sl(n)+1}], v{vR_} offset:{256*(59 - kr(*seq[n]))}')
        u = T + 16
        for n, (blk, r) in enumerate(seq):
            if n + 7 < len(seq): o(f'ds_read_b64 v[{sl(n+7)}:{sl(n+7)+1}], v{vR_} offset:{256*(59 - kr(*seq[n+7]))}')
            o(f's_waitcnt lgkmcnt({min(7, len(seq)-1-n)})')
            xr = D[0][blk]+r; xi = D[1][blk]+r; yr = sl(n); yi = yr+1; wp = WC + 16*blk + r; wm = ZA + 16*blk + r
            o(f'v_lshlrev_b32 v{u}, 16, v{wp}'); o(f'v_and_b32 v{u+1}, 0xffff0000, v{wp}')
            o(f'v_lshlrev_b32 v{u+2}, 16, v{wm}'); o(f'v_and_b32 v{u+3}, 0xffff0000, v{wm}')
            o(f'v_mul_f32 v{u+4}, v{xr}, v{u}'); o(f'v_mul_f32 v{u+5}, v{xr}, v{u+1}')
            o(f'v_fma_f32 v{u+4}, -v{xi}, v{u+1}, v{u+4}'); o(f'v_fma_f32 v{u+5}, v{xi}, v{u}, v{u+5}')
            o(f'v_fma_f32 v{u+4}, v{yr}, v{u+2}, v{u+4}'); o(f'v_fma_f32 v{u+5}, v{yr}, v{u+3}, v{u+5}')
            o(f'v_fma_f32 v{u+4}, v{yi}, v{u+3}, v{u+4}'); o(f'v_fma_f32 v{u+5}, -v{yi}, v{u+2}, v{u+5}')
            o(f'v_cvt_pk_bf16_f32 v{P+16*blk+r}, v{u+4}, -v{u+5}')
        o(f's_branch L_sp2r_{tag}')
    load_col(WC, 8, 's23')
    f64_stage(P, True)
    twiddle(P, COL_TWI)
    for blk in range(2):
        for sg in range(2):
            d = D[sg][blk]
            for q in range(4):
                x = P + 16*blk + 4*q; f = F32 + 16*sg + 4*q
                a(f'{MF} v[{d}:{d+15}], v[{f}:{f+3}], v[{x}:{x+3}], ' + ('0' if q == 0 else f'v[{d}:{d+15}]'))
    a('s_and_b32 s40, s21, 511'); a('s_cmp_lg_u32 s40, 0'); a(f's_cbranch_scc1 L_nosp_{tag}')
    a('s_mov_b32 s40, 0.5'); a('s_mov_b32 s41, 0.5')
    for sg in range(2):
        for blk in range(2):
            for r in range(0, 16, 2):
                d = D[sg][blk]+r
                a(f'v_pk_mul_f32 v[{d}:{d+1}], v[{d}:{d+1}], s[40:41]')
    a.label(f'L_nosp_{tag}')
    a(f's_mul_i32 s40, s21, {ZP}')
    for blk in range(2):
        for q in range(4):
            o = P + 16*blk + 4*q
            for i in range(4):
                a(f'v_cvt_pk_bf16_f32 v{o+i}, v{D[0][blk]+4*q+i}, v{D[1][blk]+4*q+i}')
            g = 4*blk + q
            if g == 4: a('s_add_u32 s40, s40, 4096')
            a(f'buffer_store_dwordx4 v[{o}:{o+3}], v1, s[12:15], s40 offen offset:{1024*(g & 3)}{SCY}')
    if pack0:
        a('s_cmp_lg_u32 s21, 0'); a(f's_cbranch_scc1 L_sp3_{tag}')
        a(f's_mov_b32 s40, {512*ZP}')
        for blk in range(2):
            for q in range(4):
                o = P + 16*blk + 4*q
                for i in range(4):
                    a(f'v_cvt_pk_bf16_f32 v{o+i}, -v{D[1][blk]+4*q+i}, -v{D[1][blk]+4*q+i}')
                g = 4*blk + q
                if g == 4: a('s_add_u32 s40, s40, 4096')
                a(f'buffer_store_dwordx4 v[{o}:{o+3}], v1, s[12:15], s40 offen offset:{1024*(g & 3)}{SCY}')
        a.label(f'L_sp3_{tag}')
        a(f's_sub_u32 s21, s21, {NWV}'); a(f's_cbranch_scc0 L_col_{tag}')
    else:
        a(f's_add_u32 s21, s21, {NWV}')
        a(f's_cmp_lt_u32 s21, {ncol}'); a(f's_cbranch_scc1 L_col_{tag}')
    if stamp_end: stamp_end(a)
    else: st_end(a, 3, tag)
    a(f's_branch {end_branch}' if end_branch else 's_endpgm')
    a.extend(ool)
    return R.p, COL_LDS

def gen_row_inv(a, tag, wg='s2'):
    st_begin(a)
    a('s_load_dwordx2 s[18:19], s[0:1], 64')
    a('v_lshrrev_b32 v1, 6, v0'); a('v_and_b32 v0, 63, v0'); a('v_readfirstlane_b32 s20, v1')
    a(f's_and_b32 s21, {wg}, 7'); a(f's_lshr_b32 s22, {wg}, 3')
    a('s_lshr_b32 s23, s22, 1')
    a('s_and_b32 s24, s22, 1'); a('s_lshl_b32 s25, s21, 1'); a('s_add_u32 s24, s24, s25')
    a('s_lshl_b32 s25, s23, 2'); a('s_and_b32 s26, s20, 3'); a('s_add_u32 s25, s25, s26'); a('s_lshl_b32 s25, s25, 6')
    a('s_lshl_b32 s26, s24, 2'); a('s_add_u32 s25, s25, s26'); a('s_lshr_b32 s26, s20, 2'); a('s_add_u32 s25, s25, s26')
    a('s_lshl_b32 s26, s25, 11'); a('s_add_u32 s27, s26, 4096')
    a('s_lshr_b32 s28, s24, 3'); a('s_lshl_b32 s28, s28, 2'); a('s_lshr_b32 s29, s23, 1'); a('s_add_u32 s28, s28, s29'); a('s_lshl_b32 s28, s28, 6')
    a('s_and_b32 s29, s23, 1'); a('s_lshl_b32 s29, s29, 5'); a('s_add_u32 s28, s28, s29')
    a('s_and_b32 s29, s24, 7'); a('s_lshl_b32 s29, s29, 2'); a('s_add_u32 s28, s28, s29'); a('s_lshl_b32 s28, s28, 4')
    a('s_waitcnt lgkmcnt(0)')
    srd_off(a, 4, 18, WS_Y, ZBYTES); srd_off(a, 8, 18, WS_S, 2048*2048)
    R = Regs(8, 256)
    L = R.alloc(20, 4)
    a('v_lshrrev_b32 v2, 2, v0'); a('v_and_b32 v3, 3, v0')
    a('v_mul_u32_u24 v4, 72, v2'); a('v_lshrrev_b32 v5, 3, v2'); a('v_lshl_add_u32 v4, v5, 3, v4'); a('v_lshl_add_u32 v4, v3, 4, v4')
    a('s_mul_i32 s40, s20, 1168'); a('v_add_u32 v4, s40, v4')
    a('s_lshl_b32 s40, s20, 4'); a('v_add_u32 v5, s40, v2'); a(f's_mov_b32 s41, {ZP}'); a('v_mul_lo_u32 v5, v5, s41'); a('v_lshl_add_u32 v5, v3, 4, v5')
    for it in range(5):
        a(f's_add_u32 s41, s28, {it*128*ZP}')
        a(f'buffer_load_dwordx4 v[{L+4*it}:{L+4*it+3}], v5, s[4:7], s41 offen')
    G = R.alloc(16, 4); CS = R.alloc(16, 2); SN = R.alloc(16, 2); H = R.alloc(16, 4); T = R.alloc(8, 4)
    fC32, fC1k, fH4, fPh, vSg = 2, 3, 6, 7, 1
    a(f'v_and_b32 v{T}, 31, v0')
    a(f'v_lshrrev_b32 v{T+1}, 2, v{T}'); a(f'v_and_b32 v{T+1}, 1, v{T+1}'); a(f'v_lshlrev_b32 v{T+1}, 4, v{T+1}')
    a(f'v_lshrrev_b32 v{T+2}, 3, v{T}'); a(f'v_lshl_add_u32 v{T+1}, v{T+2}, 2, v{T+1}')
    a(f'v_and_b32 v{T+2}, 3, v{T}'); a(f'v_add_u32 v{T+1}, v{T+1}, v{T+2}'); a(f'v_cvt_f32_u32 v{T+1}, v{T+1}')
    a(f'v_mul_f32 v{fC32}, {f32(1/32)}, v{T+1}'); a(f'v_mul_f32 v{fC1k}, {f32(1/1024)}, v{T+1}')
    a(f'v_lshrrev_b32 v{fH4}, 5, v0'); a(f'v_cvt_f32_u32 v{fH4}, v{fH4}'); a(f'v_mul_f32 v{fH4}, {f32(4.0)}, v{fH4}')
    for sg in range(2):
        a(f'v_mov_b32 v{fPh}, {f32(0.25*sg)}')
        for q in range(2): emit_img(a, G+8*sg+4*q, fH4, 8*q, fC32, f'v{fPh}', T)
    for r in range(16): emit_cs(a, CS+r, SN+r, fH4, (r & 3) + 8*(r >> 2), fC1k, None, T)
    a(f'v_and_b32 v{T}, 31, v0'); a(f'v_cvt_f32_u32 v{T}, v{T}'); a(f'v_mul_f32 v{fC32}, {f32(1/32)}, v{T}')
    for q in range(4): emit_img(a, H+4*q, fH4, 8*q, fC32, None, T)
    a(f'v_and_b32 v{T}, 1, v0'); a(f'v_cvt_f32_u32 v{T}, v{T}'); a(f'v_fma_f32 v{vSg}, v{T}, -2.0, 1.0')
    a('v_cmp_gt_u32 vcc, 32, v0'); a(f'v_cndmask_b32 v{vSg}, 0, v{vSg}, vcc')
    for it in range(4):
        a(f's_waitcnt vmcnt({4-it})')
        a(f'ds_write_b64 v4, v[{L+4*it}:{L+4*it+1}] offset:{9344*it}')
        a(f'ds_write_b64 v4, v[{L+4*it+2}:{L+4*it+3}] offset:{9344*it+8}')
    a('s_waitcnt vmcnt(0)')
    a('s_cmp_lg_u32 s20, 0'); a(f's_cbranch_scc1 L_no5_{tag}')
    a(f'ds_write_b64 v4, v[{L+16}:{L+17}] offset:{9344*4}')
    a(f'ds_write_b64 v4, v[{L+18}:{L+19}] offset:{9344*4+8}')
    a.label(f'L_no5_{tag}')
    a('s_waitcnt lgkmcnt(0)'); a('s_barrier')
    a('v_and_b32 v2, 31, v0'); a('v_lshrrev_b32 v3, 5, v0'); a('v_lshl_add_u32 v2, v3, 7, v2')
    a('v_lshrrev_b32 v3, 3, v2'); a('v_mul_u32_u24 v2, 72, v2'); a('v_lshl_add_u32 v2, v3, 3, v2')
    a('s_lshl_b32 s31, s20, 2'); a('v_add_u32 v2, s31, v2'); a('v_mov_b32 v3, s31')
    V = [R.alloc(8, 4), R.alloc(8, 4)]; NQ = [R.alloc(), R.alloc()]
    D1 = [[R.alloc(16, 4), R.alloc(16, 4)], [R.alloc(16, 4), R.alloc(16, 4)]]
    P = [R.alloc(16, 4), R.alloc(16, 4)]
    for z in range(2):
        for q in range(2):
            for jj in range(4):
                a(f'ds_read_b32 v{V[z]+4*q+jj}, v2 offset:{2336*(8*q+jj) + 32*z}')
        a(f'ds_read_b32 v{NQ[z]}, v3 offset:{72*512 + 8*64 + 32*z}')
    a('v_lshlrev_b32 v4, 6, v0'); a('v_and_b32 v4, 0x7ff, v4'); a('v_lshrrev_b32 v5, 5, v0'); a('v_lshl_add_u32 v4, v5, 5, v4')
    for z in range(2):
        a(f's_waitcnt lgkmcnt({9*(1-z)})')
        for sg in range(2):
            d = D1[z][sg]
            a(f'{MF} v[{d}:{d+15}], v[{V[z]}:{V[z]+3}], v[{G+8*sg}:{G+8*sg+3}], 0')
            a(f'{MF} v[{d}:{d+15}], v[{V[z]+4}:{V[z]+7}], v[{G+8*sg+4}:{G+8*sg+7}], v[{d}:{d+15}]')
        a(f'v_lshlrev_b32 v{NQ[z]}, 16, v{NQ[z]}')
    for z in range(2):
        a(f'v_fmac_f32 v{D1[z][0]}, v{NQ[z]}, v{vSg}')
        cmul_pack(a, P[z], D1[z][0], D1[z][1], CS, SN, T)
        d2 = D1[z][0]
        for q in range(4):
            a(f'{MF} v[{d2}:{d2+15}], v[{P[z]+4*q}:{P[z]+4*q+3}], v[{H+4*q}:{H+4*q+3}], ' + ('0' if q == 0 else f'v[{d2}:{d2+15}]'))
    for z in range(2):
        d2 = D1[z][0]; o = D1[z][1]
        for u in range(8): a(f'v_cvt_pk_bf16_f32 v{o+u}, v{d2+2*u}, v{d2+2*u+1}')
        so = 's26' if z == 0 else 's27'
        a(f'buffer_store_dwordx4 v[{o}:{o+3}], v4, s[8:11], {so} offen')
        a(f'buffer_store_dwordx4 v[{o+4}:{o+7}], v4, s[8:11], {so} offen offset:16')
    st_end(a, 4, tag)
    a('s_endpgm')
    return R.p, TILE_BYTES
```

```python
from asm import *
from fft import *
import fft
from gemm16 import *
import roles_gemm
from roles_gemm import *
WS_PF = 0x2C30000
WS_CP = 0x2C40000
CPB = 16*3584*4
ZB2 = 515*ZP
TILE0 = 98304; ROWB = TILE0; CSP = 137216
STAT_LDS = 147456; CS_LDS = STAT_LDS + 1024; FUSED_LDS = CS_LDS + 1024
NLOG2E = 0xbfb8aa3b
SC1 = ' sc1'
UNT = ''; PACK0 = False; COOP = False; WNT = ''; PFNT = ''; XNT = ''; FUSE2 = False; PFB = 8192; DSLEEP = 8; PSLEEP = 0; NOSYNC = False; EFIRST = False; WARM = False; NEARLY = 2

def top(a, stamp):
    a('s_load_dwordx2 s[80:81], s[0:1], 0')
    a('s_load_dwordx2 s[82:83], s[0:1], 32')
    a('s_load_dwordx2 s[84:85], s[0:1], 64')
    a('s_load_dwordx2 s[86:87], s[0:1], 56')
    a('s_load_dwordx2 s[88:89], s[0:1], 40')
    if stamp: stamp_begin(a)
    a('v_lshrrev_b32 v1, 6, v0'); a('v_and_b32 v0, 63, v0'); a('v_readfirstlane_b32 s20, v1')
    for r in range(240, 252): a(f'v_mov_b32 v{r}, 0')
    a('s_and_b32 s21, s2, 7'); a('s_lshr_b32 s22, s2, 3')
    a('s_and_b32 s76, s21, 3'); a('s_lshl_b32 s76, s76, 2'); a('s_and_b32 s24, s22, 3'); a('s_add_u32 s76, s76, s24')
    a('s_lshr_b32 s77, s21, 2'); a('s_mul_i32 s77, s77, 7'); a('s_lshr_b32 s25, s22, 2'); a('s_add_u32 s77, s77, s25')

class Early:
    def __init__(s, cfg): s.cfg = cfg; s.vA = None
    def setup(s, a, tag):
        cfg = s.cfg
        a('s_cmp_lt_u32 s20, 4'); a(f's_cbranch_scc1 L_noearly_{tag}')
        a('s_sub_u32 s64, s20, 4')
        a(f's_mul_i32 s65, s76, {cfg.BM*cfg.pitchA}'); a(f's_mul_i32 s66, s77, {cfg.BN*2}')
        R = Regs(240, 256)
        s.vA, s.vW = emit_loader_setup(a, cfg, R, 0, 's64', 's65', 's66', [236, 237, 238, 239])
        a.label(f'L_noearly_{tag}')
        a('s_sub_u32 s64, s20, 4')
        srd(a, 68, 80, M*Dm*2); srd(a, 72, 82, Dm*F*2)
        a(f's_mul_i32 s78, s64, {cfg.PA*1024}')
        a(f's_mul_i32 s79, s64, {cfg.PW*1024}'); a(f's_add_u32 s79, s79, {cfg.A_BYTES}')
        a('s_mov_b32 s67, 0')
    def issue(s, a, tag):
        cfg = s.cfg
        a('s_cmp_lt_u32 s20, 4'); a(f's_cbranch_scc1 L_noissue_{tag}')
        a('s_lshl_b32 s62, s76, 7'); a(f's_mul_i32 s63, s76, {64*cfg.pitchW}')
        for g in stage_load_list(cfg, s.vA, s.vW, 68, 72, 62, 63, 78, 38):
            for x in g: a(x)
        if NEARLY > 1:
            a('s_add_u32 s62, s76, 1'); a('s_and_b32 s62, s62, 15'); a(f's_mul_i32 s63, s62, {64*cfg.pitchW}'); a('s_lshl_b32 s62, s62, 7')
            a(f's_add_u32 s78, s78, {cfg.STAGE}'); a(f's_add_u32 s79, s79, {cfg.STAGE}')
            for g in stage_load_list(cfg, s.vA, s.vW, 68, 72, 62, 63, 78, 38):
                for x in g: a(x)
        a.label(f'L_noissue_{tag}')
    def wait(s, a, n, tag):
        a(f's_waitcnt vmcnt({n + s.cfg.P})')
        a('s_cmp_ge_u32 s20, 4'); a(f's_cbranch_scc1 L_w{tag}')
        a(f's_waitcnt vmcnt({n})')
        a.label(f'L_w{tag}')

def row_part(a, tag, early):
    wg = 's2'
    a(f's_and_b32 s21, {wg}, 7'); a(f's_lshr_b32 s22, {wg}, 3')
    a('s_lshr_b32 s23, s22, 1')
    a('s_and_b32 s24, s22, 1'); a('s_lshl_b32 s25, s21, 1'); a('s_add_u32 s24, s24, s25')
    a('s_lshl_b32 s25, s23, 2'); a('s_and_b32 s26, s20, 3'); a('s_add_u32 s25, s25, s26'); a('s_lshl_b32 s25, s25, 6')
    a('s_lshl_b32 s26, s24, 2'); a('s_add_u32 s25, s25, s26'); a('s_lshr_b32 s26, s20, 2'); a('s_add_u32 s25, s25, s26')
    a('s_lshl_b32 s26, s25, 11'); a('s_add_u32 s27, s26, 4096')
    a('s_lshr_b32 s28, s24, 3'); a('s_lshl_b32 s28, s28, 2'); a('s_lshr_b32 s29, s23, 1'); a('s_add_u32 s28, s28, s29'); a('s_lshl_b32 s28, s28, 6')
    a('s_and_b32 s29, s23, 1'); a('s_lshl_b32 s29, s29, 5'); a('s_add_u32 s28, s28, s29')
    a('s_and_b32 s29, s24, 7'); a('s_lshl_b32 s29, s29, 2'); a('s_add_u32 s28, s28, s29'); a('s_lshl_b32 s28, s28, 4')
    a('v_lshlrev_b32 v1, 5, v0')
    a('s_waitcnt lgkmcnt(0)')
    srd(a, 4, 80, 2048*2048)
    R = Regs(8, 236)
    X = [R.alloc(8, 4), R.alloc(8, 4)]
    a(f'buffer_load_dwordx4 v[{X[0]}:{X[0]+3}], v1, s[4:7], s26 offen{XNT}')
    a(f'buffer_load_dwordx4 v[{X[0]+4}:{X[0]+7}], v1, s[4:7], s26 offen offset:16{XNT}')
    a(f'buffer_load_dwordx4 v[{X[1]}:{X[1]+3}], v1, s[4:7], s27 offen{XNT}')
    a(f'buffer_load_dwordx4 v[{X[1]+4}:{X[1]+7}], v1, s[4:7], s27 offen offset:16{XNT}')
    if early: early.setup(a, tag)
    if early and EFIRST: early.issue(a, tag)
    srd_off(a, 12, 84, WS_Z, ZB2)
    B1 = R.alloc(16, 4); CS = R.alloc(16, 2); SN = R.alloc(16, 2); A2 = R.alloc(16, 4)
    T = R.alloc(8, 4); XFT = R.alloc(8, 4)
    fC32, fC1k, fH, fD, fPh = 2, 3, 4, 5, 6
    a('v_and_b32 v7, 31, v0'); a('v_cvt_f32_u32 v7, v7')
    a(f'v_mul_f32 v{fC32}, {f32(1/32)}, v7'); a(f'v_mul_f32 v{fC1k}, {f32(1/1024)}, v7')
    a(f'v_lshrrev_b32 v{fH}, 5, v0'); a(f'v_cvt_f32_u32 v{fH}, v{fH}')
    if COOP:
        assert NEARLY == 1 and CS == B1+16 and SN == CS+16 and A2 == SN+16
        TABL = 49152; vE = T+5; O = XFT
        a(f'v_and_b32 v{fD}, 31, v0'); a(f'v_lshrrev_b32 v{fD}, 1, v{fD}'); a(f'v_cvt_f32_u32 v{fD}, v{fD}'); a(f'v_mul_f32 v{fD}, {f32(1/32)}, v{fD}')
        a(f'v_and_b32 v{fPh}, 1, v0'); a(f'v_cvt_f32_u32 v{fPh}, v{fPh}'); a(f'v_mul_f32 v{fPh}, {f32(0.25)}, v{fPh}')
        a('s_lshr_b32 s40, s20, 2'); a('s_lshl_b32 s40, s40, 4'); a('s_and_b32 s41, s20, 3'); a('s_lshl_b32 s41, s41, 1'); a('s_add_u32 s40, s40, s41')
        a(f'v_cvt_f32_u32 v{vE}, s40'); a(f'v_fma_f32 v{vE}, v{fH}, 4.0, v{vE}'); a(f'v_fma_f32 v{vE}, v{fH}, 4.0, v{vE}')
        for e in range(2): emit_cs(a, T+1+e, T+3+e, vE, e, fC32, None, T)
        a('s_nop 0')
        a(f'v_cvt_pk_bf16_f32 v{O}, v{T+1}, v{T+2}'); a(f'v_cvt_pk_bf16_f32 v{O+1}, -v{T+3}, -v{T+4}')
        a('s_lshr_b32 s40, s20, 1'); a('s_lshl_b32 s40, s40, 3'); a('s_and_b32 s41, s20, 1'); a('s_lshl_b32 s41, s41, 1'); a('s_add_u32 s40, s40, s41')
        a(f'v_cvt_f32_u32 v{vE}, s40'); a(f'v_fma_f32 v{vE}, v{fH}, 4.0, v{vE}')
        for e in range(2): emit_cs(a, O+2+e, O+4+e, vE, e, fC1k, None, T)
        for e in range(2):
            emit_cs(a, T+1, T+2, vE, e, fD, f'v{fPh}', T); a('s_nop 0')
            a(f'v_cvt_pk_bf16_f32 v{O+6+e}, v{T+1}, v{T+2}')
        a(f'v_lshlrev_b32 v{T+6}, 4, v0'); a(f'v_add_u32 v{T+6}, {TABL}, v{T+6}')
        a('s_lshr_b32 s40, s20, 2'); a('s_lshl_b32 s40, s40, 10'); a('s_and_b32 s41, s20, 3'); a('s_lshl_b32 s41, s41, 2'); a('s_add_u32 s40, s40, s41')
        a(f'v_add_u32 v{T}, s40, v{T+6}')
        a(f'ds_write_b32 v{T}, v{O}'); a(f'ds_write_b32 v{T}, v{O+1} offset:2048')
        a('s_lshr_b32 s40, s20, 1'); a('s_lshl_b32 s40, s40, 10'); a('s_and_b32 s41, s20, 1'); a('s_lshl_b32 s41, s41, 3'); a('s_add_u32 s40, s40, s41')
        a(f'v_add_u32 v{T+1}, s40, v{T+6}')
        for i in range(3): a(f'ds_write_b64 v{T+1}, v[{O+2+2*i}:{O+3+2*i}] offset:{4096*(i+1)}')
        a('s_waitcnt lgkmcnt(0)'); a('s_barrier')
        for g in range(16): a(f'ds_read_b128 v[{B1+4*g}:{B1+4*g+3}], v{T+6} offset:{1024*g}')
    else:
        a(f'v_mul_f32 v7, {f32(8.0)}, v{fH}')
        for q in range(2):
            for jj in range(4):
                for e in range(2):
                    aa = 16*q + 2*jj + e
                    a(f'v_add_f32 v{T}, {f32(float(aa))}, v7')
                    a(f'v_mul_f32 v{T}, v{T}, v{fC32}'); a(f'v_fract_f32 v{T}, v{T}')
                    a(f'v_cos_f32 v{T+1+e}, v{T}'); a(f'v_sin_f32 v{T+3+e}, v{T}')
                a('s_nop 0')
                a(f'v_cvt_pk_bf16_f32 v{B1+4*q+jj}, v{T+1}, v{T+2}')
                a(f'v_cvt_pk_bf16_f32 v{B1+8+4*q+jj}, -v{T+3}, -v{T+4}')
        a(f'v_mul_f32 v7, {f32(4.0)}, v{fH}')
        for r in range(16):
            emit_cs(a, CS+r, SN+r, 7, (r & 3) + 8*(r >> 2), fC1k, None, T)
        a(f'v_and_b32 v{fD}, 31, v0'); a(f'v_lshrrev_b32 v{fD}, 1, v{fD}'); a(f'v_cvt_f32_u32 v{fD}, v{fD}'); a(f'v_mul_f32 v{fD}, {f32(1/32)}, v{fD}')
        a(f'v_and_b32 v{fPh}, 1, v0'); a(f'v_cvt_f32_u32 v{fPh}, v{fPh}'); a(f'v_mul_f32 v{fPh}, {f32(0.25)}, v{fPh}')
        for q in range(4): emit_img(a, A2+4*q, 7, 8*q, fD, f'v{fPh}', T)
    vRB = 2; vTR, vTW = 3, 4
    a(f's_lshl_b32 s30, s20, 12'); a(f's_add_u32 s30, s30, {ROWB}')
    a(f'v_add_u32 v{vRB}, s30, v1')
    a(f'v_lshrrev_b32 v5, 5, v0'); a(f'v_lshlrev_b32 v5, 3, v5'); a(f'v_lshrrev_b32 v6, 2, v0'); a(f'v_and_b32 v6, 3, v6'); a('v_add_u32 v5, v5, v6')
    a('v_lshlrev_b32 v5, 6, v5'); a('v_lshrrev_b32 v6, 4, v0'); a('v_and_b32 v6, 1, v6'); a('v_lshl_add_u32 v5, v6, 5, v5')
    a('v_and_b32 v6, 3, v0'); a('v_lshl_add_u32 v5, v6, 3, v5'); a(f'v_add_u32 v{vTR}, s30, v5')
    a('v_and_b32 v5, 31, v0'); a('v_lshrrev_b32 v6, 5, v0'); a('v_lshl_add_u32 v5, v6, 6, v5')
    a('v_lshrrev_b32 v6, 3, v5'); a('v_mul_u32_u24 v5, 72, v5'); a('v_lshl_add_u32 v5, v6, 3, v5')
    a('s_lshl_b32 s31, s20, 2'); a(f's_add_u32 s31, s31, {TILE0}'); a(f'v_add_u32 v{vTW}, s31, v5')
    a('v_mov_b32 v5, s31')
    XF = [R.alloc(16, 2), R.alloc(16, 2)]
    S = [R.alloc(4, 2), R.alloc(4, 2)]
    if early and EFIRST: early.wait(a, 0, tag)
    else: a('s_waitcnt vmcnt(0)')
    if early and not EFIRST: early.issue(a, tag)
    for z in range(2):
        for j in range(8):
            a(f'v_lshlrev_b32 v{XF[z]+2*j}, 16, v{X[z]+j}')
            a(f'v_and_b32 v{XF[z]+2*j+1}, 0xffff0000, v{X[z]+j}')
    for z in range(2):
        a(f'v_pk_add_f32 v[{S[z]}:{S[z]+1}], v[{XF[z]}:{XF[z]+1}], v[{XF[z]+2}:{XF[z]+3}]')
    for j in range(2, 8):
        for z in range(2):
            a(f'v_pk_add_f32 v[{S[z]}:{S[z]+1}], v[{S[z]}:{S[z]+1}], v[{XF[z]+2*j}:{XF[z]+2*j+1}]')
    for z in range(2): a(f'v_add_f32 v{S[z]}, v{S[z]}, v{S[z]+1}')
    allreduce2(a, S[0], S[0]+2, S[1], S[1]+2)
    Mn = [R.alloc(2, 2), R.alloc(2, 2)]
    ST = R.alloc(4, 2)
    for z in range(2):
        a(f'v_mul_f32 v{Mn[z]}, {f32(-1/1024)}, v{S[z]}'); a(f'v_mov_b32 v{Mn[z]+1}, v{Mn[z]}')
    for z in range(2):
        for j in range(8):
            a(f'v_pk_add_f32 v[{T+2*z}:{T+2*z+1}], v[{XF[z]+2*j}:{XF[z]+2*j+1}], v[{Mn[z]}:{Mn[z]+1}]')
            if j == 0: a(f'v_pk_mul_f32 v[{S[z]}:{S[z]+1}], v[{T+2*z}:{T+2*z+1}], v[{T+2*z}:{T+2*z+1}]')
            else: a(f'v_pk_fma_f32 v[{S[z]}:{S[z]+1}], v[{T+2*z}:{T+2*z+1}], v[{T+2*z}:{T+2*z+1}], v[{S[z]}:{S[z]+1}]')
    for z in range(2): a(f'v_add_f32 v{S[z]}, v{S[z]}, v{S[z]+1}')
    allreduce2(a, S[0], S[0]+2, S[1], S[1]+2)
    for z in range(2):
        s = S[z]
        a(f'v_mul_f32 v{s}, {f32(1/1024)}, v{s}')
        a(f'v_cvt_pk_bf16_f32 v{s}, v{s}, v{s}'); a(f'v_lshlrev_b32 v{s}, 16, v{s}')
        a(f'v_add_f32 v{s}, {f32(1e-5)}, v{s}')
        a(f'v_cvt_pk_bf16_f32 v{s}, v{s}, v{s}'); a(f'v_lshlrev_b32 v{s}, 16, v{s}')
        a(f'v_sqrt_f32 v{s}, v{s}'); a('s_nop 0')
        a(f'v_cvt_pk_bf16_f32 v{s}, v{s}, v{s}'); a(f'v_lshlrev_b32 v{s}, 16, v{s}')
        a(f'v_rcp_f32 v{s}, v{s}'); a('s_nop 0'); a(f'v_mov_b32 v{s+1}, v{s}')
        m = Mn[z]
        a(f'v_cvt_pk_bf16_f32 v{m}, v{m}, v{m}'); a(f'v_lshlrev_b32 v{m}, 16, v{m}'); a(f'v_mov_b32 v{m+1}, v{m}')
        a(f'v_mul_f32 v{ST+2*z}, {hex(NLOG2E)}, v{s}'); a(f'v_mul_f32 v{ST+2*z+1}, v{ST+2*z}, v{m}')
    a('s_mov_b64 exec, 1')
    for z in range(2):
        a(f'ds_write_b32 v5, v{ST+2*z} offset:{72*513 + 8*64 + 32*z}')
        a(f'ds_write_b32 v5, v{ST+2*z+1} offset:{72*514 + 8*64 + 32*z}')
    a('s_mov_b64 exec, -1')
    for z in range(2):
        for j in range(8):
            u = T + 2*((j & 1) + 2*z)
            a(f'v_pk_add_f32 v[{u}:{u+1}], v[{XF[z]+2*j}:{XF[z]+2*j+1}], v[{Mn[z]}:{Mn[z]+1}]')
            a(f'v_pk_mul_f32 v[{u}:{u+1}], v[{u}:{u+1}], v[{S[z]}:{S[z]+1}]')
            a(f'v_cvt_pk_bf16_f32 v{X[z]+j}, v{u}, v{u+1}')
    for z in range(2):
        a(f'ds_write_b128 v{vRB}, v[{X[z]}:{X[z]+3}] offset:{2048*z}')
        a(f'ds_write_b128 v{vRB}, v[{X[z]+4}:{X[z]+7}] offset:{2048*z+16}')
    AD = [R.alloc(8, 4), R.alloc(8, 4)]
    D1 = [[R.alloc(16, 4), R.alloc(16, 4)], [R.alloc(16, 4), R.alloc(16, 4)]]
    a('s_waitcnt lgkmcnt(0)')
    for z in range(2):
        for q in range(2):
            for jj in range(2):
                a(f'ds_read_b64_tr_b16 v[{AD[z]+4*q+2*jj}:{AD[z]+4*q+2*jj+1}], v{vTR} offset:{2048*z + 1024*q + 256*jj}')
    for z in range(2):
        a(f's_waitcnt lgkmcnt({4*(1-z)})')
        for sg in range(2):
            d = D1[z][sg]
            a(f'{MF} v[{d}:{d+15}], v[{AD[z]}:{AD[z]+3}], v[{B1+8*sg}:{B1+8*sg+3}], 0')
            a(f'{MF} v[{d}:{d+15}], v[{AD[z]+4}:{AD[z]+7}], v[{B1+8*sg+4}:{B1+8*sg+7}], v[{d}:{d+15}]')
    a('s_barrier')
    P = XF; ALT = S
    for z in range(2):
        d = D1[z][0]
        a(f'v_pk_add_f32 v[{ALT[z]}:{ALT[z]+1}], v[{d}:{d+1}], v[{d+2}:{d+3}]')
        for j in range(2, 8): a(f'v_pk_add_f32 v[{ALT[z]}:{ALT[z]+1}], v[{ALT[z]}:{ALT[z]+1}], v[{d+2*j}:{d+2*j+1}]')
        a(f'v_sub_f32 v{ALT[z]}, v{ALT[z]}, v{ALT[z]+1}')
        a(f'v_mov_b32 v{ALT[z]+1}, v{ALT[z]}'); a(f'v_permlane32_swap_b32 v{ALT[z]}, v{ALT[z]+1}'); a(f'v_add_f32 v{ALT[z]}, v{ALT[z]}, v{ALT[z]+1}')
        a(f'v_mov_b32 v{ALT[z]+1}, 0'); a(f'v_cvt_pk_bf16_f32 v{ALT[z]}, v{ALT[z]}, v{ALT[z]+1}')
        cmul_pack(a, P[z], D1[z][0], D1[z][1], CS, SN, T)
        d2 = D1[z][0]
        for q in range(4):
            a(f'{MF} v[{d2}:{d2+15}], v[{A2+4*q}:{A2+4*q+3}], v[{P[z]+4*q}:{P[z]+4*q+3}], ' + ('0' if q == 0 else f'v[{d2}:{d2+15}]'))
    for z in range(2):
        d2 = D1[z][0]; o = D1[z][1]
        for u in range(8):
            a(f'v_cvt_pk_bf16_f32 v{o+u}, v{d2+2*u}, v{d2+2*u+1}')
            du = 32*(u & 1) + 128*(u >> 1)
            a(f'ds_write_b32 v{vTW}, v{o+u} offset:{73*du + 32*z}')
    a('s_mov_b64 exec, 1')
    for z in range(2): a(f'ds_write_b32 v5, v{ALT[z]} offset:{72*512 + 8*64 + 32*z}')
    if PACK0:
        for z in range(2): a(f'ds_write_b16 v5, v{ALT[z]} offset:{32*z + 2}')
    a('s_mov_b64 exec, -1')
    a('s_waitcnt lgkmcnt(0)'); a('s_barrier')
    return R.p

def wp_part(a, tag, early, tables, nocs=False, mid=None):
    wg = 's2'
    a('s_load_dwordx4 s[16:19], s[0:1], 8')
    a(f's_and_b32 s21, {wg}, 7'); a(f's_lshr_b32 s22, {wg}, 3'); a('s_and_b32 s22, s22, 15')
    a('s_and_b32 s24, s21, 3'); a('s_lshl_b32 s24, s24, 1'); a('s_and_b32 s25, s22, 1'); a('s_add_u32 s24, s24, s25')
    a('s_lshr_b32 s23, s21, 2'); a('s_lshl_b32 s23, s23, 3'); a('s_lshr_b32 s25, s22, 1'); a('s_add_u32 s23, s23, s25')
    a('s_lshl_b32 s25, s23, 2'); a('s_and_b32 s26, s20, 3'); a('s_add_u32 s25, s25, s26'); a('s_lshl_b32 s25, s25, 5')
    a('s_lshl_b32 s26, s24, 2'); a('s_add_u32 s25, s25, s26'); a('s_lshr_b32 s26, s20, 2'); a('s_add_u32 s25, s25, s26')
    a('s_mul_i32 s26, s25, 1026'); a('s_add_u32 s27, s26, 2052')
    a('s_lshr_b32 s28, s23, 1'); a('s_lshl_b32 s28, s28, 6'); a('s_and_b32 s29, s23, 1'); a('s_lshl_b32 s29, s29, 5'); a('s_add_u32 s28, s28, s29')
    a('s_lshl_b32 s29, s24, 2'); a('s_add_u32 s28, s28, s29'); a('s_lshl_b32 s28, s28, 4')
    a('v_lshlrev_b32 v1, 4, v0'); a('v_mov_b32 v3, 1024')
    a('s_and_b32 s34, s2, 127')
    a('s_waitcnt lgkmcnt(0)')
    srd(a, 4, 16, 2048*1026); srd(a, 8, 18, 2048*1026)
    R = Regs(8, 232)
    if tables:
        ZV = R.alloc(4, 4); ZA_ = R.alloc(2)
        for i in range(4): a(f'v_mov_b32 v{ZV+i}, 0')
        all_addr(a, ZA_)
        srd_off(a, 96, 84, WS_PF, PFB); srd(a, 92, 86, 256)
        if FUSE2:
            a('s_cmp_ge_u32 s2, 240'); a(f's_cbranch_scc1 L_nofz_{tag}'); a('s_cmp_lg_u32 s20, 1'); a(f's_cbranch_scc1 L_nofz_{tag}')
            srd_off(a, 44, 84, WS_FLG, 0x10000)
            a(f'v_lshlrev_b32 v{ZA_}, 6, v0'); a('s_sub_u32 s40, s2, 224'); a('s_lshl_b32 s40, s40, 12')
            a(f'buffer_store_dword v{ZV}, v{ZA_}, s[44:47], s40 offen sc1')
            a.label(f'L_nofz_{tag}')
        a('s_cmp_lg_u32 s2, 240'); a(f's_cbranch_scc1 L_noclr_{tag}'); a('s_cmp_lg_u32 s20, 7'); a(f's_cbranch_scc1 L_noclr_{tag}')
        a(f'buffer_store_dwordx4 v[{ZV}:{ZV+3}], v{ZA_}, s[96:99], 0 offen sc1')
        a('s_mov_b32 s40, 4096')
        a(f'buffer_store_dwordx4 v[{ZV}:{ZV+3}], v{ZA_}, s[96:99], s40 offen sc1')
        if FUSE2:
            a('s_mov_b32 s40, 8192')
            a(f'buffer_store_dwordx4 v[{ZV}:{ZV+3}], v{ZA_}, s[96:99], s40 offen sc1')
        a.label(f'L_noclr_{tag}')
    WR = [R.alloc(4, 4), R.alloc(4, 4)]; WI = [R.alloc(4, 4), R.alloc(4, 4)]; NY = [R.alloc(2), R.alloc(2)]
    EX = [R.alloc(8), R.alloc(8)]; a('v_mov_b32 v2, 0')
    for z, so in enumerate(('s26', 's27')):
        a(f'buffer_load_dwordx4 v[{WR[z]}:{WR[z]+3}], v1, s[4:7], {so} offen{WNT}')
        a(f'buffer_load_dwordx4 v[{WI[z]}:{WI[z]+3}], v1, s[8:11], {so} offen{WNT}')
        a(f'buffer_load_ushort v{NY[z]}, v3, s[4:7], {so} offen')
        a(f'buffer_load_ushort v{NY[z]+1}, v3, s[8:11], {so} offen')
        if PACK0:
            e = EX[z]
            a(f'buffer_load_ushort v{e}, v2, s[4:7], {so} offen{UNT}'); a(f'buffer_load_ushort v{e+1}, v2, s[8:11], {so} offen{UNT}')
            a(f's_add_u32 s41, s25, {2*z}'); a('s_sub_u32 s41, 2048, s41'); a('s_and_b32 s41, s41, 2047'); a('s_mul_i32 s41, s41, 1026')
            a(f'buffer_load_ushort v{e+2}, v2, s[4:7], s41 offen{UNT}'); a(f'buffer_load_ushort v{e+3}, v2, s[8:11], s41 offen{UNT}')
            a(f'buffer_load_ushort v{e+4}, v3, s[4:7], s41 offen{UNT}'); a(f'buffer_load_ushort v{e+5}, v3, s[8:11], s41 offen{UNT}')
    srd(a, 36, 82, 1024*7168)
    a('s_lshl_b32 s35, s34, 3'); a('s_add_u32 s35, s35, s20'); a('s_lshl_b32 s35, s35, 13')
    a('v_lshlrev_b32 v2, 6, v0')
    def cs_loads():
        a('buffer_load_dword v232, v2, s[36:39], s35 offen'); a('s_add_u32 s35, s35, 4096')
        a('buffer_load_dword v233, v2, s[36:39], s35 offen')
    if early: early.setup(a, tag)
    srd_off(a, 12, 84, WS_WP, ZBYTES)
    O = R.alloc(16, 4)
    a('v_mul_u32_u24 v4, 584, v0'); a('s_lshl_b32 s31, s20, 2'); a(f's_add_u32 s31, s31, {TILE0}'); a('v_add_u32 v4, s31, v4')
    a('s_mov_b32 s29, 0x05040100'); a('s_mov_b32 s30, 0x07060302')
    if tables:
        a(f's_cmp_lg_u32 s2, 255'); a(f's_cbranch_scc1 L_notab_{tag}'); a('s_cmp_lg_u32 s20, 7'); a(f's_cbranch_scc1 L_notab_{tag}')
        gen_rinv_tables(a, R, 84, 44, ' sc1' if FUSE2 else '')
        a('s_waitcnt vmcnt(0)')
        a.label(f'L_notab_{tag}')
    if mid: mid(a)
    else: a('s_waitcnt vmcnt(0)')
    if early: early.issue(a, tag)
    if WARM and early: cs_loads()
    if tables:
        a('s_cmp_lg_u32 s2, 240'); a(f's_cbranch_scc1 L_noopen_{tag}'); a('s_cmp_lg_u32 s20, 7'); a(f's_cbranch_scc1 L_noopen_{tag}')
        a(f'v_mov_b32 v{ZA_}, 0'); a(f'v_mov_b32 v{ZA_+1}, 1'); a('s_mov_b64 exec, 1')
        a(f'buffer_store_dword v{ZA_+1}, v{ZA_}, s[92:95], 0 offen sc1')
        a('s_mov_b64 exec, -1')
        a.label(f'L_noopen_{tag}')
    for z in range(2):
        for j in range(4):
            a(f'v_perm_b32 v{O+8*z+2*j}, v{WI[z]+j}, v{WR[z]+j}, s29')
            a(f'v_perm_b32 v{O+8*z+2*j+1}, v{WI[z]+j}, v{WR[z]+j}, s30')
        for e in range(8):
            a(f'ds_write_b32 v4, v{O+8*z+e} offset:{72*e + 32*z}')
    if PACK0:
        for z in range(2):
            e = EX[z]; n = NY[z]
            for r in (e, e+1, e+2, e+3, e+4, e+5, n, n+1): a(f'v_lshlrev_b32 v{r}, 16, v{r}')
            a(f'v_add_f32 v{e}, v{e}, v{e+2}'); a(f'v_sub_f32 v{e+1}, v{e+1}, v{e+3}')
            a(f'v_add_f32 v{n}, v{n}, v{e+4}'); a(f'v_sub_f32 v{n+1}, v{n+1}, v{e+5}')
            a(f'v_add_f32 v{e+2}, v{e}, v{n}'); a(f'v_add_f32 v{e+3}, v{e+1}, v{n+1}')
            a(f'v_sub_f32 v{e+4}, v{e}, v{n}'); a(f'v_sub_f32 v{e+5}, v{e+1}, v{n+1}')
            for r in range(e+2, e+6): a(f'v_mul_f32 v{r}, {f32(0.25)}, v{r}')
            a(f'v_cvt_pk_bf16_f32 v{e}, v{e+2}, v{e+3}'); a(f'v_cvt_pk_bf16_f32 v{n}, v{e+4}, v{e+5}')
    else:
        for z in range(2): a(f'v_lshl_or_b32 v{NY[z]}, v{NY[z]+1}, 16, v{NY[z]}')
    a('s_mov_b64 exec, 1')
    a('v_mov_b32 v5, s31')
    for z in range(2): a(f'ds_write_b32 v5, v{NY[z]} offset:{72*512 + 8*64 + 32*z}')
    if PACK0:
        for z in range(2): a(f'ds_write_b32 v5, v{EX[z]} offset:{32*z}')
    a('s_mov_b64 exec, -1')
    a('s_waitcnt lgkmcnt(0)'); a('s_barrier')
    return R.p

def gate_issue(a, vt):
    srd(a, 92, 86, 256)
    a(f'v_mov_b32 v{vt}, 0')
    a(f'buffer_load_dword v{vt+1}, v{vt}, s[92:95], 0 offen sc1')
def signal(a, vt, tag):
    srd(a, 92, 86, 256)
    a('s_mov_b32 s42, 0')
    a.label(f'L_gate_{tag}')
    a(f'v_readfirstlane_b32 s40, v{vt+1}'); a('s_cmp_eq_u32 s40, 1'); a(f's_cbranch_scc1 L_gateok_{tag}')
    if PSLEEP: a(f's_sleep {PSLEEP}')
    a(f'buffer_load_dword v{vt+1}, v{vt}, s[92:95], 0 offen sc1')
    a('s_waitcnt vmcnt(0)')
    a('s_add_u32 s42, s42, 1'); a('s_cmp_lt_u32 s42, 0x8000'); a(f's_cbranch_scc1 L_gate_{tag}')
    a.label(f'L_gateok_{tag}')
    srd_off(a, 96, 84, WS_PF, PFB)
    a('s_lshr_b32 s40, s2, 3'); a('s_lshl_b32 s40, s40, 7'); a('s_and_b32 s41, s2, 7'); a('s_lshl_b32 s41, s41, 2'); a('s_add_u32 s40, s40, s41')
    a(f'v_mov_b32 v{vt}, s40'); a(f'v_mov_b32 v{vt+1}, 1'); a('s_mov_b64 exec, 1')
    if not NOSYNC: a(f'buffer_store_dword v{vt+1}, v{vt}, s[96:99], 0 offen sc1')
    a('s_mov_b64 exec, -1')

def all_addr(a, vt):
    a(f'v_lshrrev_b32 v{vt}, 1, v0'); a(f'v_lshlrev_b32 v{vt}, 7, v{vt}'); a(f'v_and_b32 v{vt+1}, 1, v0'); a(f'v_lshl_add_u32 v{vt}, v{vt+1}, 4, v{vt}')
def poll_all(a, vt, vd, tag):
    srd_off(a, 96, 84, WS_PF, PFB)
    all_addr(a, vt)
    a('s_mov_b32 s42, 0')
    a.label(f'L_poll_{tag}')
    a(f'buffer_load_dwordx4 v[{vd}:{vd+3}], v{vt}, s[96:99], 0 offen sc1')
    a('s_waitcnt vmcnt(0)')
    for i in range(4):
        a(f'v_cmp_eq_u32 vcc, 1, v{vd+i}')
        if i == 0: a('s_mov_b64 s[40:41], vcc')
        else: a('s_and_b64 s[40:41], s[40:41], vcc')
    a('s_cmp_eq_u64 s[40:41], -1'); a(f's_cbranch_scc1 L_pollok_{tag}')
    if NOSYNC: a(f's_branch L_pollok_{tag}')
    if PSLEEP: a(f's_sleep {PSLEEP}')
    a('s_add_u32 s42, s42, 1'); a('s_cmp_lt_u32 s42, 0x8000'); a(f's_cbranch_scc1 L_poll_{tag}')
    a.label(f'L_pollok_{tag}')
def poll3_addr(a, vt):
    a(f'v_and_b32 v{vt+1}, 15, v0')
    a('s_lshr_b32 s40, s76, 1'); a('s_lshl_b32 s40, s40, 1')
    a(f'v_lshrrev_b32 v{vt}, 3, v{vt+1}'); a(f'v_add_u32 v{vt}, s40, v{vt}'); a(f'v_lshlrev_b32 v{vt}, 7, v{vt}')
    a(f'v_and_b32 v{vt+2}, 7, v0'); a(f'v_lshl_add_u32 v{vt}, v{vt+2}, 2, v{vt}')
    a('s_lshr_b32 s40, s2, 5'); a('s_lshl_b32 s40, s40, 9'); a('s_and_b32 s41, s2, 4'); a('s_lshl_b32 s41, s41, 2'); a('s_add_u32 s40, s40, s41'); a('s_add_u32 s40, s40, 4096')
    a(f'v_and_b32 v{vt+2}, 3, v{vt+1}'); a(f'v_lshlrev_b32 v{vt+2}, 7, v{vt+2}'); a(f'v_add_u32 v{vt+2}, s40, v{vt+2}')
    a(f'v_lshrrev_b32 v{vt+1}, 2, v{vt+1}'); a(f'v_lshl_add_u32 v{vt+2}, v{vt+1}, 2, v{vt+2}')
    a(f'v_and_b32 v{vt+1}, 16, v0'); a(f'v_cmp_eq_u32 vcc, 0, v{vt+1}'); a(f'v_cndmask_b32 v{vt}, v{vt+2}, v{vt}, vcc')
def poll3_check(a, vt, tag):
    a('s_mov_b32 s42, 0'); a(f's_branch L_pc_{tag}')
    a.label(f'L_poll_{tag}')
    if PSLEEP: a(f's_sleep {PSLEEP}')
    a(f'buffer_load_dword v{vt+1}, v{vt}, s[96:99], 0 offen sc1')
    a('s_waitcnt vmcnt(0)')
    a.label(f'L_pc_{tag}')
    a(f'v_cmp_eq_u32 vcc, 1, v{vt+1}')
    a('s_cmp_eq_u64 vcc, -1'); a(f's_cbranch_scc1 L_pollok_{tag}')
    if NOSYNC: a(f's_branch L_pollok_{tag}')
    a('s_add_u32 s42, s42, 1'); a('s_cmp_lt_u32 s42, 0x8000'); a(f's_cbranch_scc1 L_poll_{tag}')
    a.label(f'L_pollok_{tag}')

def stamp_rec(a, regs, slot, endlabel, ws=84):
    a('s_waitcnt vmcnt(0)'); a('s_memrealtime s[56:57]'); a('s_waitcnt lgkmcnt(0)')
    a('s_cmp_lg_u32 s20, 0'); a(f's_cbranch_scc1 {endlabel}')
    srd_off(a, 12, ws, WS_DBG + slot*0x4000, 0x4000)
    for i, r in enumerate(regs): a(f'v_mov_b32 v{12+i}, s{r}')
    a('s_lshl_b32 s40, s2, 6'); a('v_mov_b32 v10, s40')
    a('v_cmp_eq_u32 vcc, 0, v0'); a('s_and_saveexec_b64 s[62:63], vcc')
    for i in range((len(regs)+3)//4): a(f'buffer_store_dwordx4 v[{12+4*i}:{15+4*i}], v10, s[12:15], 0 offen offset:{16*i}')
    a('s_mov_b64 exec, -1')

def g1_part(a, tag, cfg, early, stamp, hsc, sigk, tsc=SC1, fltest=False, pk=9, siga=-1, pf2k=0):
    tmp = [1, 2, 3, 4]
    if stamp: a('s_memrealtime s[90:91]')
    a('s_mov_b32 s23, s76'); a('s_mov_b32 s24, s77')
    a(f's_mul_i32 s26, s23, {cfg.BM*cfg.pitchA}'); a(f's_mul_i32 s27, s24, {cfg.BN*2}')
    emit_consts(a, cfg)
    a(f's_cmp_ge_u32 s20, {cfg.NC}'); a(f's_cbranch_scc1 L_loader_{tag}')
    a('v_mov_b32 v235, 1')
    a('s_cmp_lg_u32 s20, 0'); a(f's_cbranch_scc1 L_nogate_{tag}')
    gate_issue(a, 234)
    a.label(f'L_nogate_{tag}')
    save = fft.SC; fft.SC = tsc
    tile_store_phase(a, 0, 's20', 12, 28, 8, TILE0, tag + 'a')
    a('s_add_u32 s21, s20, 4')
    tile_store_phase(a, 0, 's21', 12, 28, 40, TILE0, tag + 'b')
    fft.SC = save
    srd_off(a, 12, 84, HP.off, M*HP.pitch)
    a(f's_and_b32 s37, s20, {cfg.WN-1}')
    a(f's_lshr_b32 s36, s20, {cfg.WN.bit_length()-1}')
    Rc = Regs(72, 256)
    sets = emit_consumer_addr2(a, cfg, Rc, 0, 's36', 's37', tmp)
    vO = 5; vST = 6; vCS = 7
    Fr = consumer_regs(cfg, Regs(8, 256))
    Fr['acc'] = Rc.alloc(4*cfg.TM*cfg.TN, 4)
    acc = Fr['acc']
    for i in range(4*cfg.TM*cfg.TN): a(f'v_mov_b32 v{acc+i}, 0')
    a('s_waitcnt lgkmcnt(0)')
    a('v_mov_b32 v2, 0')
    sg = Asm()
    sg('s_cmp_lg_u32 s20, 0'); sg(f's_cbranch_scc1 L_nosig_{tag}')
    signal(sg, 2, tag)
    sg.label(f'L_nosig_{tag}')
    hooks = {}
    stl = ['s_memrealtime s[64:65]', 's_waitcnt lgkmcnt(0)'] if stamp else []
    if siga == -2:
        a('s_cmp_ge_u32 s2, 128'); a(f's_cbranch_scc1 L_nodrain_{tag}')
        a('s_waitcnt vmcnt(0)')
        a.label(f'L_nodrain_{tag}')
        a('v_mov_b32 v3, v235')
        for x in stl: a(x)
        s1 = Asm(); s1('s_cmp_ge_u32 s2, 128'); s1(f's_cbranch_scc1 L_nosig1_{tag}')
        s1.L += [l.replace('L_gate', 'L_gat1').replace('L_nosig_', 'L_nosig1_') for l in sg.L]
        hooks['first'] = lambda a: a.extend(s1)
    elif siga < 0:
        a('s_waitcnt vmcnt(0)'); a('v_mov_b32 v3, v235')
        for x in stl: a(x)
        hooks['first'] = lambda a: a.extend(sg)
    ONES = 220; CSA = 240; vCP = 236
    for i in range(4): a(f'v_mov_b32 v{ONES+i}, 0x3f803f80')
    a(f'v_and_b32 v{vCP+1}, 15, v0'); a(f'v_lshrrev_b32 v{vCP}, 4, v0'); a(f'v_lshlrev_b32 v{vCP}, 4, v{vCP}'); a(f'v_lshl_add_u32 v{vCP}, v{vCP+1}, 6, v{vCP}')
    a(f's_mul_i32 s40, s76, {3584*4}'); a('s_lshl_b32 s41, s77, 10'); a('s_add_u32 s40, s40, s41'); a('s_lshl_b32 s41, s37, 8'); a('s_add_u32 s40, s40, s41')
    a(f'v_add_u32 v{vCP}, s40, v{vCP}')
    srd_off(a, 4, 84, WS_CP, CPB)
    hstate = [0]
    def head(em, par):
        for t in range(cfg.TN):
            w = Fr['W'][par] + 4*t; c = CSA + 4*t
            em(f'v_mfma_f32_16x16x32_bf16 v[{c}:{c+3}], v[{w}:{w+3}], v[{ONES}:{ONES+3}], ' + ('0' if hstate[0] == 0 else f'v[{c}:{c+3}]'))
        hstate[0] += 1
        if hstate[0] == 2:
            for t in range(1, 4):
                em(f'v_cmp_eq_u32 vcc, {t}, v{vCP+1}')
                for i in range(4): em(f'v_cndmask_b32 v{CSA+i}, v{CSA+i}, v{CSA+4*t+i}, vcc')
            em('s_mov_b32 exec_lo, 0x000f000f'); em('s_mov_b32 exec_hi, 0x000f000f')
            em(f'buffer_store_dwordx4 v[{CSA}:{CSA+3}], v{vCP}, s[4:7], 0 offen sc1')
            em('s_mov_b64 exec, -1')
    hooks['head'] = head
    sb = Asm()
    sb('s_cmp_lg_u32 s20, 0'); sb(f's_cbranch_scc1 L_nosigb_{tag}')
    srd_off(sb, 96, 84, WS_PF, PFB)
    sb('s_lshr_b32 s40, s2, 3'); sb('s_lshl_b32 s40, s40, 7'); sb('s_and_b32 s41, s2, 7'); sb('s_lshl_b32 s41, s41, 2'); sb('s_add_u32 s40, s40, s41'); sb('s_add_u32 s40, s40, 4096')
    sb('v_mov_b32 v2, s40'); sb('v_mov_b32 v3, 1'); sb('s_mov_b64 exec, 1')
    if not NOSYNC: sb('buffer_store_dword v3, v2, s[96:99], 0 offen sc1')
    sb('s_mov_b64 exec, -1')
    sb.label(f'L_nosigb_{tag}')
    hooks['bar'] = {sigk: (['s_waitcnt vmcnt(0)'], sb.L)}
    if siga == -2:
        s2_ = Asm(); s2_('s_cmp_lt_u32 s2, 128'); s2_(f's_cbranch_scc1 L_nosig_{tag}'); s2_('v_mov_b32 v2, 0'); s2_('v_mov_b32 v3, v235')
        hooks['bar'][sigk] = (['s_waitcnt vmcnt(0)'], s2_.L + list(sg.L) + list(sb.L))
    if pf2k:
        pf = Asm()
        srd(pf, 68, 88, F*Dm*2)
        pf('s_lshl_b32 s40, s2, 2'); pf('s_add_u32 s40, s40, s20'); pf('s_lshl_b32 s40, s40, 13')
        pf('v_lshlrev_b32 v2, 6, v0')
        pf('buffer_load_dword v234, v2, s[68:71], s40 offen' + PFNT); pf('s_add_u32 s40, s40, 4096')
        pf('buffer_load_dword v234, v2, s[68:71], s40 offen' + PFNT)
        hooks['bar'][pf2k] = ([], pf.L)
    if siga >= 0:
        pre = ['s_waitcnt vmcnt(0)', 'v_mov_b32 v3, v235'] + stl
        hooks['bar'][siga] = (pre, list(sg.L) + (list(sb.L) if siga == sigk else []))
    if stamp:
        used = {k % 3 for k in hooks['bar'] if k >= 1}
        free = [r for r in range(3) if r not in used]
        hooks['pre_bar'] = {}
        if len(free) >= 1: hooks['pre_bar'][[k for k in (4, 5, 6) if k % 3 == free[0]][0]] = ['s_memrealtime s[66:67]', 's_waitcnt lgkmcnt(0)']
        if len(free) >= 2: hooks['pre_bar'][[k for k in (8, 9, 10) if k % 3 == free[1]][0]] = ['s_memrealtime s[68:69]', 's_waitcnt lgkmcnt(0)']
    ool = emit_consumer_loop2(a, cfg, Fr, sets, 32, tag, hooks=hooks)
    cfg.valu = None
    if stamp: stamp_mid(a)
    STv = Fr['A'][0]; CSv = STv + 16
    st = Fr['W'][0]; ndst = 3; tb = st + 16
    a(f'v_and_b32 v{tmp[1]}, 15, v0'); a(f'v_lshlrev_b32 v{vST}, 3, v{tmp[1]}'); a(f'v_add_u32 v{vST}, {STAT_LDS}, v{vST}')
    for mt in range(cfg.TM): a(f'ds_read_b64 v[{STv+2*mt}:{STv+2*mt+1}], v{vST} offset:{128*mt}')
    a(f'v_lshrrev_b32 v{vCS}, 4, v0'); a(f'v_lshlrev_b32 v{vCS}, 4, v{vCS}'); a(f's_mul_i32 s40, s37, {cfg.TN*64}'); a(f's_add_u32 s40, s40, {CS_LDS}'); a(f'v_add_u32 v{vCS}, s40, v{vCS}')
    for t in range(cfg.TN): a(f'ds_read_b128 v[{CSv+4*t}:{CSv+4*t+3}], v{vCS} offset:{64*t}')
    a('s_mov_b32 s46, 0xbfb8aa3b'); a('s_mov_b32 s47, 0xbfb8aa3b')
    a(f's_mul_i32 s40, s23, {cfg.BM}')
    a(f'v_and_b32 v{tmp[1]}, 7, v0'); a(f'v_add_u32 v{tmp[1]}, s40, v{tmp[1]}')
    a(f's_mov_b32 s41, {HP.pitch}')
    a(f'v_mul_lo_u32 v{vO}, v{tmp[1]}, s41')
    a(f'v_lshrrev_b32 v{tmp[1]}, 3, v0'); a(f'v_and_b32 v{tmp[1]}, 1, v{tmp[1]}'); a(f'v_lshl_add_u32 v{vO}, v{tmp[1]}, 6, v{vO}')
    a(f'v_lshrrev_b32 v{tmp[1]}, 4, v0'); a(f'v_and_b32 v{tmp[2]}, 1, v{tmp[1]}'); a(f'v_lshl_add_u32 v{vO}, v{tmp[2]}, 5, v{vO}')
    a(f'v_lshrrev_b32 v{tmp[1]}, 5, v0'); a(f'v_lshl_add_u32 v{vO}, v{tmp[1]}, 4, v{vO}')
    a(f's_mul_i32 s40, s37, {cfg.TN*32}'); a('s_add_u32 s40, s40, s27')
    a(f'v_add_u32 v{vO}, s40, v{vO}')
    a('s_waitcnt lgkmcnt(0)')
    def act4(c, t, cs, sp):
        for j in (0, 2): a(f'v_pk_mul_f32 v[{t+j}:{t+j+1}], v[{cs+j}:{cs+j+1}], v[{sp}:{sp+1}] op_sel:[0,1] op_sel_hi:[1,1]')
        for j in (0, 2): a(f'v_pk_fma_f32 v[{c+j}:{c+j+1}], v[{c+j}:{c+j+1}], v[{sp}:{sp+1}], v[{t+j}:{t+j+1}] op_sel:[0,0,0] op_sel_hi:[1,0,1]')
        for j in range(4): a(f'v_exp_f32 v{t+j}, v{c+j}')
        for j in (0, 2): a(f'v_pk_fma_f32 v[{t+j}:{t+j+1}], v[{t+j}:{t+j+1}], s[46:47], s[46:47]')
        for j in range(4): a(f'v_rcp_f32 v{t+j}, v{t+j}')
        for j in (0, 2): a(f'v_pk_mul_f32 v[{t+j}:{t+j+1}], v[{c+j}:{c+j+1}], v[{t+j}:{t+j+1}]')
    assert cfg.TN == 4 and cfg.WM == 1
    DS = [220, 224, 228]
    for mt in range(cfg.TM):
        d0 = st + 8*(mt & 1); d1 = d0 + 4; b = DS[mt % 3]
        for tp in range(2):
            d = d0 + 4*tp; tt = tb + 8*tp
            c0 = acc + 4*(mt*cfg.TN + 2*tp); c1 = c0 + 4
            act4(c0, tt, CSv + 8*tp, STv + 2*mt); act4(c1, tt+4, CSv + 8*tp + 4, STv + 2*mt)
            for j in range(4): a(f'v_cvt_pk_bf16_f32 v{d+j}, v{tt+2*j}, v{tt+2*j+1}')
            a(f'v_permlane16_swap_b32 v{d}, v{d+2}')
            a(f'v_permlane16_swap_b32 v{d+1}, v{d+3}')
        for j in range(4): a(f'v_mov_b32 v{b+j}, v{d1+j}')
        for j in range(4): a(f'v_mov_b32_dpp v{b+j}, v{d0+j} row_ror:8 row_mask:0xf bank_mask:0x3')
        for j in range(4): a(f'v_mov_b32_dpp v{d0+j}, v{d1+j} row_ror:8 row_mask:0xf bank_mask:0xc')
        a(f's_mov_b32 s40, {mt*16*HP.pitch}'); a(f's_mov_b32 s41, {(mt*16+8)*HP.pitch}')
        a(f'buffer_store_dwordx4 v[{d0}:{d0+3}], v{vO}, s[12:15], s40 offen{hsc}')
        a(f'buffer_store_dwordx4 v[{b}:{b+3}], v{vO}, s[12:15], s41 offen{hsc}')
    if stamp:
        a('s_waitcnt lgkmcnt(0)'); a('s_sub_u32 s60, s60, s58')
        stamp_rec(a, (52, 53, 90, 91, 54, 55, 56, 57, 64, 65, 66, 67, 68, 69, 68, 69), 0, f'L_g1end_{tag}')
    a.label(f'L_g1end_{tag}')
    a('s_branch L_g2_entry' if FUSE2 else 's_endpgm')
    for blk in ool:
        for ln in blk: a(ln)
    a.label(f'L_loader_{tag}')
    a(f's_sub_u32 s35, s20, {cfg.NC}')
    srd(a, 4, 80, M*Dm*2); srd(a, 8, 82, Dm*F*2)
    Rl = Regs(5, 236)
    X = {k: Rl.alloc() for k in ('d', 'l', 'z', 'sa', 'cp', 'cw')}
    X['p'] = Rl.alloc(3); X['p1'] = X['p'] + 1
    PV = Rl.alloc(16, 4); PT = Rl.alloc(4, 4)
    a('s_lshl_b32 s28, s76, 7'); a(f's_mul_i32 s29, s76, {64*cfg.pitchW}')
    a(f's_mul_i32 s30, s35, {cfg.PA*1024}')
    a(f's_mul_i32 s31, s35, {cfg.PW*1024}'); a(f's_add_u32 s31, s31, {cfg.A_BYTES}')
    n_main = cfg.NST - (cfg.S-1)
    def after_pro(a):
        a('s_lshl_b32 s66, s2, 2'); a('s_add_u32 s66, s66, s35')
        a(f'v_lshlrev_b32 v{X["l"]}, 6, v0'); a(f'v_mov_b32 v{X["z"]}, 0')
        srd_off(a, 72, 84, WS_FLG, 0x10000)
        srd(a, 68, 88, F*Dm*2)
        srd_off(a, 48, 84, WS_Z, ZB2); srd_off(a, 52, 84, WS_CP, CPB)
        a(f'v_and_b32 v{X["sa"]}, 1, v0'); a(f'v_mul_u32_u24 v{X["sa"]}, {ZP}, v{X["sa"]}')
        a(f'v_lshrrev_b32 v{X["cp"]}, 1, v0'); a(f'v_lshl_add_u32 v{X["sa"]}, v{X["cp"]}, 4, v{X["sa"]}')
        a(f'v_and_b32 v{X["cw"]}, 15, v0'); a(f'v_lshlrev_b32 v{X["cw"]}, 4, v{X["cw"]}')
        a(f'v_lshrrev_b32 v{X["cp"]}, 4, v0'); a(f'v_mul_u32_u24 v{X["cp"]}, {3584*4}, v{X["cp"]}'); a(f'v_add_u32 v{X["cp"]}, v{X["cp"]}, v{X["cw"]}')
        a('s_lshl_b32 s40, s35, 8'); a(f's_add_u32 s40, s40, {CS_LDS}'); a(f'v_add_u32 v{X["cw"]}, s40, v{X["cw"]}')
        srd_off(a, 96, 84, WS_PF, PFB); poll3_addr(a, X['p']); a(f'v_mov_b32 v{X["p1"]}, 0')
    PK = pk
    NX = 5
    def wait_hook(a, n):
        a(f's_cmp_le_u32 s32, {PK}'); a(f's_cbranch_scc1 L_wa_{tag}')
        a(f's_cmp_eq_u32 s32, {PK+1}'); a(f's_cbranch_scc1 L_wb_{tag}')
        a(f's_cmp_gt_u32 s32, {PK+3}'); a(f's_cbranch_scc1 L_wa_{tag}')
        a(f's_waitcnt vmcnt({n + NX})'); a(f's_branch L_wd_{tag}')
        a.label(f'L_wb_{tag}'); a(f's_waitcnt vmcnt({n + 1})'); a(f's_branch L_wd_{tag}')
        a.label(f'L_wa_{tag}'); a(f's_waitcnt vmcnt({n})')
        a.label(f'L_wd_{tag}')
    def extra(a):
        a(f's_cmp_lg_u32 s32, {PK}'); a(f's_cbranch_scc1 L_nop1_{tag}')
        a(f'buffer_load_dword v{X["p1"]}, v{X["p"]}, s[96:99], 0 offen sc1')
        a.label(f'L_nop1_{tag}')
        a(f's_cmp_lg_u32 s32, {PK+1}'); a(f's_cbranch_scc1 L_nop2_{tag}')
        a(f's_waitcnt vmcnt({cfg.P})')
        poll3_check(a, X['p'], tag)
        a('s_lshl_b32 s40, s76, 1'); a('s_lshr_b32 s41, s35, 1'); a('s_add_u32 s40, s40, s41')
        a('s_lshr_b32 s41, s40, 3'); a('s_and_b32 s42, s35, 1'); a('s_lshl_b32 s42, s42, 2'); a('s_add_u32 s41, s41, s42'); a('s_lshl_b32 s41, s41, 6')
        a('s_lshr_b32 s42, s40, 2'); a('s_and_b32 s42, s42, 1'); a('s_lshl_b32 s42, s42, 5'); a('s_add_u32 s41, s41, s42')
        a('s_lshl_b32 s41, s41, 4'); a('s_and_b32 s40, s40, 3'); a('s_lshl_b32 s40, s40, 2'); a('s_add_u32 s41, s41, s40')
        a(f's_add_u32 s41, s41, {513*ZP}')
        a('s_lshl_b32 s40, s35, 8'); a(f's_add_u32 m0, s40, {STAT_LDS}'); a('s_nop 0')
        a(f'buffer_load_dword v{X["sa"]}, s[48:51], s41 offen sc1 lds')
        a('s_lshl_b32 s41, s77, 10'); a('s_lshl_b32 s40, s35, 8'); a('s_add_u32 s41, s41, s40')
        for i in range(4):
            a(f'buffer_load_dwordx4 v[{PV+4*i}:{PV+4*i+3}], v{X["cp"]}, s[52:55], s41 offen sc1')
            if i < 3: a(f's_add_u32 s41, s41, {4*3584*4}')
        a.label(f'L_nop2_{tag}')
    extra.uncounted = True
    def cs_finish(a):
        for i in (1, 3):
            for j in (0, 2): a(f'v_pk_add_f32 v[{PV+4*(i-1)+j}:{PV+4*(i-1)+j+1}], v[{PV+4*(i-1)+j}:{PV+4*(i-1)+j+1}], v[{PV+4*i+j}:{PV+4*i+j+1}]')
        for j in (0, 2): a(f'v_pk_add_f32 v[{PV+j}:{PV+j+1}], v[{PV+j}:{PV+j+1}], v[{PV+8+j}:{PV+8+j+1}]')
        for op in ('v_permlane32_swap_b32', 'v_permlane16_swap_b32'):
            for j in range(4): a(f'v_mov_b32 v{PT+j}, v{PV+j}')
            for j in range(4): a(f'{op} v{PV+j}, v{PT+j}')
            for j in (0, 2): a(f'v_pk_add_f32 v[{PV+j}:{PV+j+1}], v[{PV+j}:{PV+j+1}], v[{PT+j}:{PT+j+1}]')
        a('s_mov_b64 exec, 0xffff')
        a(f'ds_write_b128 v{X["cw"]}, v[{PV}:{PV+3}]')
        a('s_mov_b64 exec, -1')
        a('s_waitcnt lgkmcnt(0)')
    def tail(a):
        if pf2k and FUSE2: return 0
        a('s_lshl_b32 s40, s66, 13')
        a(f'buffer_load_dword v{X["d"]}, v{X["l"]}, s[68:71], s40 offen')
        a('s_add_u32 s40, s40, 4096')
        a(f'buffer_load_dword v{X["d"]}, v{X["l"]}, s[68:71], s40 offen')
        if FUSE2: return 2
        a('s_lshl_b32 s40, s66, 12')
        a(f'buffer_store_dword v{X["z"]}, v{X["l"]}, s[72:75], s40 offen')
        return 3
    emit_loader_loop(a, cfg, early.vA, early.vW, 4, 8, 28, 29, 30, 32, 33, 38, tag, tail, after_pro=after_pro, extra=extra, pro_done=NEARLY, krot=True, wait_hook=wait_hook, tail1=cs_finish)
    a('s_branch L_g2_entry' if FUSE2 else 's_endpgm')
    return 256

def gen_fused(a, stamp=False, hsc=' sc1', sigk=1, tsc=SC1, nocs=False, psleep=0, nosync=False, nocol=False, fltest=False, efirst=False, warm=False, nearly=2, pk=9, siga=-1, fuse2=False, dsleep=8, g2kw=None, g2opt=None, late=None, krot=0, noj2=False, csleep=8, pf2k=0, wnt='', xnt='', colsc=SC1, ont='', ncol=513, coop=False, pack0=False, unt=''):
    global WNT, XNT, COOP, PACK0, UNT
    UNT = unt
    COOP = coop; PACK0 = pack0
    WNT = wnt; XNT = xnt; roles_gemm.ONT = ont
    global PSLEEP, NOSYNC, EFIRST, WARM, NEARLY, FUSE2, PFB, DSLEEP
    FUSE2 = fuse2; PFB = 12288 if fuse2 else 8192; DSLEEP = dsleep
    PSLEEP = psleep; NOSYNC = nosync; EFIRST = efirst; WARM = warm; NEARLY = nearly
    cfg = G16(S=3)
    top(a, stamp)
    a('s_cmp_ge_u32 s2, 224'); a('s_cbranch_scc1 L_col_role')
    a('s_cmp_ge_u32 s2, 128'); a('s_cbranch_scc1 L_wp_role')
    e1 = Early(cfg)
    n1 = row_part(a, 'rf', e1)
    a('s_branch L_g1_start')
    a.label('L_wp_role')
    e2 = Early(cfg)
    n2 = wp_part(a, 'wp', e2, False, nocs)
    assert e1.vA == e2.vA and e1.vW == e2.vW
    a.label('L_g1_start')
    g1_part(a, 'g1', cfg, e1, stamp, hsc, sigk, tsc, fltest, pk, siga, pf2k)
    a.label('L_col_role')
    a('s_sub_u32 s3, s2, 224')
    n3 = wp_part(a, 'wc', None, True, nocs, None)
    a('v_mov_b32 v65, 1'); a('v_mov_b32 v64, 0')
    a('s_cmp_lg_u32 s20, 0'); a('s_cbranch_scc1 L_colnogate')
    gate_issue(a, 64)
    a.label('L_colnogate')
    save = fft.SC; fft.SC = tsc
    tile_store_phase(a, 0, 's20', 12, 28, 8, TILE0, 'wc')
    fft.SC = save
    if nocol: a('s_endpgm')
    a('s_mov_b32 s18, s84'); a('s_mov_b32 s19, s85')
    def poll(a):
        a('s_waitcnt vmcnt(0)'); a('s_barrier')
        a('s_cmp_lg_u32 s20, 0'); a('s_cbranch_scc1 L_colnopoll')
        a('v_mov_b32 v5, 0'); a('v_mov_b32 v6, v65')
        signal(a, 5, 'col')
        if stamp: a('s_memrealtime s[90:91]')
        poll_all(a, 5, 8, 'col')
        a.label('L_colnopoll')
        if stamp: a('s_memrealtime s[54:55]')
    def stamp_end(a):
        if stamp: stamp_rec(a, (52, 53, 90, 91, 54, 55, 56, 57), 3, 'L_colend', ws=84)
        a.label('L_colend')
    n4, l4 = gen_col(a, 'c', 's3', 32, inited=True, poll=poll, ldsc=colsc, stamp_end=stamp_end, end_branch='L_g2_entry' if FUSE2 else None, ncol=ncol, pack0=pack0)
    if not FUSE2: return 256, FUSED_LDS
    a.label('L_g2_entry')
    a('s_waitcnt vmcnt(0)'); a('s_barrier')
    a('s_cmp_lg_u32 s20, 0'); a('s_cbranch_scc1 L_nosigd')
    srd_off(a, 96, 84, WS_PF, PFB)
    a('s_lshr_b32 s40, s2, 3'); a('s_lshl_b32 s40, s40, 7'); a('s_and_b32 s41, s2, 7'); a('s_lshl_b32 s41, s41, 2'); a('s_add_u32 s40, s40, s41'); a('s_add_u32 s40, s40, 8192')
    a('v_mov_b32 v2, s40'); a('v_mov_b32 v3, 1'); a('s_mov_b64 exec, 1')
    a('buffer_store_dword v3, v2, s[96:99], 0 offen sc1')
    a('s_mov_b64 exec, -1')
    a.label('L_nosigd')
    PR = {}
    def g2poll(a, R):
        vt = R.alloc(3); ve = R.alloc(); PR['vt'] = vt
        srd_off(a, 96, 64, WS_PF, PFB)
        a(f'v_lshrrev_b32 v{vt}, 3, v0'); a(f'v_add_u32 v{vt}, 28, v{vt}'); a(f'v_lshlrev_b32 v{vt}, 7, v{vt}')
        a(f'v_and_b32 v{vt+1}, 7, v0'); a(f'v_lshl_add_u32 v{vt}, v{vt+1}, 2, v{vt}')
        a(f'v_min_u32 v{vt+1}, 6, v{vt+1}'); a(f'v_lshlrev_b32 v{vt+1}, 9, v{vt+1}')
        a('s_and_b32 s40, s23, 3'); a('s_lshl_b32 s40, s40, 7'); a('s_lshr_b32 s41, s23, 2'); a('s_lshl_b32 s42, s25, 2'); a('s_add_u32 s41, s41, s42'); a('s_lshl_b32 s41, s41, 2'); a('s_add_u32 s40, s40, s41')
        a(f'v_add_u32 v{vt+1}, s40, v{vt+1}')
        a('v_cmp_gt_u32 vcc, 32, v0'); a(f'v_cndmask_b32 v{vt}, v{vt+1}, v{vt}, vcc'); a(f'v_add_u32 v{vt}, 0x2000, v{vt}')
        if late and krot:
            a(f'v_and_b32 v{vt+1}, 3, v0'); a(f'v_min_u32 v{vt+1}, 2, v{vt+1}'); a(f'v_add_u32 v{vt+1}, 4, v{vt+1}'); a(f'v_lshlrev_b32 v{vt+1}, 9, v{vt+1}')
            a('s_add_u32 s40, s40, 0x2000'); a(f'v_add_u32 v{ve}, s40, v{vt+1}')
        elif late:
            a(f'v_and_b32 v{vt+1}, 7, v0'); a(f'v_min_u32 v{vt+1}, 6, v{vt+1}'); a(f'v_lshlrev_b32 v{vt+1}, 9, v{vt+1}')
            a('s_add_u32 s40, s40, 0x2000'); a(f'v_add_u32 v{ve}, s40, v{vt+1}')
        else: a(f'v_mov_b32 v{ve}, v{vt}')
        if not noj2: a('s_cmp_lg_u32 s35, 0'); a('s_cbranch_scc1 L_g2p_done')
        a('s_mov_b32 s42, 0')
        a.label('L_g2poll')
        a(f'buffer_load_dword v{vt+1}, v{ve}, s[96:99], 0 offen sc1')
        a('s_waitcnt vmcnt(0)')
        a(f'v_cmp_eq_u32 vcc, 1, v{vt+1}')
        a('s_cmp_eq_u64 vcc, -1'); a('s_cbranch_scc1 L_g2p_done')
        if DSLEEP: a(f's_sleep {DSLEEP}')
        a('s_add_u32 s42, s42, 1'); a('s_cmp_lt_u32 s42, 0x8000'); a('s_cbranch_scc1 L_g2poll')
        a.label('L_g2p_done')
        a('s_barrier')
    def probe(a):
        a(f'buffer_load_dword v{PR["vt"]+1}, v{PR["vt"]}, s[96:99], 0 offen sc1')
    def check(a):
        vt = PR['vt']
        a('s_mov_b32 s42, 0'); a('s_branch L_g2pc')
        a.label('L_g2ps')
        if csleep: a(f's_sleep {csleep}')
        a(f'buffer_load_dword v{vt+1}, v{vt}, s[96:99], 0 offen sc1')
        a('s_waitcnt vmcnt(0)')
        a.label('L_g2pc')
        a(f'v_cmp_eq_u32 vcc, 1, v{vt+1}')
        a('s_cmp_eq_u64 vcc, -1'); a('s_cbranch_scc1 L_g2pok')
        a('s_add_u32 s42, s42, 1'); a('s_cmp_lt_u32 s42, 0x8000'); a('s_cbranch_scc1 L_g2ps')
        a.label('L_g2pok')
    g2opt = dict(g2opt or {})
    if late:
        late = dict(late); late.update(probe=probe, check=check); g2opt.update(late=late, krot=krot, SIG=late['SIG'])
    d = dict(BM=128, BN=128, WM=2, WN=2, K=1792, S=4, NSUB=1, pitchA=HP.pitch, pitchW=2048, dbufA=True); d.update(g2kw or {})
    cfg2 = G16(**d)
    nv2, l2 = gen_g2s(a, 'g2', cfg2, stamp, fused=g2poll, **(g2opt or {}))
    return 256, max(FUSED_LDS, l2)
```

```python
import sys
from asm import *
from fft import *
from roles_gemm import *
import hazard, fft
from full import wrap, KN
from g2var import g2k, finish
from fused import gen_fused
UF = dict(flags=True, unroll=True)
S3 = dict(a0first=True, maxper0=1, bat=4)
def k1(stamp, **kw):
    fft.SC = ''; fft.SCX = ''; fft.SCY = ''; fft.STAMP = False
    a = Asm(); name = 'g1col_kernel'
    a('s_cmp_ge_u32 s2, 256'); a(f's_cbranch_scc1 L_end_{name}')
    nv, l = gen_fused(a, stamp, **kw)
    a.label(f'L_end_{name}'); a('s_endpgm')
    return wrap(name, a.text(), nv, 256, 512, l)
def emit(fn, st, kw={}, gopt=UF, gkw=S3):
    ks = [k1(st, **kw), g2k(KN + '_kernel', st, gopt, **gkw)]
    open('exp/%s%s.s' % (fn, '_st' if st else ''),'w').write(finish(ks))
def emit1(fn, st, kw={}, gopt=UF, gkw=S3):
    fft.SC = ''; fft.SCX = ''; fft.SCY = ' sc1'; fft.STAMP = False
    a = Asm(); name = KN + '_kernel'
    a('s_cmp_ge_u32 s2, 256'); a(f's_cbranch_scc1 L_end_k')
    nv, l = gen_fused(a, st, fuse2=True, g2kw=gkw, g2opt=gopt, **kw)
    a.label(f'L_end_k'); a('s_endpgm')
    open('exp/%s%s.s' % (fn, '_st' if st else ''),'w').write(finish([wrap(name, a.text(), nv, 256, 512, l)]))
if __name__ == '__main__':
    Wd = dict(PY=0, NS=6, KP=12, SIG=19)
    B = dict(psleep=16, sigk=2, nearly=1, late=Wd, krot=16, csleep=16, dsleep=16, wnt=' nt', ont=' nt', coop=True)
    for st in (False, True):
        emit1('f20', st, B)
        emit1('f21', st, dict(B, pack0=True))
        emit1('f22', st, dict(B, pack0=True, unt=' nt'))
```

```python
from g3var import *
B = dict(psleep=16, sigk=2, nearly=1, late=dict(PY=0, NS=6, KP=12, SIG=19), krot=16, csleep=16, dsleep=16, wnt=' nt', ont=' nt', coop=True)
def patch(fn, d):
    s = open(f'../exp/{fn}.s').read()
    for lab, p in d.items():
        k = '\n' + lab + ':\n'
        assert s.count(k) == 1, lab
        s = s.replace(k, k + f'    s_setprio {p}\n')
    open(f'../exp/{fn}.s', 'w').write(s)
for fn, kw, gk in (('f60', {}, dict(a0first=True, maxper0=1, bat=2)), ('f61', {}, dict(a0first=True, maxper0=1, bat=6)), ('f62', dict(sigk=1), S3), ('f63', {}, dict(a0first=True, maxper0=2, bat=4))):
    for st in (False, True):
        try:
            emit1(fn, st, dict(B, **kw), UF, gk); patch(fn + ('_st' if st else ''), {'L_cons_g2': 3})
        except Exception as e:
            print(fn, 'FAIL', repr(e)[:200])
```
